```python
import torch

def _softmax(x, axis=-1):
    return torch.softmax(x, dim=axis)
def _gelu(x):
    return torch.nn.functional.gelu(x, approximate="tanh")
def _silu(x):
    return torch.nn.functional.silu(x)
def _sigmoid(x):
    return torch.sigmoid(x)
def _layernorm(x, axis=-1, eps=1e-5):
    m = x.mean(dim=axis, keepdim=True)
    v = x.var(dim=axis, keepdim=True, unbiased=False)
    return (x - m) / torch.sqrt(v + eps)
def _scatter_add(tgt, idx, src, axis=0):
    return tgt.clone().index_add_(axis, idx, src)
def _segment_sum(src, seg, n):
    out = torch.zeros((n,) + src.shape[1:], dtype=src.dtype)
    return out.index_add_(0, seg, src)
def _pad(x, pw):
    flat = tuple(v for pair in reversed(pw) for v in pair)
    return torch.nn.functional.pad(x, flat)

kernel_name = 'gather_scatter__edge_featured_mpnn_mpnn__graph'

def setup_inputs():

    _w = (lambda a: (lambda t: t.to(torch.bfloat16) if t.is_floating_point() else t)(torch.as_tensor(a)))
    N, deg, D, De = 10000, 16, 128, max(4, 1)
    E = N * deg
    H = 2 * D
    return {
        "x": _w((lambda *s: torch.randn(*s, dtype=torch.bfloat16) * 0.05)(N, D)),
        "e_attr": _w((lambda *s: torch.randn(*s, dtype=torch.bfloat16) * 1.6)(E, De)),
        "src": _w((lambda lo, hi, *s: torch.randint(lo, hi, s))(0, N, E).to(torch.int64)),
        "dst": _w((lambda lo, hi, *s: torch.randint(lo, hi, s))(0, N, E).to(torch.int64)),
        "w1": _w((lambda *s: torch.randn(*s, dtype=torch.bfloat16) * 1.6)(2 * D + De, H) * (1.0 / (2 * D + De) ** 0.5)),
        "b1": _w((lambda *s: torch.randn(*s, dtype=torch.bfloat16) * 3.2)(H) * 0.01),
        "w2": _w((lambda *s: torch.randn(*s, dtype=torch.bfloat16) * 0.05)(H, D) * (1.0 / H ** 0.5)),
        "b2": _w((lambda *s: torch.randn(*s, dtype=torch.bfloat16) * 0.1)(D) * 0.01),
    }

def reference(x, e_attr, src, dst, w1, b1, w2, b2):
    N, D = x.shape
    h_src = x[src]
    h_dst = x[dst]
    m_in = torch.concatenate([h_src, h_dst, e_attr], axis=-1)
    h = _silu(m_in @ w1 + b1)
    msg = h @ w2 + b2
    return _segment_sum(msg, dst, N)
```

```python
N, E, D, H = 10000, 160000, 128, 256
NWIN = 512
BM = 3355
START_MAGIC, START_SH = 0x1388a917, 8
NCHUNK = 256
CH = E // NCHUNK
LOG2E = 1.4426950408889634
LN2 = 0.6931471805599453

WS_REC = 0x000000
WS_TAB = 0x280000
WS_P = 0x300000
WS_WB = 0x800000
WS_W2F = 0x810000
WS_PMAX = 0x820000
WS_EMAX = 0x822000
NGEMM = 314
NPREP = 32

import struct
def f32bits(x):
    return struct.unpack("<I", struct.pack("<f", x))[0]


class Asm:
    def __init__(s):
        s.lines = []

    def __call__(s, txt=""):
        for l in txt.split("\n"):
            l = l.strip()
            if l:
                s.lines.append("    " + l)

    def label(s, name):
        s.lines.append(name + ":")

    def raw(s, txt):
        s.lines.append(txt)

    def text(s):
        return "\n".join(s.lines) + "\n"

    def srd(s, d, p, nrec, off=0, stride=0):
        if off:
            s(f"s_add_u32 s{d}, s{p}, {hex(off)}")
            s(f"s_addc_u32 s{d+1}, s{p+1}, 0")
        else:
            s(f"s_mov_b32 s{d}, s{p}")
            s(f"s_mov_b32 s{d+1}, s{p+1}")
        if stride:
            s(f"s_or_b32 s{d+1}, s{d+1}, {hex(stride << 16)}")
        s(f"s_mov_b32 s{d+2}, {hex(nrec)}")
        s(f"s_mov_b32 s{d+3}, 0x00020000")


def vr(a, n=1):
    return f"v{a}" if n == 1 else f"v[{a}:{a+n-1}]"


def sr(a, n=1):
    return f"s{a}" if n == 1 else f"s[{a}:{a+n-1}]"


def mfma(d, a, b, c):
    cs = "0" if c is None else vr(c, 16)
    return f"v_mfma_f32_32x32x16_bf16 {vr(d,16)}, {vr(a,4)}, {vr(b,4)}, {cs}"


def dpp_scan32(a, v):
    for sh in (1, 2, 4, 8):
        a("s_nop 1")
        a(f"v_add_u32_dpp v{v}, v{v}, v{v} row_shr:{sh} row_mask:0xf bank_mask:0xf bound_ctrl:0")
    a("s_nop 1")
    a(f"v_add_u32_dpp v{v}, v{v}, v{v} row_bcast:15 row_mask:0xa bank_mask:0xf")


def dpp_scan64(a, v):
    dpp_scan32(a, v)
    a("s_nop 1")
    a(f"v_add_u32_dpp v{v}, v{v}, v{v} row_bcast:31 row_mask:0xc bank_mask:0xf")


def dpp_max64(a, v):
    for sh in (1, 2, 4, 8):
        a("s_nop 1")
        a(f"v_max_u32_dpp v{v}, v{v}, v{v} row_shr:{sh} row_mask:0xf bank_mask:0xf bound_ctrl:0")
    a("s_nop 1")
    a(f"v_max_u32_dpp v{v}, v{v}, v{v} row_bcast:15 row_mask:0xa bank_mask:0xf")
    a("s_nop 1")
    a(f"v_max_u32_dpp v{v}, v{v}, v{v} row_bcast:31 row_mask:0xc bank_mask:0xf")


def descriptor(name, vgpr, sgpr=96):
    acc = (vgpr + 3) // 4 * 4
    return f""".section .rodata,"a"
.p2align 6
.amdhsa_kernel {name}
  .amdhsa_next_free_vgpr {vgpr}
  .amdhsa_next_free_sgpr {sgpr}
  .amdhsa_accum_offset {acc}
  .amdhsa_group_segment_fixed_size 0
  .amdhsa_kernarg_size 88
  .amdhsa_user_sgpr_count 2
  .amdhsa_user_sgpr_kernarg_segment_ptr 1
  .amdhsa_system_sgpr_workgroup_id_x 1
.end_amdhsa_kernel
"""


def entry(name):
    return f""".text
.globl {name}
.p2align 8
.type {name},@function
{name}:
"""
```

```python
from common import *

K1_LDS = 49152
K1_VGPR = 168

def gen_k1(order=("gemm", "sort", "prep")):
    a = Asm()
    counts = {"gemm": NGEMM, "sort": NCHUNK, "prep": NPREP}
    total = sum(counts.values())
    a(f"s_cmp_ge_u32 s2, {total}")
    a("s_cbranch_scc1 K1_END")
    a("s_load_dwordx16 s[4:19], s[0:1], 0")
    a("s_load_dwordx2 s[20:21], s[0:1], 80")
    a("v_and_b32 v1, 63, v0")
    a("v_lshrrev_b32 v2, 6, v0")
    a("s_nop 0")
    a("v_readfirstlane_b32 s3, v2")
    base = 0
    for i, r in enumerate(order):
        if i < len(order) - 1:
            a(f"s_cmp_lt_u32 s2, {counts[r]}")
            a(f"s_cbranch_scc1 K1_{r}")
            a(f"s_sub_u32 s2, s2, {counts[r]}")
        else:
            a(f"s_branch K1_{r}")
    gens = {"gemm": k1_gemm, "sort": k1_sort, "prep": k1_prep}
    for r in order:
        a.label(f"K1_{r}")
        gens[r](a)
        a("s_endpgm")
    a.label("K1_END")
    a("s_endpgm")
    return a.text(), total


def k1_sort(a):
    HIST, STRT, EMX = 0, 2048, 4096
    a("v_lshlrev_b32 v3, 2, v0")
    a("v_lshlrev_b32 v4, 3, v0")
    a("v_mov_b32 v6, 0")
    a("v_mov_b32 v7, 0")
    a("s_mul_i32 s22, s2, 2500")
    a("s_mul_i32 s23, s2, 5000")
    a("s_add_u32 s36, s23, 4096")
    a(f"ds_write_b64 v4, v[6:7] offset:{HIST}")
    a(f"ds_write_b32 v6, v6 offset:{EMX}")
    a("s_waitcnt lgkmcnt(0)")
    a.srd(24, 10, E * 4)
    a.srd(28, 8, E * 4)
    a.srd(32, 6, E * 8)
    for j in range(3):
        a(f"buffer_load_dword v{10+j}, v3, s[24:27], s22 offen offset:{1024*j}")
    a("buffer_load_dwordx2 v[16:17], v4, s[32:35], s23 offen")
    a("buffer_load_dwordx2 v[20:21], v4, s[32:35], s23 offen offset:2048")
    a("buffer_load_dwordx2 v[24:25], v4, s[32:35], s36 offen")
    for j in range(3):
        a(f"buffer_load_dword v{13+j}, v3, s[28:31], s22 offen offset:{1024*j}")
    a.srd(40, 20, E * 16, WS_REC)
    a.srd(44, 20, NCHUNK * NWIN * 4, WS_TAB)
    a.srd(48, 20, NCHUNK * 4, WS_EMAX)
    a("s_barrier")
    a("v_mov_b32 v8, 1")
    a(f"v_cmp_gt_u32 vcc, {CH - 512}, v0")
    a("s_mov_b64 s[38:39], vcc")
    a(f"s_movk_i32 s37, {BM}")
    a("s_waitcnt vmcnt(6)")
    for j in range(3):
        a(f"v_mul_u32_u24 v{28+j}, s37, v{10+j}")
    for j in range(3):
        a(f"v_lshrrev_b32 v{28+j}, 16, v{28+j}")
    for j in range(3):
        a(f"v_lshlrev_b32 v{28+j}, 2, v{28+j}")
    a(f"ds_add_rtn_u32 v32, v28, v8 offset:{HIST}")
    a(f"ds_add_rtn_u32 v33, v29, v8 offset:{HIST}")
    a("s_mov_b64 exec, s[38:39]")
    a(f"ds_add_rtn_u32 v34, v30, v8 offset:{HIST}")
    a("s_mov_b64 exec, -1")
    a("s_mov_b32 s52, 0x7fff7fff")
    a("s_waitcnt vmcnt(3)")
    for j in range(3):
        a(f"v_and_b32 v{36+2*j}, s52, v{16+4*j}")
        a(f"v_and_b32 v{37+2*j}, s52, v{17+4*j}")
    a("v_pk_max_u16 v36, v36, v37")
    a("v_pk_max_u16 v38, v38, v39")
    a("v_pk_max_u16 v40, v40, v41")
    a("v_pk_max_u16 v36, v36, v38")
    a("v_pk_max_u16 v36, v36, v40")
    a("v_lshlrev_b32 v37, 16, v36")
    a("v_and_b32 v36, 0xffff0000, v36")
    a("v_max_u32 v36, v36, v37")
    dpp_max64(a, 36)
    a("s_mov_b32 exec_lo, 0")
    a("s_mov_b32 exec_hi, 0x80000000")
    a(f"ds_max_u32 v6, v36 offset:{EMX}")
    a("s_mov_b64 exec, -1")
    a("s_waitcnt vmcnt(0)")
    for j in range(3):
        a(f"v_lshl_or_b32 v{18+4*j}, v{10+j}, 14, v{13+j}")
    a("v_lshlrev_b32 v5, 5, v1")
    a("s_waitcnt lgkmcnt(0)")
    a("s_barrier")
    a(f"ds_read_b128 v[40:43], v5 offset:{HIST}")
    a(f"ds_read_b128 v[44:47], v5 offset:{HIST+16}")
    a(f"ds_read_b32 v9, v6 offset:{EMX}")
    a("s_waitcnt lgkmcnt(1)")
    a("v_mov_b32 v48, 0")
    a("v_mov_b32 v49, v40")
    for k in range(2, 8):
        a(f"v_add_u32 v{48+k}, v{48+k-1}, v{40+k-1}")
    a("v_add_u32 v56, v55, v47")
    a("v_mov_b32 v57, v56")
    dpp_scan64(a, 56)
    a("v_sub_u32 v56, v56, v57")
    for k in range(8):
        a(f"v_add_u32 v{48+k}, v{48+k}, v56")
    a(f"ds_write_b128 v5, v[48:51] offset:{STRT}")
    a(f"ds_write_b128 v5, v[52:55] offset:{STRT+16}")
    a("s_waitcnt lgkmcnt(0)")
    for j in range(3):
        a(f"ds_read_b32 v{28+j}, v{28+j} offset:{STRT}")
    a("s_cmp_lg_u32 s3, 3")
    a("s_cbranch_scc1 K1S_notab")
    for k in range(8):
        a(f"v_lshl_or_b32 v{40+k}, v{40+k}, 16, v{48+k}")
    a("s_lshl_b32 s53, s2, 11")
    a("s_lshl_b32 s54, s2, 2")
    a("buffer_store_dwordx4 v[40:43], v5, s[44:47], s53 offen")
    a("buffer_store_dwordx4 v[44:47], v5, s[44:47], s53 offen offset:16")
    a("s_mov_b64 exec, 1")
    a("buffer_store_dword v9, v6, s[48:51], s54 offen")
    a("s_mov_b64 exec, -1")
    a.label("K1S_notab")
    a("s_mul_i32 s53, s2, 10000")
    a("s_waitcnt lgkmcnt(0)")
    for j in range(3):
        a(f"v_add_lshl_u32 v{28+j}, v{28+j}, v{32+j}, 4")
    a("buffer_store_dwordx4 v[16:19], v28, s[40:43], s53 offen")
    a("buffer_store_dwordx4 v[20:23], v29, s[40:43], s53 offen")
    a("s_mov_b64 exec, s[38:39]")
    a("buffer_store_dwordx4 v[24:27], v30, s[40:43], s53 offen")


def k1_prep(a):
    a("s_lshl_b32 s22, s2, 2")
    a("s_add_u32 s22, s22, s3")
    a("v_and_b32 v3, 31, v1")
    a("v_lshlrev_b32 v3, 1, v3")
    a("v_lshrrev_b32 v4, 5, v1")
    a("v_lshlrev_b32 v5, 4, v1")
    a("s_waitcnt lgkmcnt(0)")
    a.srd(40, 20, 0x20000, WS_WB)
    a("s_cmp_ge_u32 s22, 64")
    a("s_cbranch_scc1 K1P_w2")
    a.srd(24, 12, 260 * 512)
    a("v_lshl_add_u32 v3, v4, 12, v3")
    a("s_lshr_b32 s23, s22, 3")
    a("s_and_b32 s36, s22, 7")
    a("s_lshl_b32 s23, s23, 6")
    a("s_lshl_b32 s36, s36, 13")
    a("s_add_u32 s23, s23, s36")
    a("s_add_u32 s23, s23, 0x10000")
    for j in range(8):
        a(f"buffer_load_ushort v{8+j}, v3, s[24:27], s23 offen offset:{512*j}")
    a("s_branch K1P_st")
    a.label("K1P_w2")
    a.srd(24, 16, 256 * 256)
    a("v_lshl_add_u32 v3, v4, 10, v3")
    a("s_sub_u32 s37, s22, 64")
    a("s_lshr_b32 s23, s37, 4")
    a("s_and_b32 s36, s37, 15")
    a("s_lshl_b32 s23, s23, 6")
    a("s_lshl_b32 s36, s36, 12")
    a("s_add_u32 s23, s23, s36")
    for j in range(8):
        a(f"buffer_load_ushort v{8+j}, v3, s[24:27], s23 offen offset:{256*(8*(j>>2)+(j&3))}")
    a.label("K1P_st")
    a("s_lshl_b32 s22, s22, 10")
    a("s_waitcnt vmcnt(0)")
    for q in range(4):
        a(f"v_lshl_or_b32 v{16+q}, v{9+2*q}, 16, v{8+2*q}")
    a("buffer_store_dwordx4 v[16:19], v5, s[40:43], s22 offen")


def k1_gemm(a):
    WL, XL = 0, 32768
    XB, WA, ACC = 32, 64, 128
    a("s_lshr_b32 s22, s2, 1")
    a("s_and_b32 s23, s2, 1")
    a("s_and_b32 s36, s3, 1")
    a("s_lshr_b32 s37, s3, 1")
    a("v_lshrrev_b32 v3, 3, v1")
    a("v_and_b32 v4, 7, v1")
    a("v_lshlrev_b32 v4, 4, v4")
    a("v_lshl_add_u32 v3, v3, 9, v4")
    a("v_lshrrev_b32 v5, 4, v1")
    a("v_and_b32 v6, 15, v1")
    a("v_xor_b32 v6, v6, v5")
    a("v_lshlrev_b32 v6, 4, v6")
    a("v_lshl_add_u32 v8, v5, 8, v6")
    for z in range(1, 4):
        a(f"v_xor_b32 v{8+z}, {64*z}, v8")
    a("s_lshl_b32 s38, s37, 15")
    a("s_lshl_b32 s39, s23, 8")
    a("s_add_u32 s38, s38, s39")
    a("s_lshl_b32 s39, s36, 7")
    a("s_add_u32 s38, s38, s39")
    a("s_lshl_b32 s52, s36, 14")
    a("s_lshl_b32 s39, s37, 13")
    a("s_add_u32 s52, s52, s39")
    a("s_lshl_b32 s53, s22, 1")
    a("s_add_u32 s53, s53, s37")
    a("s_lshl_b32 s54, s53, 13")
    a("s_lshl_b32 s39, s36, 12")
    a("s_add_u32 s54, s54, s39")
    a("s_lshl_b32 s55, s37, 13")
    a("s_add_u32 s55, s55, s39")
    a(f"s_add_u32 s55, s55, {XL}")
    a("s_waitcnt lgkmcnt(0)")
    a.srd(24, 4, N * 256)
    a.srd(28, 12, 260 * 512)
    a("s_mov_b32 m0, s55")
    a("s_nop 0")
    for z in range(4):
        a(f"buffer_load_dwordx4 v{8+z}, s[24:27], s54 offen offset:{1024*z} lds")
    for z in range(8):
        a("s_mov_b32 m0, s52")
        a("s_add_u32 s52, s52, 1024")
        a("buffer_load_dwordx4 v3, s[28:31], s38 offen lds")
        a("s_add_u32 s38, s38, 4096")
    a.srd(40, 20, N * 512, WS_P)
    a.srd(44, 20, NGEMM * 16, WS_PMAX)
    a("v_lshrrev_b32 v12, 5, v1")
    a("v_and_b32 v13, 31, v1")
    a("v_bfe_u32 v14, v1, 2, 2")
    a("v_lshl_add_u32 v14, v12, 3, v14")
    a("v_lshlrev_b32 v14, 7, v14")
    a("v_and_b32 v15, 3, v1")
    a("v_lshl_add_u32 v14, v15, 3, v14")
    a("v_bfe_u32 v15, v1, 4, 1")
    a("v_lshl_add_u32 v14, v15, 5, v14")
    a("s_lshl_b32 s39, s36, 14")
    a("v_add_u32 v14, s39, v14")
    a("v_and_b32 v15, 15, v1")
    a("v_xor_b32 v15, v15, v12")
    a("v_lshlrev_b32 v15, 4, v15")
    a("v_lshl_add_u32 v15, v13, 8, v15")
    a("s_lshl_b32 s39, s37, 13")
    a(f"s_add_u32 s39, s39, {XL}")
    a("v_add_u32 v16, s39, v15")
    for s in range(1, 8):
        a(f"v_xor_b32 v{16+s}, {32*s}, v16")
    a("v_lshlrev_b32 v24, 4, v12")
    a("v_lshl_add_u32 v24, v13, 9, v24")
    a("s_lshl_b32 s56, s53, 14")
    a("s_lshl_b32 s39, s23, 8")
    a("s_add_u32 s56, s56, s39")
    a("s_lshl_b32 s39, s36, 7")
    a("s_add_u32 s56, s56, s39")
    a(f"s_mov_b32 s57, {hex(f32bits(-LOG2E))}")
    a("s_waitcnt vmcnt(0)")
    a("s_barrier")
    def reads(s):
        a(f"ds_read_b128 {vr(XB+4*s,4)}, v{16+s}")
        for T in range(2):
            for i in range(2):
                a(f"ds_read_b64_tr_b16 {vr(WA+(T*8+s)*4+2*i,2)}, v14 offset:{16*s*128+4*i*128+64*T}")
    reads(0); reads(1)
    for s in range(8):
        if s + 2 < 8:
            reads(s + 2)
            a("s_waitcnt lgkmcnt(10)")
        else:
            a(f"s_waitcnt lgkmcnt({5 if s == 6 else 0})")
        for T in range(2):
            a(mfma(ACC + 16*T, WA + (T*8+s)*4, XB + 4*s, None if s == 0 else ACC + 16*T))
    a("s_nop 11")
    a("v_mov_b32 v25, 0")
    for T in range(2):
        for r in range(16):
            a(f"v_mul_f32 v{ACC+16*T+r}, s57, v{ACC+16*T+r}")
        for r in range(0, 16, 2):
            a(f"v_max3_f32 v25, |v{ACC+16*T+r}|, |v{ACC+16*T+r+1}|, v25")
        for p in range(8):
            a(f"v_cvt_pk_bf16_f32 v{XB+8*T+p}, v{ACC+16*T+2*p}, v{ACC+16*T+2*p+1}")
        a("s_nop 1")
        for gp in range(2):
            b = XB + 8*T + 4*gp
            a(f"v_permlane32_swap_b32 v{b}, v{b+2}")
            a(f"v_permlane32_swap_b32 v{b+1}, v{b+3}")
        for gp in range(2):
            b = XB + 8*T + 4*gp
            a(f"buffer_store_dwordx4 {vr(b,4)}, v24, s[40:43], s56 offen offset:{64*T+32*gp}")
    dpp_max64(a, 25)
    a("s_lshl_b32 s39, s2, 4")
    a("s_lshl_b32 s36, s3, 2")
    a("s_add_u32 s39, s39, s36")
    a("v_mov_b32 v26, 0")
    a("s_mov_b32 exec_lo, 0")
    a("s_mov_b32 exec_hi, 0x80000000")
    a("buffer_store_dword v25, v26, s[44:47], s39 offen")
```

```python
from common import *

RING = 0
LIST = 0
XW = 8192
IDX = 32768
CNT = IDX + 2048
TOT = CNT + 128
BLK = TOT + 128
BLKSZ = 3072
K2_LDS = BLK + 40960
MAXT = 13
CAPR = MAXT * 32 - 20
PADIDX = N

IDN, QB, S, T0, T1, DD, MM, NN, HF, HB = 8, 16, 32, 64, 80, 96, 112, 120, 128, 136
PF, AO, SO, IX, PA, BA, IA, DEG = 140, 156, 164, 168, 176, 180, 181, 182
VBASE, VCNT, VREC = 183, 184, 185
WBUF = 192
K2_VGPR = 256
TT = (T0, T1)

sTAB, sREC, sP, sX, sWF, sW1, sB1, sB2, sOUT, sMX = 24, 28, 32, 36, 40, 44, 48, 52, 56, 60
sN0, sNN, sT, sLO, sNT, sI, sRING, sPMAX, sEMAX, sFIRST, sSLOW = 64, 65, 66, 67, 68, 69, 70, 72, 73, 74, 75
sM0, sM1 = 76, 78


def dma(a, stage_off, imm=True):
    out = []
    for q in range(4):
        out.append(f"s_add_u32 m0, s{sRING}, {stage_off + 1024*q}")
        out.append(f"s_nop 0")
        out.append(f"buffer_load_dwordx4 {vr(IX+2*q,2)}, s[{sP}:{sP+3}], 0 idxen offen lds")
    return out


def idx_reads(tile_off):
    return [f"ds_read_b32 v{IX+2*q}, v{IA} offset:{tile_off*128 + 32*q}" for q in range(4)]


def pf_reads(stage):
    return [f"ds_read_b128 {vr(PF+4*k,4)}, v{PA+k} offset:{stage*4096}" for k in range(4)]


def ao_reads(tile_off):
    return [f"ds_read_b128 {vr(AO+4*u,4)}, v{BA} offset:{tile_off*BLKSZ + 1024*u}" for u in range(2)]


def so_read(tile_off):
    return f"ds_read_b128 {vr(SO,4)}, v{BA} offset:{tile_off*BLKSZ + 2048}"


def zmf(c):
    t = TT[c]
    return [mfma(t, PF + 8*c, IDN, None), mfma(t, PF + 8*c + 4, IDN + 4, t),
            mfma(t, AO, QB + 8*c, t), mfma(t, AO + 4, QB + 8*c + 4, t)]


def ssmf(c):
    return mfma(S + 16*c, HB, SO, S + 16*c)


def cvts():
    return [f"v_cvt_pk_bf16_f32 v{HB+p}, v{HF+2*p}, v{HF+2*p+1}" for p in range(4)]


def exps(c):
    return [f"v_exp_f32 v{DD+r}, v{TT[c]+r}" for r in range(16)]


def rcps():
    return [f"v_rcp_f32 v{MM+r}, v{MM+r}" for r in range(8)]


def fms(pk):
    if pk:
        return [f"v_pk_mul_f32 {vr(HF+r,2)}, {vr(NN+r,2)}, {vr(MM+r,2)}" for r in range(0, 8, 2)]
    return [f"v_mul_f32 v{HF+r}, v{NN+r}, v{MM+r}" for r in range(8)]


def prun(c, pk):
    t = TT[c]
    P = fms(pk)
    if pk:
        P += [f"v_pk_add_f32 {vr(DD+r,2)}, {vr(DD+r,2)}, 1.0 op_sel_hi:[1,0]" for r in range(0, 16, 2)]
        P += [f"v_pk_mul_f32 {vr(MM+2*g,2)}, {vr(DD+4*g,2)}, {vr(DD+4*g+2,2)}" for g in range(4)]
        P += [f"v_pk_mul_f32 {vr(NN+2*g,2)}, {vr(t+4*g,2)}, {vr(DD+4*g+2,2)}" for g in range(4)]
        P += [f"v_pk_fma_f32 {vr(NN+2*g,2)}, {vr(t+4*g+2,2)}, {vr(DD+4*g,2)}, {vr(NN+2*g,2)}" for g in range(4)]
    else:
        P += [f"v_add_f32 v{DD+r}, 1.0, v{DD+r}" for r in range(16)]
        pr = [(g, i) for g in range(4) for i in range(2)]
        P += [f"v_mul_f32 v{MM+2*g+i}, v{DD+4*g+i}, v{DD+4*g+i+2}" for g, i in pr]
        P += [f"v_mul_f32 v{NN+2*g+i}, v{t+4*g+i}, v{DD+4*g+i+2}" for g, i in pr]
        P += [f"v_fma_f32 v{NN+2*g+i}, v{t+4*g+i+2}, v{DD+4*g+i}, v{NN+2*g+i}" for g, i in pr]
    return P


def weave(base, inserts):
    out = []
    ins = sorted(inserts, key=lambda x: x[0])
    k = 0
    for i, l in enumerate(base):
        while k < len(ins) and ins[k][0] <= i:
            out += ins[k][1]; k += 1
        out.append(l)
    while k < len(ins):
        out += ins[k][1]; k += 1
    return out


def tile_iter(a, par, pk, prio):
    nst = (par + 1) & 1
    base = cvts() + exps(0) + rcps()
    z = zmf(1)
    ins = [(0, [z[0]]), (5, [z[1]]), (9, [z[2]]), (13, [z[3]]),
           (17, ["s_waitcnt lgkmcnt(0)", ssmf(0)]),
           (18, ["s_waitcnt vmcnt(4)"] + pf_reads(nst)[:1]),
           (19, pf_reads(nst)[1:2]), (20, ao_reads(par + 1)[:1]), (21, ao_reads(par + 1)[1:]),
           (22, pf_reads(nst)[2:3]), (23, pf_reads(nst)[3:4])]
    ir = idx_reads(par + 3)
    ins += [(24 + q, [ir[q]]) for q in range(4)]
    if prio: a("s_setprio 1")
    for l in weave(base, ins): a(l)
    if prio: a("s_setprio 0")
    else: a("s_nop 0")
    for l in prun(0, pk): a(l)
    base = cvts() + exps(1) + rcps()
    z = zmf(0)
    d = dma(a, nst * 4096)
    ins = [(0, ["s_waitcnt lgkmcnt(0)", z[0]]), (5, [z[1]]), (9, [z[2]]), (13, [z[3]]),
           (17, [ssmf(1)]), (18, [so_read(par)])]
    for q in range(4):
        ins.append((19 + 2*q, [d[3*q]]))
        ins.append((20 + 2*q, [d[3*q+2]]))
    if prio: a("s_setprio 1")
    for l in weave(base, ins): a(l)
    if prio: a("s_setprio 0")
    else: a("s_nop 0")
    P = prun(1, pk)
    if par == 1:
        P = [f"v_add_u32 v{BA}, {2*BLKSZ}, v{BA}", f"v_add_u32 v{IA}, 256, v{IA}"] + P
    for l in P: a(l)


def gen_k2(pk=True, prio=False, force_slow=False):
    a = Asm()
    a(f"s_cmp_ge_u32 s2, {NWIN}")
    a("s_cbranch_scc1 K2_END")
    a("s_load_dwordx16 s[4:19], s[0:1], 0")
    a("s_load_dwordx2 s[20:21], s[0:1], 64")
    a("s_load_dwordx2 s[22:23], s[0:1], 80")
    a("v_and_b32 v1, 63, v0")
    a("v_lshrrev_b32 v2, 6, v0")
    a("s_and_b32 s80, s2, 7")
    a("v_readfirstlane_b32 s3, v2")
    a("s_lshr_b32 s2, s2, 3")
    a("s_lshl_b32 s80, s80, 6")
    a("s_add_u32 s2, s2, s80")
    a("s_lshl_b32 s80, s2, 16")
    a(f"s_add_u32 s80, s80, {BM-1}")
    a(f"s_add_u32 s81, s80, 0x10000")
    a(f"s_mul_hi_u32 s{sN0}, s80, {hex(START_MAGIC)}")
    a(f"s_mul_hi_u32 s81, s81, {hex(START_MAGIC)}")
    a(f"s_lshr_b32 s{sN0}, s{sN0}, {START_SH}")
    a(f"s_lshr_b32 s81, s81, {START_SH}")
    a(f"s_min_u32 s81, s81, {N}")
    a(f"s_sub_u32 s{sNN}, s81, s{sN0}")
    a(f"s_lshl_b32 s{sRING}, s3, 13")
    a(f"s_mov_b32 s{sLO}, 0")
    a(f"s_mov_b32 s{sFIRST}, 1")
    a("v_lshlrev_b32 v3, 11, v0")
    a("s_lshl_b32 s80, s2, 2")
    a("v_lshrrev_b32 v5, 4, v1")
    a("v_and_b32 v6, 15, v1")
    a("v_xor_b32 v6, v6, v5")
    a("s_and_b32 s82, s3, 1")
    a("s_lshl_b32 s82, s82, 3")
    a("v_xor_b32 v6, s82, v6")
    a("v_lshlrev_b32 v6, 4, v6")
    a("v_lshl_add_u32 v6, v5, 8, v6")
    a("v_xor_b32 v7, 64, v6")
    a(f"s_lshl_b32 s83, s{sN0}, 8")
    a("s_lshl_b32 s84, s3, 11")
    a("s_add_u32 s83, s83, s84")
    a(f"s_add_u32 m0, s84, {XW}")
    a("v_lshlrev_b32 v4, 4, v1")
    a("s_lshl_b32 s85, s3, 14")
    a("s_waitcnt lgkmcnt(0)")
    a.srd(sTAB, 22, NCHUNK * NWIN * 4, WS_TAB)
    a(f"buffer_load_dword v{VCNT}, v3, s[{sTAB}:{sTAB+3}], s80 offen")
    a.srd(sX, 4, N * 256)
    a(f"buffer_load_dwordx4 v6, s[{sX}:{sX+3}], s83 offen lds")
    a(f"buffer_load_dwordx4 v7, s[{sX}:{sX+3}], s83 offen offset:1024 lds")
    a.srd(sWF, 22, 0x20000, WS_WB)

    def wb_loads(svals):
        for c in range(2):
            for s in svals:
                f = c * 8 + s
                if (f & 3) == 0 or True:
                    pass
                a(f"s_add_u32 s86, s85, {(f >> 2) * 4096}")
                a(f"buffer_load_dwordx4 {vr(WBUF+4*f,4)}, v4, s[{sWF}:{sWF+3}], s86 offen offset:{(f & 3) * 1024}")
    wb_loads(range(0, 4))
    a.srd(sW1, 12, 260 * 512)
    a.srd(sB1, 14, 512)
    a("v_and_b32 v2, 31, v1")
    a("v_lshlrev_b32 v3, 1, v2")
    a("s_lshl_b32 s86, s3, 7")
    a("s_add_u32 s87, s86, 0x20000")
    WE = DD
    for c in range(2):
        for k in range(4):
            a(f"buffer_load_ushort v{WE+4*c+k}, v3, s[{sW1}:{sW1+3}], s87 offen offset:{512*k+64*c}")
    for c in range(2):
        a(f"buffer_load_ushort v{WE+8+c}, v3, s[{sB1}:{sB1+3}], s86 offen offset:{64*c}")
    MX = MM
    a.srd(sMX, 22, NGEMM * 16, WS_PMAX)
    a("s_movk_i32 s86, 0x1000")
    for k in range(5):
        so = "0" if k < 4 else "s86"
        a(f"buffer_load_dwordx4 {vr(MX+4*k,4)}, v4, s[{sMX}:{sMX+3}], {so} offen offset:{(k & 3) * 1024}")
    a.srd(sMX, 22, NCHUNK * 4, WS_EMAX)
    a(f"buffer_load_dwordx4 {vr(MX+20,4)}, v4, s[{sMX}:{sMX+3}], 0 offen")
    NY = 8 + 10 + 6
    a.srd(sREC, 22, E * 16, WS_REC)
    a.srd(sP, 22, N, WS_P, stride=512)
    a.srd(sB2, 18, 256)
    a.srd(sOUT, 20, N * 256)
    a(f"v_mov_b32 v{DEG}, 0")
    a("v_lshrrev_b32 v5, 5, v1")
    a("v_bfe_u32 v6, v1, 1, 3")
    a("v_xor_b32 v6, v6, v5")
    a("v_lshlrev_b32 v6, 4, v6")
    a("v_lshl_add_u32 v6, v2, 7, v6")
    a(f"v_add_u32 v{PA}, s{sRING}, v6")
    for k in range(1, 4):
        a(f"v_xor_b32 v{PA+k}, {32*k}, v{PA}")
    a("v_and_b32 v6, 7, v1")
    a("v_lshrrev_b32 v7, 4, v1")
    a("v_xor_b32 v6, v6, v7")
    a("v_lshlrev_b32 v6, 4, v6")
    a("s_lshl_b32 s86, s3, 7")
    a(f"v_add_u32 v{IX+1}, s86, v6")
    a(f"v_xor_b32 v{IX+3}, 64, v{IX+1}")
    a(f"v_mov_b32 v{IX+5}, v{IX+1}")
    a(f"v_mov_b32 v{IX+7}, v{IX+3}")

    a.label("K2_BATCH")
    Z = 186
    for k in range(4):
        a(f"v_mov_b32 v{Z+k}, 0")
    a(f"v_mov_b32 v{Z+4}, {PADIDX}")
    a(f"v_mov_b32 v{Z+5}, {PADIDX}")
    a("v_lshlrev_b32 v6, 4, v0")
    a(f"v_add_u32 v6, {BLK}, v6")
    a("v_lshlrev_b32 v7, 3, v0")
    for k in range(10):
        a(f"ds_write_b128 v6, {vr(Z,4)} offset:{4096*k}")
    a(f"ds_write_b64 v7, {vr(Z+4,2)} offset:{IDX}")
    a("v_lshlrev_b32 v6, 2, v2")
    a(f"ds_write_b32 v6, v{Z} offset:{CNT}")
    a(f"s_cmp_eq_u32 s{sFIRST}, 0")
    a("s_cbranch_scc1 K2_NF1")
    a(f"ds_write_b32 v{Z}, v{Z} offset:{TOT}")
    a.label("K2_NF1")
    a(f"v_lshlrev_b32 v{BA}, 4, v1")
    a(f"v_add_u32 v{BA}, {BLK}, v{BA}")
    a(f"v_lshrrev_b32 v{IA}, 3, v1")
    a(f"v_lshlrev_b32 v{IA}, 2, v{IA}")
    a(f"v_add_u32 v{IA}, {IDX}, v{IA}")
    a("s_waitcnt lgkmcnt(0)")
    a("s_barrier")
    a(f"s_cmp_eq_u32 s{sFIRST}, 0")
    a("s_cbranch_scc1 K2_NF2")
    a(f"s_waitcnt vmcnt({NY + 2})")
    a(f"v_and_b32 v6, 0xffff, v{VCNT}")
    a(f"v_lshrrev_b32 v{VCNT}, 16, v{VCNT}")
    a(f"s_movk_i32 s86, {CH}")
    a(f"ds_add_rtn_u32 v{VBASE}, v{Z}, v{VCNT} offset:{TOT}")
    a(f"v_mad_u32_u24 v{VREC}, v0, s86, v6")
    a("s_waitcnt lgkmcnt(0)")
    a.label("K2_NF2")
    a(f"s_add_u32 s86, s{sLO}, {CAPR}")
    a(f"v_max_u32 v6, s{sLO}, v{VBASE}")
    a(f"v_add_u32 v7, v{VBASE}, v{VCNT}")
    a(f"v_min_u32 v7, s86, v7")
    a(f"v_sub_u32 v{Z+4}, v6, v{VBASE}")
    a(f"v_add_u32 v{Z+4}, v{Z+4}, v{VREC}")
    a(f"v_sub_i32 v7, v7, v6")
    a(f"v_subrev_u32 v6, s{sLO}, v6")
    a("v_lshlrev_b32 v6, 2, v6")
    a.label("K2_EXP")
    for j in range(8):
        a(f"v_cmpx_lt_i32 vcc, {j}, v7")
        a(f"ds_write_b32 v6, v{Z+4} offset:{LIST + 4*j}")
        a(f"v_add_u32 v{Z+4}, 1, v{Z+4}")
    a("v_cmpx_lt_i32 vcc, 8, v7")
    a("v_add_u32 v6, 32, v6")
    a("v_subrev_u32 v7, 8, v7")
    a("s_nop 4")
    a("s_cbranch_execnz K2_EXP")
    a("s_mov_b64 exec, -1")
    a(f"s_waitcnt vmcnt({NY}) lgkmcnt(0)")
    a("s_barrier")
    a("v_lshlrev_b32 v6, 2, v0")
    a(f"ds_read_b32 v7, v{Z} offset:{TOT}")
    a(f"ds_read_b32 v{Z+4}, v6 offset:{LIST}")
    a(f"ds_read_b32 v{Z+5}, v6 offset:{LIST+1024}")
    a("s_waitcnt lgkmcnt(2)")
    a(f"v_readfirstlane_b32 s{sT}, v7")
    a("s_nop 1")
    a(f"s_sub_u32 s86, s{sT}, s{sLO}")
    a(f"s_min_u32 s86, s86, {CAPR}")
    a("v_add_u32 v7, 256, v0")
    a(f"v_cmp_gt_u32 s[{sM0}:{sM0+1}], s86, v0")
    a(f"v_cmp_gt_u32 s[{sM1}:{sM1+1}], s86, v7")
    a("s_waitcnt lgkmcnt(0)")
    a(f"v_lshlrev_b32 v{Z+4}, 4, v{Z+4}")
    a(f"v_lshlrev_b32 v{Z+5}, 4, v{Z+5}")
    R = (PF, PF + 4)
    for r in range(2):
        a(f"buffer_load_dwordx4 {vr(R[r],4)}, v{Z+4+r}, s[{sREC}:{sREC+3}], 0 offen")
    a(f"s_cmp_eq_u32 s{sFIRST}, 0")
    a("s_cbranch_scc1 K2_NF3")
    wb_loads(range(4, 8))
    a("v_and_b32 v6, 15, v1")
    a("v_xor_b32 v6, v6, v5")
    a("v_lshlrev_b32 v6, 4, v6")
    a("v_lshl_add_u32 v6, v2, 8, v6")
    for s in range(8):
        a(f"v_xor_b32 v7, {32*s}, v6")
        a(f"ds_read_b128 {vr(T0+4*s,4)}, v7 offset:{XW}")
    a("v_lshlrev_b32 v6, 3, v5")
    a("v_sub_u32 v6, v2, v6")
    a("v_and_b32 v7, 1, v6")
    a("v_lshlrev_b32 v7, 4, v7")
    a(f"v_mov_b32 v{Z+4}, 0x3f80")
    a(f"v_lshlrev_b32 v7, v7, v{Z+4}")
    a("v_ashrrev_i32 v6, 1, v6")
    for i in range(2):
        for q in range(4):
            a(f"v_cmp_eq_u32 vcc, {8*i+q}, v6")
            a("s_nop 1")
            a(f"v_cndmask_b32 v{IDN+4*i+q}, 0, v7, vcc")
    a("s_waitcnt vmcnt(10)")
    for k in range(1, 10):
        a(f"v_max3_u32 v{MX}, v{MX}, v{MX+2*k-1}, v{MX+2*k}")
    a(f"v_max_u32 v{MX}, v{MX}, v{MX+19}")
    a(f"v_max3_u32 v{MX+20}, v{MX+20}, v{MX+21}, v{MX+22}")
    a(f"v_max_u32 v{MX+20}, v{MX+20}, v{MX+23}")
    dpp_max64(a, MX)
    dpp_max64(a, MX + 20)
    a("s_nop 0")
    a(f"v_readlane_b32 s{sPMAX}, v{MX}, 63")
    a(f"v_readlane_b32 s{sEMAX}, v{MX+20}, 63")
    a(f"s_mov_b32 s86, {hex(f32bits(-LOG2E))}")
    for k in range(10):
        a(f"v_lshlrev_b32 v{WE+k}, 16, v{WE+k}")
    for k in range(8):
        a(f"v_mul_f32 v{WE+k}, s86, v{WE+k}")
    for c in range(2):
        w = WE + 4*c
        a(f"v_add_f32 v{MM+8+c}, |v{w}|, |v{w+1}|")
        a(f"v_add_f32 v{MM+8+c}, |v{w+2}|, v{MM+8+c}")
        a(f"v_add_f32 v{MM+8+c}, |v{w+3}|, v{MM+8+c}")
        for p in range(2):
            a(f"v_cvt_pk_bf16_f32 v{MM+2*c+p}, v{w+2*p}, v{w+2*p+1}")
        for p in range(2):
            a(f"v_lshlrev_b32 v6, 16, v{MM+2*c+p}")
            a(f"v_and_b32 v7, 0xffff0000, v{MM+2*c+p}")
            a(f"v_sub_f32 v6, v{w+2*p}, v6")
            a(f"v_sub_f32 v7, v{w+2*p+1}, v7")
            a(f"v_cvt_pk_bf16_f32 v{MM+4+2*c+p}, v6, v7")
    for c in range(2):
        for r in range(16):
            a(f"v_mov_b32 v{S+16*c+r}, v{WE+8+c}")
    a("s_waitcnt lgkmcnt(0)")
    for s in range(4):
        for c in range(2):
            a(mfma(S + 16*c, T0 + 4*s, WBUF + 4*(8*c+s), S + 16*c))
    a("s_waitcnt vmcnt(8)")
    a("s_branch K2_J3")
    a.label("K2_NF3")
    a("s_waitcnt vmcnt(0)")
    a.label("K2_J3")
    AC = (PF + 8, PF + 9); RK = (PF + 10, PF + 11)
    a(f"v_mov_b32 v{Z+4}, 1")
    for r in range(2):
        a(f"v_lshrrev_b32 v{AC[r]}, 14, v{R[r]+2}")
        a(f"v_subrev_u32 v{AC[r]}, s{sN0}, v{AC[r]}")
        a(f"v_lshlrev_b32 v{AC[r]}, 2, v{AC[r]}")
        a(f"s_mov_b64 exec, s[{(sM0, sM1)[r]}:{(sM0, sM1)[r]+1}]")
        a(f"ds_add_rtn_u32 v{RK[r]}, v{AC[r]}, v{Z+4} offset:{CNT}")
        a("s_mov_b64 exec, -1")
    OH = PF + 12
    a(f"v_lshrrev_b32 v{OH}, 4, v2")
    a(f"v_lshlrev_b32 v{OH}, 10, v{OH}")
    a("v_bfe_u32 v6, v2, 2, 1")
    a(f"v_lshl_add_u32 v{OH}, v6, 9, v{OH}")
    a("v_and_b32 v6, 3, v2")
    a(f"v_lshl_add_u32 v{OH}, v6, 1, v{OH}")
    a("v_bfe_u32 v6, v2, 3, 1")
    a(f"v_lshl_add_u32 v{OH}, v6, 3, v{OH}")
    a("v_lshlrev_b32 v6, 2, v2")
    a("s_waitcnt lgkmcnt(0)")
    a("s_barrier")
    a(f"ds_read_b32 v7, v6 offset:{CNT}")
    a("s_waitcnt lgkmcnt(0)")
    a("v_cvt_f32_u32 v6, v7")
    a("v_add_u32 v7, 1, v7")
    a("v_and_b32 v7, -2, v7")
    a(f"v_add_f32 v{DEG}, v{DEG}, v6")
    a("v_mov_b32 v6, v7")
    dpp_scan32(a, 7)
    a("v_sub_u32 v6, v7, v6")
    a(f"v_readlane_b32 s{sNT}, v7, 31")
    a(f"v_lshl_or_b32 v6, v{OH}, 16, v6")
    BP = (PF + 13, PF + 14)
    for r in range(2):
        a(f"ds_bpermute_b32 v{BP[r]}, v{AC[r]}, v6")
    a(f"s_add_u32 s{sNT}, s{sNT}, 31")
    a(f"s_lshr_b32 s{sNT}, s{sNT}, 5")
    a(f"s_movk_i32 s86, {BLKSZ}")
    a(f"v_mov_b32 v{Z+4}, 0x3f80")
    t = [AO + k for k in range(8)]
    for r in range(2):
        if r == 0:
            a("s_waitcnt lgkmcnt(0)")
        p, oh = t[0], t[1]
        a(f"v_and_b32 v{p}, 0xffff, v{BP[r]}")
        a(f"v_lshrrev_b32 v{oh}, 16, v{BP[r]}")
        a(f"v_add_u32 v{p}, v{p}, v{RK[r]}")
        a(f"v_and_b32 v{t[2]}, 1, v{p}")
        a(f"v_bfe_u32 v{t[3]}, v{p}, 1, 1")
        a(f"v_and_b32 v{t[4]}, -4, v{p}")
        a(f"v_lshl_or_b32 v{t[2]}, v{t[2]}, 1, v{t[4]}")
        a(f"v_or_b32 v{t[2]}, v{t[2]}, v{t[3]}")
        a(f"v_lshrrev_b32 v{t[3]}, 5, v{p}")
        a(f"v_mul_u32_u24 v{t[3]}, s86, v{t[3]}")
        a(f"v_and_b32 v{t[4]}, 31, v{t[2]}")
        a(f"v_lshl_add_u32 v{t[4]}, v{t[4]}, 4, v{t[3]}")
        a(f"v_lshlrev_b32 v{t[2]}, 2, v{t[2]}")
        a(f"v_and_b32 v{R[r]+2}, 0x3fff, v{R[r]+2}")
        a(f"v_add_u32 v{oh}, v{oh}, v{t[4]}")
        a(f"v_bfe_u32 v{t[5]}, v{p}, 3, 2")
        a(f"v_and_b32 v{t[6]}, 2, v{p}")
        a(f"v_lshl_add_u32 v{t[5]}, v{t[5]}, 2, v{t[6]}")
        a(f"v_bfe_u32 v{t[6]}, v{p}, 2, 1")
        a(f"v_lshl_add_u32 v{t[5]}, v{t[6]}, 9, v{t[5]}")
        a(f"v_lshl_add_u32 v{t[5]}, v{AC[r]}, 2, v{t[5]}")
        a(f"v_add_u32 v{t[5]}, v{t[5]}, v{t[3]}")
        a(f"s_mov_b64 exec, s[{(sM0, sM1)[r]}:{(sM0, sM1)[r]+1}]")
        a(f"ds_write_b32 v{t[2]}, v{R[r]+2} offset:{IDX}")
        a(f"ds_write_b16 v{oh}, v{Z+4} offset:{BLK}")
        a(f"ds_write_b64 v{t[4]}, {vr(R[r],2)} offset:{BLK+1536}")
        a(f"ds_write_b64 v{t[4]}, {vr(R[r],2)} offset:{BLK+1032}")
        a(f"ds_write_b16 v{t[5]}, v{Z+4} offset:{BLK+2048}")
        a("s_mov_b64 exec, -1")
    a("s_waitcnt lgkmcnt(0)")
    a("s_barrier")
    for tl in range(2):
        for l in idx_reads(tl): a(l)
        a("s_waitcnt lgkmcnt(0)")
        for l in dma(a, tl * 4096): a(l)
    a(f"s_cmp_eq_u32 s{sFIRST}, 0")
    a("s_cbranch_scc1 K2_NF4")
    a("s_waitcnt vmcnt(8)")
    for s in range(4, 8):
        for c in range(2):
            a(mfma(S + 16*c, T0 + 4*s, WBUF + 4*(8*c+s), S + 16*c))
    a("s_lshl_b32 s85, s3, 14")
    a("s_add_u32 s85, s85, 0x10000")
    a(f"s_mov_b32 s87, {hex(f32bits(-LOG2E))}")
    a("s_nop 7")
    for f in range(16):
        a(f"s_add_u32 s86, s85, {(f >> 2) * 4096}")
        a(f"buffer_load_dwordx4 {vr(WBUF+4*f,4)}, v4, s[{sWF}:{sWF+3}], s86 offen offset:{(f & 3) * 1024}")
    a(f"s_mov_b32 s{sSLOW}, {1 if force_slow else 0}")
    for c in range(2):
        q = S + 16*c
        for r in range(16):
            a(f"v_mul_f32 v{q+r}, s87, v{q+r}")
        a("v_mov_b32 v6, 0")
        for r in range(0, 16, 2):
            a(f"v_max3_f32 v6, |v{q+r}|, |v{q+r+1}|, v6")
        for p in range(8):
            a(f"v_cvt_pk_bf16_f32 v{QB+8*c+p}, v{q+2*p}, v{q+2*p+1}")
        a(f"v_add_f32 v6, s{sPMAX}, v6")
        a(f"v_fma_f32 v6, s{sEMAX}, v{MM+8+c}, v6")
        a("v_cmp_nge_f32 vcc, 0x42700000, v6")
        a("s_mov_b32 exec_lo, 0")
        for p in range(2):
            a(f"v_mov_b32 v{QB+8*c+4+p}, v{MM+2*c+p}")
            a(f"v_mov_b32 v{QB+8*c+6+p}, 0")
        a("s_mov_b32 exec_lo, -1")
        a("s_mov_b32 exec_hi, 0")
        for p in range(2):
            a(f"v_mov_b32 v{QB+8*c+6+p}, v{MM+4+2*c+p}")
        a("s_mov_b32 exec_hi, -1")
        a("s_cmp_lg_u64 vcc, 0")
        a(f"s_cselect_b32 s86, 1, 0")
        a(f"s_or_b32 s{sSLOW}, s{sSLOW}, s86")
    for r in range(32):
        a(f"v_mov_b32 v{S+r}, 0")
    a(f"s_mov_b32 s{sFIRST}, 0")
    a("s_waitcnt vmcnt(20)")
    a("s_branch K2_J4")
    a.label("K2_NF4")
    a("s_waitcnt vmcnt(4)")
    a.label("K2_J4")
    a(f"s_cmp_eq_u32 s{sNT}, 0")
    a("s_cbranch_scc1 K2_BDONE")
    a(f"s_cmp_lg_u32 s{sSLOW}, 0")
    a("s_cbranch_scc1 K2_SLOW")
    for l in pf_reads(0) + ao_reads(0) + idx_reads(2): a(l)
    for r in range(8):
        a(f"v_mov_b32 v{MM+r}, 1.0")
        a(f"v_mov_b32 v{NN+r}, 0")
        a(f"v_mov_b32 v{HF+r}, 0")
    for r in range(4):
        a(f"v_mov_b32 v{SO+r}, 0")
    a(f"s_mov_b32 s{sI}, s{sNT}")
    a("s_waitcnt lgkmcnt(0)")
    for l in zmf(0): a(l)
    for l in dma(a, 0): a(l)
    a("s_nop 7")
    a.raw(".p2align 6")
    a.label("K2_LOOP")
    tile_iter(a, 0, pk, prio)
    a(f"s_sub_u32 s{sI}, s{sI}, 1")
    a(f"s_cmp_eq_u32 s{sI}, 0")
    a("s_cbranch_scc1 K2_DRAIN")
    tile_iter(a, 1, pk, prio)
    a(f"s_sub_u32 s{sI}, s{sI}, 1")
    a(f"s_cmp_lg_u32 s{sI}, 0")
    a("s_cbranch_scc1 K2_LOOP")
    a.label("K2_DRAIN")
    for l in cvts() + rcps()[:2]: a(l)
    a("s_waitcnt lgkmcnt(0)")
    a(ssmf(0))
    for l in rcps()[2:]: a(l)
    a("s_nop 0")
    for l in fms(False) + cvts(): a(l)
    a("s_nop 1")
    a(ssmf(1))
    a("s_branch K2_BDONE")
    a.label("K2_SLOW")
    a(f"s_mov_b32 s{sI}, s{sNT}")
    a(f"s_mov_b32 s87, s{sRING}")
    a.label("K2_SLOOP")
    a("s_waitcnt vmcnt(0)")
    for l in pf_reads(0) + ao_reads(0) + [so_read(0)] + idx_reads(2): a(l)
    a("s_waitcnt lgkmcnt(0)")
    for l in dma(a, 0): a(l)
    for c in range(2):
        for l in zmf(c): a(l)
        a("s_nop 15")
        for l in exps(c): a(l)
        for r in range(16): a(f"v_add_f32 v{DD+r}, 1.0, v{DD+r}")
        for r in range(16): a(f"v_rcp_f32 v{DD+r}, v{DD+r}")
        for g in range(4):
            for i in range(2):
                a(f"v_mul_f32 v{HF+2*g+i}, v{TT[c]+4*g+i}, v{DD+4*g+i}")
        for g in range(4):
            for i in range(2):
                a(f"v_fma_f32 v{HF+2*g+i}, v{TT[c]+4*g+i+2}, v{DD+4*g+i+2}, v{HF+2*g+i}")
        for l in cvts(): a(l)
        a("s_nop 1")
        a(ssmf(c))
    for k in range(4):
        a(f"v_xor_b32 v{PA+k}, 0x1000, v{PA+k}")
    a(f"s_xor_b32 s{sRING}, s{sRING}, 0x1000")
    a(f"v_add_u32 v{BA}, {BLKSZ}, v{BA}")
    a(f"v_add_u32 v{IA}, 128, v{IA}")
    a(f"s_sub_u32 s{sI}, s{sI}, 1")
    a(f"s_cmp_lg_u32 s{sI}, 0")
    a("s_cbranch_scc1 K2_SLOOP")
    a(f"s_xor_b32 s86, s87, s{sRING}")
    a(f"s_mov_b32 s{sRING}, s87")
    for k in range(4):
        a(f"v_xor_b32 v{PA+k}, s86, v{PA+k}")
    a.label("K2_BDONE")
    a(f"s_add_u32 s{sLO}, s{sLO}, {CAPR}")
    a(f"s_cmp_ge_u32 s{sLO}, s{sT}")
    a("s_cbranch_scc1 K2_EPI")
    a("s_waitcnt vmcnt(0) lgkmcnt(0)")
    a("s_barrier")
    a("s_branch K2_BATCH")
    a.label("K2_EPI")
    B2R = PF
    a("v_lshlrev_b32 v6, 3, v5")
    a("s_lshl_b32 s86, s3, 6")
    for g in range(4):
        a(f"buffer_load_dwordx2 {vr(B2R+2*g,2)}, v6, s[{sB2}:{sB2+3}], s86 offen offset:{16*g}")
    a(f"s_mov_b32 s87, {hex(f32bits(-LN2))}")
    a(f"v_add_u32 v7, s{sRING}, v4")
    a("s_nop 7")
    a("s_nop 3")
    for c in range(2):
        for r in range(16):
            a(f"v_mul_f32 v{S+16*c+r}, s87, v{S+16*c+r}")
        for p in range(8):
            a(f"v_cvt_pk_bf16_f32 v{DD+8*c+p}, v{S+16*c+2*p}, v{S+16*c+2*p+1}")
    a("s_waitcnt vmcnt(0)")
    for k in range(4):
        a(f"ds_write_b128 v7, {vr(DD+4*k,4)} offset:{1024*k}")
    ACC = T0
    for g in range(4):
        for p in range(2):
            a(f"v_lshlrev_b32 v{ACC+4*g+2*p}, 16, v{B2R+2*g+p}")
            a(f"v_and_b32 v{ACC+4*g+2*p+1}, 0xffff0000, v{B2R+2*g+p}")
    for r in range(16):
        a(f"v_mul_f32 v{ACC+r}, v{ACC+r}, v{DEG}")
    a("s_waitcnt lgkmcnt(0)")
    a("s_barrier")
    XB = S
    def xr(f):
        return f"ds_read_b128 {vr(XB+4*(f&7),4)}, v4 offset:{(f>>2)*8192 + (f&3)*1024}"
    for f in range(8): a(xr(f))
    for f in range(16):
        a(f"s_waitcnt lgkmcnt({min(7, 15-f) if f >= 8 else 7})")
        a(mfma(ACC, WBUF + 4*f, XB + 4*(f & 7), ACC))
        if f + 8 < 16:
            a(xr(f + 8))
    a("v_lshlrev_b32 v6, 4, v5")
    a("v_lshl_add_u32 v6, v2, 8, v6")
    a(f"s_lshl_b32 s86, s{sN0}, 8")
    a("s_lshl_b32 s87, s3, 6")
    a("s_add_u32 s86, s86, s87")
    a(f"v_cmp_gt_u32 vcc, s{sNN}, v2")
    a("s_nop 7")
    for p in range(8):
        a(f"v_cvt_pk_bf16_f32 v{DD+p}, v{ACC+2*p}, v{ACC+2*p+1}")
    a("s_nop 1")
    for gp in range(2):
        b = DD + 4*gp
        a(f"v_permlane32_swap_b32 v{b}, v{b+2}")
        a(f"v_permlane32_swap_b32 v{b+1}, v{b+3}")
    a("s_mov_b64 exec, vcc")
    for gp in range(2):
        a(f"buffer_store_dwordx4 {vr(DD+4*gp,4)}, v6, s[{sOUT}:{sOUT+3}], s86 offen offset:{32*gp}")
    a.label("K2_END")
    a("s_endpgm")
    return a.text()
```

```python
import sys
from common import *
from k1 import gen_k1, K1_LDS, K1_VGPR
from k2 import gen_k2, K2_LDS, K2_VGPR

HEADER = open("gather_scatter__edge_featured_mpnn_mpnn__graph.s.ref").read().split("; Override launch")[0]

def build(pk=True, prio=False, force_slow=False, order=("gemm","sort","prep"), extra=0):
    k1, n1 = gen_k1(order)
    k2 = gen_k2(pk, prio, force_slow)
    s = HEADER
    s += f"; @launch kernel=mpnn_pre_kernel grid=({n1},1,1) block=(256,1,1) lds={K1_LDS}\n"
    for i in range(extra):
        s += f"; @launch kernel=mpnn_nop_kernel grid=(256,1,1) block=(256,1,1) lds=0\n"
    s += f"; @launch kernel=mpnn_main_kernel grid=({NWIN},1,1) block=(256,1,1) lds={K2_LDS}\n"
    s += '.amdgcn_target "amdgcn-amd-amdhsa--gfx950"\n'
    s += entry("mpnn_pre_kernel") + k1
    s += entry("mpnn_main_kernel") + k2
    if extra:
        s += entry("mpnn_nop_kernel") + "    s_endpgm\n"
    s += descriptor("mpnn_pre_kernel", K1_VGPR) + descriptor("mpnn_main_kernel", K2_VGPR)
    if extra:
        s += descriptor("mpnn_nop_kernel", 8)
    return s

if __name__ == "__main__":
    out = sys.argv[1] if len(sys.argv) > 1 else "gather_scatter__edge_featured_mpnn_mpnn__graph.s"
    kw = eval("dict(" + (sys.argv[2] if len(sys.argv) > 2 else "") + ")")
    open(out, "w").write(build(**kw))
```

```python
N, E, D, H = 10000, 160000, 128, 256
NWIN = 512
BM = 3355
START_MAGIC, START_SH = 0x1388a917, 8
NCHUNK = 256
CH = E // NCHUNK
LOG2E = 1.4426950408889634
LN2 = 0.6931471805599453

WS_REC = 0x000000
WS_TAB = 0x280000
WS_P = 0x300000
WS_WB = 0x800000
WS_W2F = 0x810000
WS_PMAX = 0x820000
WS_EMAX = 0x822000
WS_STAMP = 0x900000
NGEMM = 314
NPREP = 32

import struct
def f32bits(x):
    return struct.unpack("<I", struct.pack("<f", x))[0]


class Asm:
    def __init__(s):
        s.lines = []

    def __call__(s, txt=""):
        for l in txt.split("\n"):
            l = l.strip()
            if l:
                s.lines.append("    " + l)

    def label(s, name):
        s.lines.append(name + ":")

    def raw(s, txt):
        s.lines.append(txt)

    def text(s):
        return "\n".join(s.lines) + "\n"

    diag = False

    def stamp(s, k):
        if not s.diag:
            return
        s("s_memrealtime s[90:91]")
        s("s_waitcnt lgkmcnt(0)")
        s(f"s_mov_b32 s{92+k}, s90")

    def cyc(s, reg):
        if not s.diag:
            return
        s("s_memtime s[90:91]")
        s("s_waitcnt lgkmcnt(0)")
        s(f"s_mov_b32 s{reg}, s90")

    def stamp_flush(s, wsptr, kern, wg, wave, n=10):
        if not s.diag:
            return
        s("s_mov_b64 exec, 1")
        s.srd(84, wsptr, 0x80000, WS_STAMP + kern * 0x80000)
        s(f"s_lshl_b32 s90, s{wg}, 2")
        s(f"s_add_u32 s90, s90, s{wave}")
        s("s_lshl_b32 s90, s90, 6")
        s("s_mov_b32 s82, s90")
        s("v_mov_b32 v0, 0")
        for k in range(n):
            s(f"v_mov_b32 v1, s{92+k}")
            s(f"buffer_store_dword v1, v0, s[84:87], s90 offen offset:{4*k}")
        s.cyc(83)
        s("s_sub_u32 s83, s83, s88")
        s("v_mov_b32 v1, s83")
        s(f"buffer_store_dword v1, v0, s[84:87], s90 offen offset:40".replace("s90", "s82"))
        s("s_waitcnt vmcnt(0)")

    def srd(s, d, p, nrec, off=0, stride=0):
        if off:
            s(f"s_add_u32 s{d}, s{p}, {hex(off)}")
            s(f"s_addc_u32 s{d+1}, s{p+1}, 0")
        else:
            s(f"s_mov_b32 s{d}, s{p}")
            s(f"s_mov_b32 s{d+1}, s{p+1}")
        if stride:
            s(f"s_or_b32 s{d+1}, s{d+1}, {hex(stride << 16)}")
        s(f"s_mov_b32 s{d+2}, {hex(nrec)}")
        s(f"s_mov_b32 s{d+3}, 0x00020000")


def vr(a, n=1):
    return f"v{a}" if n == 1 else f"v[{a}:{a+n-1}]"


def sr(a, n=1):
    return f"s{a}" if n == 1 else f"s[{a}:{a+n-1}]"


def mfma(d, a, b, c):
    cs = "0" if c is None else vr(c, 16)
    return f"v_mfma_f32_32x32x16_bf16 {vr(d,16)}, {vr(a,4)}, {vr(b,4)}, {cs}"


def dpp_scan32(a, v):
    for sh in (1, 2, 4, 8):
        a("s_nop 1")
        a(f"v_add_u32_dpp v{v}, v{v}, v{v} row_shr:{sh} row_mask:0xf bank_mask:0xf bound_ctrl:0")
    a("s_nop 1")
    a(f"v_add_u32_dpp v{v}, v{v}, v{v} row_bcast:15 row_mask:0xa bank_mask:0xf")


def dpp_scan64(a, v):
    dpp_scan32(a, v)
    a("s_nop 1")
    a(f"v_add_u32_dpp v{v}, v{v}, v{v} row_bcast:31 row_mask:0xc bank_mask:0xf")


def dpp_max64(a, v):
    for sh in (1, 2, 4, 8):
        a("s_nop 1")
        a(f"v_max_u32_dpp v{v}, v{v}, v{v} row_shr:{sh} row_mask:0xf bank_mask:0xf bound_ctrl:0")
    a("s_nop 1")
    a(f"v_max_u32_dpp v{v}, v{v}, v{v} row_bcast:15 row_mask:0xa bank_mask:0xf")
    a("s_nop 1")
    a(f"v_max_u32_dpp v{v}, v{v}, v{v} row_bcast:31 row_mask:0xc bank_mask:0xf")


def descriptor(name, vgpr, sgpr=102):
    acc = (vgpr + 3) // 4 * 4
    return f""".section .rodata,"a"
.p2align 6
.amdhsa_kernel {name}
  .amdhsa_next_free_vgpr {vgpr}
  .amdhsa_next_free_sgpr {sgpr}
  .amdhsa_accum_offset {acc}
  .amdhsa_group_segment_fixed_size 0
  .amdhsa_kernarg_size 88
  .amdhsa_user_sgpr_count 2
  .amdhsa_user_sgpr_kernarg_segment_ptr 1
  .amdhsa_system_sgpr_workgroup_id_x 1
.end_amdhsa_kernel
"""


def entry(name):
    return f""".text
.globl {name}
.p2align 8
.type {name},@function
{name}:
"""
```

```python
from common import *

K1_LDS = 49152
K1_VGPR = 168

def gen_k1(order=("gemm", "sort", "prep"), diag=False):
    a = Asm()
    a.diag = diag
    counts = {"gemm": NGEMM, "sort": NCHUNK, "prep": NPREP}
    total = sum(counts.values())
    a(f"s_cmp_ge_u32 s2, {total}")
    a("s_cbranch_scc1 K1_END")
    a.stamp(0)
    a.cyc(88)
    if diag:
        a("s_mov_b32 s89, s2")
        for k in range(1, 10): a(f"s_mov_b32 s{92+k}, 0")
    a("s_load_dwordx16 s[4:19], s[0:1], 0")
    a("s_load_dwordx2 s[20:21], s[0:1], 80")
    a("v_and_b32 v1, 63, v0")
    a("v_lshrrev_b32 v2, 6, v0")
    a("s_nop 0")
    a("v_readfirstlane_b32 s3, v2")
    base = 0
    for i, r in enumerate(order):
        if i < len(order) - 1:
            a(f"s_cmp_lt_u32 s2, {counts[r]}")
            a(f"s_cbranch_scc1 K1_{r}")
            a(f"s_sub_u32 s2, s2, {counts[r]}")
        else:
            a(f"s_branch K1_{r}")
    gens = {"gemm": k1_gemm, "sort": k1_sort, "prep": k1_prep}
    for r in order:
        a.label(f"K1_{r}")
        gens[r](a)
        if diag:
            a.stamp(8)
            a("s_waitcnt vmcnt(0)")
            a.stamp(9)
            a.stamp_flush(20, 0, 89, 3)
        a("s_endpgm")
    a.label("K1_END")
    a("s_endpgm")
    return a.text(), total


def k1_sort(a):
    HIST, STRT, EMX = 0, 2048, 4096
    a("v_lshlrev_b32 v3, 2, v0")
    a("v_lshlrev_b32 v4, 3, v0")
    a("v_mov_b32 v6, 0")
    a("v_mov_b32 v7, 0")
    a("s_mul_i32 s22, s2, 2500")
    a("s_mul_i32 s23, s2, 5000")
    a("s_add_u32 s36, s23, 4096")
    a(f"ds_write_b64 v4, v[6:7] offset:{HIST}")
    a(f"ds_write_b32 v6, v6 offset:{EMX}")
    a("s_waitcnt lgkmcnt(0)")
    a.srd(24, 10, E * 4)
    a.srd(28, 8, E * 4)
    a.srd(32, 6, E * 8)
    for j in range(3):
        a(f"buffer_load_dword v{10+j}, v3, s[24:27], s22 offen offset:{1024*j}")
    a("buffer_load_dwordx2 v[16:17], v4, s[32:35], s23 offen")
    a("buffer_load_dwordx2 v[20:21], v4, s[32:35], s23 offen offset:2048")
    a("buffer_load_dwordx2 v[24:25], v4, s[32:35], s36 offen")
    for j in range(3):
        a(f"buffer_load_dword v{13+j}, v3, s[28:31], s22 offen offset:{1024*j}")
    a.srd(40, 20, E * 16, WS_REC)
    a.srd(44, 20, NCHUNK * NWIN * 4, WS_TAB)
    a.srd(48, 20, NCHUNK * 4, WS_EMAX)
    a("s_barrier")
    a("v_mov_b32 v8, 1")
    a(f"v_cmp_gt_u32 vcc, {CH - 512}, v0")
    a("s_mov_b64 s[38:39], vcc")
    a(f"s_movk_i32 s37, {BM}")
    a.stamp(1)
    a("s_waitcnt vmcnt(6)")
    a.stamp(2)
    for j in range(3):
        a(f"v_mul_u32_u24 v{28+j}, s37, v{10+j}")
    for j in range(3):
        a(f"v_lshrrev_b32 v{28+j}, 16, v{28+j}")
    for j in range(3):
        a(f"v_lshlrev_b32 v{28+j}, 2, v{28+j}")
    a(f"ds_add_rtn_u32 v32, v28, v8 offset:{HIST}")
    a(f"ds_add_rtn_u32 v33, v29, v8 offset:{HIST}")
    a("s_mov_b64 exec, s[38:39]")
    a(f"ds_add_rtn_u32 v34, v30, v8 offset:{HIST}")
    a("s_mov_b64 exec, -1")
    a("s_mov_b32 s52, 0x7fff7fff")
    a("s_waitcnt vmcnt(3)")
    for j in range(3):
        a(f"v_and_b32 v{36+2*j}, s52, v{16+4*j}")
        a(f"v_and_b32 v{37+2*j}, s52, v{17+4*j}")
    a("v_pk_max_u16 v36, v36, v37")
    a("v_pk_max_u16 v38, v38, v39")
    a("v_pk_max_u16 v40, v40, v41")
    a("v_pk_max_u16 v36, v36, v38")
    a("v_pk_max_u16 v36, v36, v40")
    a("v_lshlrev_b32 v37, 16, v36")
    a("v_and_b32 v36, 0xffff0000, v36")
    a("v_max_u32 v36, v36, v37")
    dpp_max64(a, 36)
    a("s_mov_b32 exec_lo, 0")
    a("s_mov_b32 exec_hi, 0x80000000")
    a(f"ds_max_u32 v6, v36 offset:{EMX}")
    a("s_mov_b64 exec, -1")
    a("s_waitcnt vmcnt(0)")
    for j in range(3):
        a(f"v_lshl_or_b32 v{18+4*j}, v{10+j}, 14, v{13+j}")
    a("v_lshlrev_b32 v5, 5, v1")
    a("s_waitcnt lgkmcnt(0)")
    a("s_barrier")
    a.stamp(3)
    a(f"ds_read_b128 v[40:43], v5 offset:{HIST}")
    a(f"ds_read_b128 v[44:47], v5 offset:{HIST+16}")
    a(f"ds_read_b32 v9, v6 offset:{EMX}")
    a("s_waitcnt lgkmcnt(1)")
    a("v_mov_b32 v48, 0")
    a("v_mov_b32 v49, v40")
    for k in range(2, 8):
        a(f"v_add_u32 v{48+k}, v{48+k-1}, v{40+k-1}")
    a("v_add_u32 v56, v55, v47")
    a("v_mov_b32 v57, v56")
    dpp_scan64(a, 56)
    a("v_sub_u32 v56, v56, v57")
    for k in range(8):
        a(f"v_add_u32 v{48+k}, v{48+k}, v56")
    a(f"ds_write_b128 v5, v[48:51] offset:{STRT}")
    a(f"ds_write_b128 v5, v[52:55] offset:{STRT+16}")
    a("s_waitcnt lgkmcnt(0)")
    for j in range(3):
        a(f"ds_read_b32 v{28+j}, v{28+j} offset:{STRT}")
    a("s_cmp_lg_u32 s3, 3")
    a("s_cbranch_scc1 K1S_notab")
    for k in range(8):
        a(f"v_lshl_or_b32 v{40+k}, v{40+k}, 16, v{48+k}")
    a("s_lshl_b32 s53, s2, 11")
    a("s_lshl_b32 s54, s2, 2")
    a("buffer_store_dwordx4 v[40:43], v5, s[44:47], s53 offen")
    a("buffer_store_dwordx4 v[44:47], v5, s[44:47], s53 offen offset:16")
    a("s_mov_b64 exec, 1")
    a("buffer_store_dword v9, v6, s[48:51], s54 offen")
    a("s_mov_b64 exec, -1")
    a.label("K1S_notab")
    a("s_mul_i32 s53, s2, 10000")
    a("s_waitcnt lgkmcnt(0)")
    for j in range(3):
        a(f"v_add_lshl_u32 v{28+j}, v{28+j}, v{32+j}, 4")
    a("buffer_store_dwordx4 v[16:19], v28, s[40:43], s53 offen")
    a("buffer_store_dwordx4 v[20:23], v29, s[40:43], s53 offen")
    a("s_mov_b64 exec, s[38:39]")
    a("buffer_store_dwordx4 v[24:27], v30, s[40:43], s53 offen")


def k1_prep(a):
    a("s_lshl_b32 s22, s2, 2")
    a("s_add_u32 s22, s22, s3")
    a("v_and_b32 v3, 31, v1")
    a("v_lshlrev_b32 v3, 1, v3")
    a("v_lshrrev_b32 v4, 5, v1")
    a("v_lshlrev_b32 v5, 4, v1")
    a("s_waitcnt lgkmcnt(0)")
    a.srd(40, 20, 0x20000, WS_WB)
    a("s_cmp_ge_u32 s22, 64")
    a("s_cbranch_scc1 K1P_w2")
    a.srd(24, 12, 260 * 512)
    a("v_lshl_add_u32 v3, v4, 12, v3")
    a("s_lshr_b32 s23, s22, 3")
    a("s_and_b32 s36, s22, 7")
    a("s_lshl_b32 s23, s23, 6")
    a("s_lshl_b32 s36, s36, 13")
    a("s_add_u32 s23, s23, s36")
    a("s_add_u32 s23, s23, 0x10000")
    for j in range(8):
        a(f"buffer_load_ushort v{8+j}, v3, s[24:27], s23 offen offset:{512*j}")
    a("s_branch K1P_st")
    a.label("K1P_w2")
    a.srd(24, 16, 256 * 256)
    a("v_lshl_add_u32 v3, v4, 10, v3")
    a("s_sub_u32 s37, s22, 64")
    a("s_lshr_b32 s23, s37, 4")
    a("s_and_b32 s36, s37, 15")
    a("s_lshl_b32 s23, s23, 6")
    a("s_lshl_b32 s36, s36, 12")
    a("s_add_u32 s23, s23, s36")
    for j in range(8):
        a(f"buffer_load_ushort v{8+j}, v3, s[24:27], s23 offen offset:{256*(8*(j>>2)+(j&3))}")
    a.label("K1P_st")
    a("s_lshl_b32 s22, s22, 10")
    a("s_waitcnt vmcnt(0)")
    for q in range(4):
        a(f"v_lshl_or_b32 v{16+q}, v{9+2*q}, 16, v{8+2*q}")
    a("buffer_store_dwordx4 v[16:19], v5, s[40:43], s22 offen")


def k1_gemm(a):
    WL, XL = 0, 32768
    XB, WA, ACC = 32, 64, 128
    a("s_lshr_b32 s22, s2, 1")
    a("s_and_b32 s23, s2, 1")
    a("s_and_b32 s36, s3, 1")
    a("s_lshr_b32 s37, s3, 1")
    a("v_lshrrev_b32 v3, 3, v1")
    a("v_and_b32 v4, 7, v1")
    a("v_lshlrev_b32 v4, 4, v4")
    a("v_lshl_add_u32 v3, v3, 9, v4")
    a("v_lshrrev_b32 v5, 4, v1")
    a("v_and_b32 v6, 15, v1")
    a("v_xor_b32 v6, v6, v5")
    a("v_lshlrev_b32 v6, 4, v6")
    a("v_lshl_add_u32 v8, v5, 8, v6")
    for z in range(1, 4):
        a(f"v_xor_b32 v{8+z}, {64*z}, v8")
    a("s_lshl_b32 s38, s37, 15")
    a("s_lshl_b32 s39, s23, 8")
    a("s_add_u32 s38, s38, s39")
    a("s_lshl_b32 s39, s36, 7")
    a("s_add_u32 s38, s38, s39")
    a("s_lshl_b32 s52, s36, 14")
    a("s_lshl_b32 s39, s37, 13")
    a("s_add_u32 s52, s52, s39")
    a("s_lshl_b32 s53, s22, 1")
    a("s_add_u32 s53, s53, s37")
    a("s_lshl_b32 s54, s53, 13")
    a("s_lshl_b32 s39, s36, 12")
    a("s_add_u32 s54, s54, s39")
    a("s_lshl_b32 s55, s37, 13")
    a("s_add_u32 s55, s55, s39")
    a(f"s_add_u32 s55, s55, {XL}")
    a("s_waitcnt lgkmcnt(0)")
    a.srd(24, 4, N * 256)
    a.srd(28, 12, 260 * 512)
    a("s_mov_b32 m0, s55")
    a("s_nop 0")
    for z in range(4):
        a(f"buffer_load_dwordx4 v{8+z}, s[24:27], s54 offen offset:{1024*z} lds")
    for z in range(8):
        a("s_mov_b32 m0, s52")
        a("s_add_u32 s52, s52, 1024")
        a("buffer_load_dwordx4 v3, s[28:31], s38 offen lds")
        a("s_add_u32 s38, s38, 4096")
    a.srd(40, 20, N * 512, WS_P)
    a.srd(44, 20, NGEMM * 16, WS_PMAX)
    a("v_lshrrev_b32 v12, 5, v1")
    a("v_and_b32 v13, 31, v1")
    a("v_bfe_u32 v14, v1, 2, 2")
    a("v_lshl_add_u32 v14, v12, 3, v14")
    a("v_lshlrev_b32 v14, 7, v14")
    a("v_and_b32 v15, 3, v1")
    a("v_lshl_add_u32 v14, v15, 3, v14")
    a("v_bfe_u32 v15, v1, 4, 1")
    a("v_lshl_add_u32 v14, v15, 5, v14")
    a("s_lshl_b32 s39, s36, 14")
    a("v_add_u32 v14, s39, v14")
    a("v_and_b32 v15, 15, v1")
    a("v_xor_b32 v15, v15, v12")
    a("v_lshlrev_b32 v15, 4, v15")
    a("v_lshl_add_u32 v15, v13, 8, v15")
    a("s_lshl_b32 s39, s37, 13")
    a(f"s_add_u32 s39, s39, {XL}")
    a("v_add_u32 v16, s39, v15")
    for s in range(1, 8):
        a(f"v_xor_b32 v{16+s}, {32*s}, v16")
    a("v_lshlrev_b32 v24, 4, v12")
    a("v_lshl_add_u32 v24, v13, 9, v24")
    a("s_lshl_b32 s56, s53, 14")
    a("s_lshl_b32 s39, s23, 8")
    a("s_add_u32 s56, s56, s39")
    a("s_lshl_b32 s39, s36, 7")
    a("s_add_u32 s56, s56, s39")
    a(f"s_mov_b32 s57, {hex(f32bits(-LOG2E))}")
    a.stamp(1)
    a("s_waitcnt vmcnt(0)")
    a.stamp(2)
    a("s_barrier")
    a.stamp(3)
    def reads(s):
        a(f"ds_read_b128 {vr(XB+4*s,4)}, v{16+s}")
        for T in range(2):
            for i in range(2):
                a(f"ds_read_b64_tr_b16 {vr(WA+(T*8+s)*4+2*i,2)}, v14 offset:{16*s*128+4*i*128+64*T}")
    reads(0); reads(1)
    for s in range(8):
        if s + 2 < 8:
            reads(s + 2)
            a("s_waitcnt lgkmcnt(10)")
        else:
            a(f"s_waitcnt lgkmcnt({5 if s == 6 else 0})")
        for T in range(2):
            a(mfma(ACC + 16*T, WA + (T*8+s)*4, XB + 4*s, None if s == 0 else ACC + 16*T))
    a.stamp(4)
    a("s_nop 11")
    a("v_mov_b32 v25, 0")
    for T in range(2):
        for r in range(16):
            a(f"v_mul_f32 v{ACC+16*T+r}, s57, v{ACC+16*T+r}")
        for r in range(0, 16, 2):
            a(f"v_max3_f32 v25, |v{ACC+16*T+r}|, |v{ACC+16*T+r+1}|, v25")
        for p in range(8):
            a(f"v_cvt_pk_bf16_f32 v{XB+8*T+p}, v{ACC+16*T+2*p}, v{ACC+16*T+2*p+1}")
        a("s_nop 1")
        for gp in range(2):
            b = XB + 8*T + 4*gp
            a(f"v_permlane32_swap_b32 v{b}, v{b+2}")
            a(f"v_permlane32_swap_b32 v{b+1}, v{b+3}")
        for gp in range(2):
            b = XB + 8*T + 4*gp
            a(f"buffer_store_dwordx4 {vr(b,4)}, v24, s[40:43], s56 offen offset:{64*T+32*gp}")
    dpp_max64(a, 25)
    a("s_lshl_b32 s39, s2, 4")
    a("s_lshl_b32 s36, s3, 2")
    a("s_add_u32 s39, s39, s36")
    a("v_mov_b32 v26, 0")
    a("s_mov_b32 exec_lo, 0")
    a("s_mov_b32 exec_hi, 0x80000000")
    a("buffer_store_dword v25, v26, s[44:47], s39 offen")
```

```python
from common import *

RING = 0
LIST = 0
XW = 8192
IDX = 32768
CNT = IDX + 2048
TOT = CNT + 128
BLK = TOT + 128
BLKSZ = 3072
K2_LDS = BLK + 40960
MAXT = 13
CAPR = MAXT * 32 - 20
PADIDX = N

IDN, QB, S, T0, T1, DD, MM, NN, HF, HB = 8, 16, 32, 64, 80, 96, 112, 120, 128, 136
PF, AO, SO, IX, PA, BA, IA, DEG = 140, 156, 164, 168, 176, 180, 181, 182
VBASE, VCNT, VREC = 183, 184, 185
WBUF = 192
K2_VGPR = 256
TT = (T0, T1)

sTAB, sREC, sP, sX, sWF, sW1, sB1, sB2, sOUT, sMX = 24, 28, 32, 36, 40, 44, 48, 52, 56, 60
sN0, sNN, sT, sLO, sNT, sI, sRING, sPMAX, sEMAX, sFIRST, sSLOW = 64, 65, 66, 67, 68, 69, 70, 72, 73, 74, 75
sM0, sM1 = 76, 78


def dma(a, stage_off, imm=True):
    out = []
    for q in range(4):
        out.append(f"s_add_u32 m0, s{sRING}, {stage_off + 1024*q}")
        out.append(f"s_nop 0")
        out.append(f"buffer_load_dwordx4 {vr(IX+2*q,2)}, s[{sP}:{sP+3}], 0 idxen offen lds")
    return out


def idx_reads(tile_off):
    return [f"ds_read_b32 v{IX+2*q}, v{IA} offset:{tile_off*128 + 32*q}" for q in range(4)]


def pf_reads(stage):
    return [f"ds_read_b128 {vr(PF+4*k,4)}, v{PA+k} offset:{stage*4096}" for k in range(4)]


def ao_reads(tile_off):
    return [f"ds_read_b128 {vr(AO+4*u,4)}, v{BA} offset:{tile_off*BLKSZ + 1024*u}" for u in range(2)]


def so_read(tile_off):
    return f"ds_read_b128 {vr(SO,4)}, v{BA} offset:{tile_off*BLKSZ + 2048}"


def zmf(c):
    t = TT[c]
    return [mfma(t, PF + 8*c, IDN, None), mfma(t, PF + 8*c + 4, IDN + 4, t),
            mfma(t, AO, QB + 8*c, t), mfma(t, AO + 4, QB + 8*c + 4, t)]


def ssmf(c):
    return mfma(S + 16*c, HB, SO, S + 16*c)


def cvts():
    return [f"v_cvt_pk_bf16_f32 v{HB+p}, v{HF+2*p}, v{HF+2*p+1}" for p in range(4)]


def exps(c):
    return [f"v_exp_f32 v{DD+r}, v{TT[c]+r}" for r in range(16)]


def rcps():
    return [f"v_rcp_f32 v{MM+r}, v{MM+r}" for r in range(8)]


def fms(pk):
    if pk:
        return [f"v_pk_mul_f32 {vr(HF+r,2)}, {vr(NN+r,2)}, {vr(MM+r,2)}" for r in range(0, 8, 2)]
    return [f"v_mul_f32 v{HF+r}, v{NN+r}, v{MM+r}" for r in range(8)]


def prun(c, pk):
    t = TT[c]
    P = fms(pk)
    if pk:
        P += [f"v_pk_add_f32 {vr(DD+r,2)}, {vr(DD+r,2)}, 1.0 op_sel_hi:[1,0]" for r in range(0, 16, 2)]
        P += [f"v_pk_mul_f32 {vr(MM+2*g,2)}, {vr(DD+4*g,2)}, {vr(DD+4*g+2,2)}" for g in range(4)]
        P += [f"v_pk_mul_f32 {vr(NN+2*g,2)}, {vr(t+4*g,2)}, {vr(DD+4*g+2,2)}" for g in range(4)]
        P += [f"v_pk_fma_f32 {vr(NN+2*g,2)}, {vr(t+4*g+2,2)}, {vr(DD+4*g,2)}, {vr(NN+2*g,2)}" for g in range(4)]
    else:
        P += [f"v_add_f32 v{DD+r}, 1.0, v{DD+r}" for r in range(16)]
        pr = [(g, i) for g in range(4) for i in range(2)]
        P += [f"v_mul_f32 v{MM+2*g+i}, v{DD+4*g+i}, v{DD+4*g+i+2}" for g, i in pr]
        P += [f"v_mul_f32 v{NN+2*g+i}, v{t+4*g+i}, v{DD+4*g+i+2}" for g, i in pr]
        P += [f"v_fma_f32 v{NN+2*g+i}, v{t+4*g+i+2}, v{DD+4*g+i}, v{NN+2*g+i}" for g, i in pr]
    return P


def weave(base, inserts):
    out = []
    ins = sorted(inserts, key=lambda x: x[0])
    k = 0
    for i, l in enumerate(base):
        while k < len(ins) and ins[k][0] <= i:
            out += ins[k][1]; k += 1
        out.append(l)
    while k < len(ins):
        out += ins[k][1]; k += 1
    return out


def tile_iter(a, par, pk, prio):
    nst = (par + 1) & 1
    base = cvts() + exps(0) + rcps()
    z = zmf(1)
    ins = [(0, [z[0]]), (5, [z[1]]), (9, [z[2]]), (13, [z[3]]),
           (17, ["s_waitcnt lgkmcnt(0)", ssmf(0)]),
           (18, ["s_waitcnt vmcnt(4)"] + pf_reads(nst)[:1]),
           (19, pf_reads(nst)[1:2]), (20, ao_reads(par + 1)[:1]), (21, ao_reads(par + 1)[1:]),
           (22, pf_reads(nst)[2:3]), (23, pf_reads(nst)[3:4])]
    ir = idx_reads(par + 3)
    ins += [(24 + q, [ir[q]]) for q in range(4)]
    if prio: a("s_setprio 1")
    for l in weave(base, ins): a(l)
    if prio: a("s_setprio 0")
    else: a("s_nop 0")
    for l in prun(0, pk): a(l)
    base = cvts() + exps(1) + rcps()
    z = zmf(0)
    d = dma(a, nst * 4096)
    ins = [(0, ["s_waitcnt lgkmcnt(0)", z[0]]), (5, [z[1]]), (9, [z[2]]), (13, [z[3]]),
           (17, [ssmf(1)]), (18, [so_read(par)])]
    for q in range(4):
        ins.append((19 + 2*q, [d[3*q]]))
        ins.append((20 + 2*q, [d[3*q+2]]))
    if prio: a("s_setprio 1")
    for l in weave(base, ins): a(l)
    if prio: a("s_setprio 0")
    else: a("s_nop 0")
    P = prun(1, pk)
    if par == 1:
        P = [f"v_add_u32 v{BA}, {2*BLKSZ}, v{BA}", f"v_add_u32 v{IA}, 256, v{IA}"] + P
    for l in P: a(l)


def gen_k2(pk=True, prio=False, force_slow=False, diag=False):
    a = Asm()
    a.diag = diag
    a(f"s_cmp_ge_u32 s2, {NWIN}")
    a("s_cbranch_scc1 K2_END")
    a.stamp(0)
    a.cyc(88)
    if diag:
        a("s_mov_b32 s89, s2")
    a("s_load_dwordx16 s[4:19], s[0:1], 0")
    a("s_load_dwordx2 s[20:21], s[0:1], 64")
    a("s_load_dwordx2 s[22:23], s[0:1], 80")
    a("v_and_b32 v1, 63, v0")
    a("v_lshrrev_b32 v2, 6, v0")
    a("s_and_b32 s80, s2, 7")
    a("v_readfirstlane_b32 s3, v2")
    a("s_lshr_b32 s2, s2, 3")
    a("s_lshl_b32 s80, s80, 6")
    a("s_add_u32 s2, s2, s80")
    a("s_lshl_b32 s80, s2, 16")
    a(f"s_add_u32 s80, s80, {BM-1}")
    a(f"s_add_u32 s81, s80, 0x10000")
    a(f"s_mul_hi_u32 s{sN0}, s80, {hex(START_MAGIC)}")
    a(f"s_mul_hi_u32 s81, s81, {hex(START_MAGIC)}")
    a(f"s_lshr_b32 s{sN0}, s{sN0}, {START_SH}")
    a(f"s_lshr_b32 s81, s81, {START_SH}")
    a(f"s_min_u32 s81, s81, {N}")
    a(f"s_sub_u32 s{sNN}, s81, s{sN0}")
    a(f"s_lshl_b32 s{sRING}, s3, 13")
    a(f"s_mov_b32 s{sLO}, 0")
    a(f"s_mov_b32 s{sFIRST}, 1")
    a("v_lshlrev_b32 v3, 11, v0")
    a("s_lshl_b32 s80, s2, 2")
    a("v_lshrrev_b32 v5, 4, v1")
    a("v_and_b32 v6, 15, v1")
    a("v_xor_b32 v6, v6, v5")
    a("s_and_b32 s82, s3, 1")
    a("s_lshl_b32 s82, s82, 3")
    a("v_xor_b32 v6, s82, v6")
    a("v_lshlrev_b32 v6, 4, v6")
    a("v_lshl_add_u32 v6, v5, 8, v6")
    a("v_xor_b32 v7, 64, v6")
    a(f"s_lshl_b32 s83, s{sN0}, 8")
    a("s_lshl_b32 s84, s3, 11")
    a("s_add_u32 s83, s83, s84")
    a(f"s_add_u32 m0, s84, {XW}")
    a("v_lshlrev_b32 v4, 4, v1")
    a("s_lshl_b32 s85, s3, 14")
    a("s_waitcnt lgkmcnt(0)")
    a.srd(sTAB, 22, NCHUNK * NWIN * 4, WS_TAB)
    a(f"buffer_load_dword v{VCNT}, v3, s[{sTAB}:{sTAB+3}], s80 offen")
    a.srd(sX, 4, N * 256)
    a(f"buffer_load_dwordx4 v6, s[{sX}:{sX+3}], s83 offen lds")
    a(f"buffer_load_dwordx4 v7, s[{sX}:{sX+3}], s83 offen offset:1024 lds")
    a.srd(sWF, 22, 0x20000, WS_WB)

    def wb_loads(svals):
        for c in range(2):
            for s in svals:
                f = c * 8 + s
                if (f & 3) == 0 or True:
                    pass
                a(f"s_add_u32 s86, s85, {(f >> 2) * 4096}")
                a(f"buffer_load_dwordx4 {vr(WBUF+4*f,4)}, v4, s[{sWF}:{sWF+3}], s86 offen offset:{(f & 3) * 1024}")
    wb_loads(range(0, 4))
    a.srd(sW1, 12, 260 * 512)
    a.srd(sB1, 14, 512)
    a("v_and_b32 v2, 31, v1")
    a("v_lshlrev_b32 v3, 1, v2")
    a("s_lshl_b32 s86, s3, 7")
    a("s_add_u32 s87, s86, 0x20000")
    WE = DD
    for c in range(2):
        for k in range(4):
            a(f"buffer_load_ushort v{WE+4*c+k}, v3, s[{sW1}:{sW1+3}], s87 offen offset:{512*k+64*c}")
    for c in range(2):
        a(f"buffer_load_ushort v{WE+8+c}, v3, s[{sB1}:{sB1+3}], s86 offen offset:{64*c}")
    MX = MM
    a.srd(sMX, 22, NGEMM * 16, WS_PMAX)
    a("s_movk_i32 s86, 0x1000")
    for k in range(5):
        so = "0" if k < 4 else "s86"
        a(f"buffer_load_dwordx4 {vr(MX+4*k,4)}, v4, s[{sMX}:{sMX+3}], {so} offen offset:{(k & 3) * 1024}")
    a.srd(sMX, 22, NCHUNK * 4, WS_EMAX)
    a(f"buffer_load_dwordx4 {vr(MX+20,4)}, v4, s[{sMX}:{sMX+3}], 0 offen")
    NY = 8 + 10 + 6
    a.srd(sREC, 22, E * 16, WS_REC)
    a.srd(sP, 22, N, WS_P, stride=512)
    a.srd(sB2, 18, 256)
    a.srd(sOUT, 20, N * 256)
    a(f"v_mov_b32 v{DEG}, 0")
    a("v_lshrrev_b32 v5, 5, v1")
    a("v_bfe_u32 v6, v1, 1, 3")
    a("v_xor_b32 v6, v6, v5")
    a("v_lshlrev_b32 v6, 4, v6")
    a("v_lshl_add_u32 v6, v2, 7, v6")
    a(f"v_add_u32 v{PA}, s{sRING}, v6")
    for k in range(1, 4):
        a(f"v_xor_b32 v{PA+k}, {32*k}, v{PA}")
    a("v_and_b32 v6, 7, v1")
    a("v_lshrrev_b32 v7, 4, v1")
    a("v_xor_b32 v6, v6, v7")
    a("v_lshlrev_b32 v6, 4, v6")
    a("s_lshl_b32 s86, s3, 7")
    a(f"v_add_u32 v{IX+1}, s86, v6")
    a(f"v_xor_b32 v{IX+3}, 64, v{IX+1}")
    a(f"v_mov_b32 v{IX+5}, v{IX+1}")
    a(f"v_mov_b32 v{IX+7}, v{IX+3}")

    a.label("K2_BATCH")
    Z = 186
    for k in range(4):
        a(f"v_mov_b32 v{Z+k}, 0")
    a(f"v_mov_b32 v{Z+4}, {PADIDX}")
    a(f"v_mov_b32 v{Z+5}, {PADIDX}")
    a("v_lshlrev_b32 v6, 4, v0")
    a(f"v_add_u32 v6, {BLK}, v6")
    a("v_lshlrev_b32 v7, 3, v0")
    for k in range(10):
        a(f"ds_write_b128 v6, {vr(Z,4)} offset:{4096*k}")
    a(f"ds_write_b64 v7, {vr(Z+4,2)} offset:{IDX}")
    a("v_lshlrev_b32 v6, 2, v2")
    a(f"ds_write_b32 v6, v{Z} offset:{CNT}")
    a(f"s_cmp_eq_u32 s{sFIRST}, 0")
    a("s_cbranch_scc1 K2_NF1")
    a(f"ds_write_b32 v{Z}, v{Z} offset:{TOT}")
    a.label("K2_NF1")
    a(f"v_lshlrev_b32 v{BA}, 4, v1")
    a(f"v_add_u32 v{BA}, {BLK}, v{BA}")
    a(f"v_lshrrev_b32 v{IA}, 3, v1")
    a(f"v_lshlrev_b32 v{IA}, 2, v{IA}")
    a(f"v_add_u32 v{IA}, {IDX}, v{IA}")
    a("s_waitcnt lgkmcnt(0)")
    a("s_barrier")
    a.stamp(1)
    a(f"s_cmp_eq_u32 s{sFIRST}, 0")
    a("s_cbranch_scc1 K2_NF2")
    a(f"s_waitcnt vmcnt({NY + 2})")
    a(f"v_and_b32 v6, 0xffff, v{VCNT}")
    a(f"v_lshrrev_b32 v{VCNT}, 16, v{VCNT}")
    a(f"s_movk_i32 s86, {CH}")
    a(f"ds_add_rtn_u32 v{VBASE}, v{Z}, v{VCNT} offset:{TOT}")
    a(f"v_mad_u32_u24 v{VREC}, v0, s86, v6")
    a("s_waitcnt lgkmcnt(0)")
    a.label("K2_NF2")
    a(f"s_add_u32 s86, s{sLO}, {CAPR}")
    a(f"v_max_u32 v6, s{sLO}, v{VBASE}")
    a(f"v_add_u32 v7, v{VBASE}, v{VCNT}")
    a(f"v_min_u32 v7, s86, v7")
    a(f"v_sub_u32 v{Z+4}, v6, v{VBASE}")
    a(f"v_add_u32 v{Z+4}, v{Z+4}, v{VREC}")
    a(f"v_sub_i32 v7, v7, v6")
    a(f"v_subrev_u32 v6, s{sLO}, v6")
    a("v_lshlrev_b32 v6, 2, v6")
    a.label("K2_EXP")
    for j in range(8):
        a(f"v_cmpx_lt_i32 vcc, {j}, v7")
        a(f"ds_write_b32 v6, v{Z+4} offset:{LIST + 4*j}")
        a(f"v_add_u32 v{Z+4}, 1, v{Z+4}")
    a("v_cmpx_lt_i32 vcc, 8, v7")
    a("v_add_u32 v6, 32, v6")
    a("v_subrev_u32 v7, 8, v7")
    a("s_nop 4")
    a("s_cbranch_execnz K2_EXP")
    a("s_mov_b64 exec, -1")
    a(f"s_waitcnt vmcnt({NY}) lgkmcnt(0)")
    a("s_barrier")
    a.stamp(2)
    a("v_lshlrev_b32 v6, 2, v0")
    a(f"ds_read_b32 v7, v{Z} offset:{TOT}")
    a(f"ds_read_b32 v{Z+4}, v6 offset:{LIST}")
    a(f"ds_read_b32 v{Z+5}, v6 offset:{LIST+1024}")
    a("s_waitcnt lgkmcnt(2)")
    a(f"v_readfirstlane_b32 s{sT}, v7")
    a("s_nop 1")
    a(f"s_sub_u32 s86, s{sT}, s{sLO}")
    a(f"s_min_u32 s86, s86, {CAPR}")
    a("v_add_u32 v7, 256, v0")
    a(f"v_cmp_gt_u32 s[{sM0}:{sM0+1}], s86, v0")
    a(f"v_cmp_gt_u32 s[{sM1}:{sM1+1}], s86, v7")
    a("s_waitcnt lgkmcnt(0)")
    a(f"v_lshlrev_b32 v{Z+4}, 4, v{Z+4}")
    a(f"v_lshlrev_b32 v{Z+5}, 4, v{Z+5}")
    R = (PF, PF + 4)
    for r in range(2):
        a(f"buffer_load_dwordx4 {vr(R[r],4)}, v{Z+4+r}, s[{sREC}:{sREC+3}], 0 offen")
    a(f"s_cmp_eq_u32 s{sFIRST}, 0")
    a("s_cbranch_scc1 K2_NF3")
    wb_loads(range(4, 8))
    a("v_and_b32 v6, 15, v1")
    a("v_xor_b32 v6, v6, v5")
    a("v_lshlrev_b32 v6, 4, v6")
    a("v_lshl_add_u32 v6, v2, 8, v6")
    for s in range(8):
        a(f"v_xor_b32 v7, {32*s}, v6")
        a(f"ds_read_b128 {vr(T0+4*s,4)}, v7 offset:{XW}")
    a("v_lshlrev_b32 v6, 3, v5")
    a("v_sub_u32 v6, v2, v6")
    a("v_and_b32 v7, 1, v6")
    a("v_lshlrev_b32 v7, 4, v7")
    a(f"v_mov_b32 v{Z+4}, 0x3f80")
    a(f"v_lshlrev_b32 v7, v7, v{Z+4}")
    a("v_ashrrev_i32 v6, 1, v6")
    for i in range(2):
        for q in range(4):
            a(f"v_cmp_eq_u32 vcc, {8*i+q}, v6")
            a("s_nop 1")
            a(f"v_cndmask_b32 v{IDN+4*i+q}, 0, v7, vcc")
    a("s_waitcnt vmcnt(10)")
    for k in range(1, 10):
        a(f"v_max3_u32 v{MX}, v{MX}, v{MX+2*k-1}, v{MX+2*k}")
    a(f"v_max_u32 v{MX}, v{MX}, v{MX+19}")
    a(f"v_max3_u32 v{MX+20}, v{MX+20}, v{MX+21}, v{MX+22}")
    a(f"v_max_u32 v{MX+20}, v{MX+20}, v{MX+23}")
    dpp_max64(a, MX)
    dpp_max64(a, MX + 20)
    a("s_nop 0")
    a(f"v_readlane_b32 s{sPMAX}, v{MX}, 63")
    a(f"v_readlane_b32 s{sEMAX}, v{MX+20}, 63")
    a(f"s_mov_b32 s86, {hex(f32bits(-LOG2E))}")
    for k in range(10):
        a(f"v_lshlrev_b32 v{WE+k}, 16, v{WE+k}")
    for k in range(8):
        a(f"v_mul_f32 v{WE+k}, s86, v{WE+k}")
    for c in range(2):
        w = WE + 4*c
        a(f"v_add_f32 v{MM+8+c}, |v{w}|, |v{w+1}|")
        a(f"v_add_f32 v{MM+8+c}, |v{w+2}|, v{MM+8+c}")
        a(f"v_add_f32 v{MM+8+c}, |v{w+3}|, v{MM+8+c}")
        for p in range(2):
            a(f"v_cvt_pk_bf16_f32 v{MM+2*c+p}, v{w+2*p}, v{w+2*p+1}")
        for p in range(2):
            a(f"v_lshlrev_b32 v6, 16, v{MM+2*c+p}")
            a(f"v_and_b32 v7, 0xffff0000, v{MM+2*c+p}")
            a(f"v_sub_f32 v6, v{w+2*p}, v6")
            a(f"v_sub_f32 v7, v{w+2*p+1}, v7")
            a(f"v_cvt_pk_bf16_f32 v{MM+4+2*c+p}, v6, v7")
    for c in range(2):
        for r in range(16):
            a(f"v_mov_b32 v{S+16*c+r}, v{WE+8+c}")
    a("s_waitcnt lgkmcnt(0)")
    for s in range(4):
        for c in range(2):
            a(mfma(S + 16*c, T0 + 4*s, WBUF + 4*(8*c+s), S + 16*c))
    a("s_waitcnt vmcnt(8)")
    a("s_branch K2_J3")
    a.label("K2_NF3")
    a("s_waitcnt vmcnt(0)")
    a.label("K2_J3")
    a.stamp(3)
    AC = (PF + 8, PF + 9); RK = (PF + 10, PF + 11)
    a(f"v_mov_b32 v{Z+4}, 1")
    for r in range(2):
        a(f"v_lshrrev_b32 v{AC[r]}, 14, v{R[r]+2}")
        a(f"v_subrev_u32 v{AC[r]}, s{sN0}, v{AC[r]}")
        a(f"v_lshlrev_b32 v{AC[r]}, 2, v{AC[r]}")
        a(f"s_mov_b64 exec, s[{(sM0, sM1)[r]}:{(sM0, sM1)[r]+1}]")
        a(f"ds_add_rtn_u32 v{RK[r]}, v{AC[r]}, v{Z+4} offset:{CNT}")
        a("s_mov_b64 exec, -1")
    OH = PF + 12
    a(f"v_lshrrev_b32 v{OH}, 4, v2")
    a(f"v_lshlrev_b32 v{OH}, 10, v{OH}")
    a("v_bfe_u32 v6, v2, 2, 1")
    a(f"v_lshl_add_u32 v{OH}, v6, 9, v{OH}")
    a("v_and_b32 v6, 3, v2")
    a(f"v_lshl_add_u32 v{OH}, v6, 1, v{OH}")
    a("v_bfe_u32 v6, v2, 3, 1")
    a(f"v_lshl_add_u32 v{OH}, v6, 3, v{OH}")
    a("v_lshlrev_b32 v6, 2, v2")
    a("s_waitcnt lgkmcnt(0)")
    a("s_barrier")
    a(f"ds_read_b32 v7, v6 offset:{CNT}")
    a("s_waitcnt lgkmcnt(0)")
    a("v_cvt_f32_u32 v6, v7")
    a("v_add_u32 v7, 1, v7")
    a("v_and_b32 v7, -2, v7")
    a(f"v_add_f32 v{DEG}, v{DEG}, v6")
    a("v_mov_b32 v6, v7")
    dpp_scan32(a, 7)
    a("v_sub_u32 v6, v7, v6")
    a(f"v_readlane_b32 s{sNT}, v7, 31")
    a(f"v_lshl_or_b32 v6, v{OH}, 16, v6")
    BP = (PF + 13, PF + 14)
    for r in range(2):
        a(f"ds_bpermute_b32 v{BP[r]}, v{AC[r]}, v6")
    a(f"s_add_u32 s{sNT}, s{sNT}, 31")
    a(f"s_lshr_b32 s{sNT}, s{sNT}, 5")
    a(f"s_movk_i32 s86, {BLKSZ}")
    a(f"v_mov_b32 v{Z+4}, 0x3f80")
    t = [AO + k for k in range(8)]
    for r in range(2):
        if r == 0:
            a("s_waitcnt lgkmcnt(0)")
        p, oh = t[0], t[1]
        a(f"v_and_b32 v{p}, 0xffff, v{BP[r]}")
        a(f"v_lshrrev_b32 v{oh}, 16, v{BP[r]}")
        a(f"v_add_u32 v{p}, v{p}, v{RK[r]}")
        a(f"v_and_b32 v{t[2]}, 1, v{p}")
        a(f"v_bfe_u32 v{t[3]}, v{p}, 1, 1")
        a(f"v_and_b32 v{t[4]}, -4, v{p}")
        a(f"v_lshl_or_b32 v{t[2]}, v{t[2]}, 1, v{t[4]}")
        a(f"v_or_b32 v{t[2]}, v{t[2]}, v{t[3]}")
        a(f"v_lshrrev_b32 v{t[3]}, 5, v{p}")
        a(f"v_mul_u32_u24 v{t[3]}, s86, v{t[3]}")
        a(f"v_and_b32 v{t[4]}, 31, v{t[2]}")
        a(f"v_lshl_add_u32 v{t[4]}, v{t[4]}, 4, v{t[3]}")
        a(f"v_lshlrev_b32 v{t[2]}, 2, v{t[2]}")
        a(f"v_and_b32 v{R[r]+2}, 0x3fff, v{R[r]+2}")
        a(f"v_add_u32 v{oh}, v{oh}, v{t[4]}")
        a(f"v_bfe_u32 v{t[5]}, v{p}, 3, 2")
        a(f"v_and_b32 v{t[6]}, 2, v{p}")
        a(f"v_lshl_add_u32 v{t[5]}, v{t[5]}, 2, v{t[6]}")
        a(f"v_bfe_u32 v{t[6]}, v{p}, 2, 1")
        a(f"v_lshl_add_u32 v{t[5]}, v{t[6]}, 9, v{t[5]}")
        a(f"v_lshl_add_u32 v{t[5]}, v{AC[r]}, 2, v{t[5]}")
        a(f"v_add_u32 v{t[5]}, v{t[5]}, v{t[3]}")
        a(f"s_mov_b64 exec, s[{(sM0, sM1)[r]}:{(sM0, sM1)[r]+1}]")
        a(f"ds_write_b32 v{t[2]}, v{R[r]+2} offset:{IDX}")
        a(f"ds_write_b16 v{oh}, v{Z+4} offset:{BLK}")
        a(f"ds_write_b64 v{t[4]}, {vr(R[r],2)} offset:{BLK+1536}")
        a(f"ds_write_b64 v{t[4]}, {vr(R[r],2)} offset:{BLK+1032}")
        a(f"ds_write_b16 v{t[5]}, v{Z+4} offset:{BLK+2048}")
        a("s_mov_b64 exec, -1")
    a("s_waitcnt lgkmcnt(0)")
    a("s_barrier")
    a.stamp(4)
    for tl in range(2):
        for l in idx_reads(tl): a(l)
        a("s_waitcnt lgkmcnt(0)")
        for l in dma(a, tl * 4096): a(l)
    a(f"s_cmp_eq_u32 s{sFIRST}, 0")
    a("s_cbranch_scc1 K2_NF4")
    a("s_waitcnt vmcnt(8)")
    for s in range(4, 8):
        for c in range(2):
            a(mfma(S + 16*c, T0 + 4*s, WBUF + 4*(8*c+s), S + 16*c))
    a("s_lshl_b32 s85, s3, 14")
    a("s_add_u32 s85, s85, 0x10000")
    a(f"s_mov_b32 s87, {hex(f32bits(-LOG2E))}")
    a("s_nop 7")
    for f in range(16):
        a(f"s_add_u32 s86, s85, {(f >> 2) * 4096}")
        a(f"buffer_load_dwordx4 {vr(WBUF+4*f,4)}, v4, s[{sWF}:{sWF+3}], s86 offen offset:{(f & 3) * 1024}")
    a(f"s_mov_b32 s{sSLOW}, {1 if force_slow else 0}")
    for c in range(2):
        q = S + 16*c
        for r in range(16):
            a(f"v_mul_f32 v{q+r}, s87, v{q+r}")
        a("v_mov_b32 v6, 0")
        for r in range(0, 16, 2):
            a(f"v_max3_f32 v6, |v{q+r}|, |v{q+r+1}|, v6")
        for p in range(8):
            a(f"v_cvt_pk_bf16_f32 v{QB+8*c+p}, v{q+2*p}, v{q+2*p+1}")
        a(f"v_add_f32 v6, s{sPMAX}, v6")
        a(f"v_fma_f32 v6, s{sEMAX}, v{MM+8+c}, v6")
        a("v_cmp_nge_f32 vcc, 0x42700000, v6")
        a("s_mov_b32 exec_lo, 0")
        for p in range(2):
            a(f"v_mov_b32 v{QB+8*c+4+p}, v{MM+2*c+p}")
            a(f"v_mov_b32 v{QB+8*c+6+p}, 0")
        a("s_mov_b32 exec_lo, -1")
        a("s_mov_b32 exec_hi, 0")
        for p in range(2):
            a(f"v_mov_b32 v{QB+8*c+6+p}, v{MM+4+2*c+p}")
        a("s_mov_b32 exec_hi, -1")
        a("s_cmp_lg_u64 vcc, 0")
        a(f"s_cselect_b32 s86, 1, 0")
        a(f"s_or_b32 s{sSLOW}, s{sSLOW}, s86")
    for r in range(32):
        a(f"v_mov_b32 v{S+r}, 0")
    a(f"s_mov_b32 s{sFIRST}, 0")
    a("s_waitcnt vmcnt(20)")
    a("s_branch K2_J4")
    a.label("K2_NF4")
    a("s_waitcnt vmcnt(4)")
    a.label("K2_J4")
    a.stamp(5)
    a(f"s_cmp_eq_u32 s{sNT}, 0")
    a("s_cbranch_scc1 K2_BDONE")
    a(f"s_cmp_lg_u32 s{sSLOW}, 0")
    a("s_cbranch_scc1 K2_SLOW")
    for l in pf_reads(0) + ao_reads(0) + idx_reads(2): a(l)
    for r in range(8):
        a(f"v_mov_b32 v{MM+r}, 1.0")
        a(f"v_mov_b32 v{NN+r}, 0")
        a(f"v_mov_b32 v{HF+r}, 0")
    for r in range(4):
        a(f"v_mov_b32 v{SO+r}, 0")
    a(f"s_mov_b32 s{sI}, s{sNT}")
    a("s_waitcnt lgkmcnt(0)")
    for l in zmf(0): a(l)
    for l in dma(a, 0): a(l)
    a("s_nop 7")
    a.raw(".p2align 6")
    a.label("K2_LOOP")
    tile_iter(a, 0, pk, prio)
    a(f"s_sub_u32 s{sI}, s{sI}, 1")
    a(f"s_cmp_eq_u32 s{sI}, 0")
    a("s_cbranch_scc1 K2_DRAIN")
    tile_iter(a, 1, pk, prio)
    a(f"s_sub_u32 s{sI}, s{sI}, 1")
    a(f"s_cmp_lg_u32 s{sI}, 0")
    a("s_cbranch_scc1 K2_LOOP")
    a.label("K2_DRAIN")
    for l in cvts() + rcps()[:2]: a(l)
    a("s_waitcnt lgkmcnt(0)")
    a(ssmf(0))
    for l in rcps()[2:]: a(l)
    a("s_nop 0")
    for l in fms(False) + cvts(): a(l)
    a("s_nop 1")
    a(ssmf(1))
    a("s_branch K2_BDONE")
    a.label("K2_SLOW")
    a(f"s_mov_b32 s{sI}, s{sNT}")
    a(f"s_mov_b32 s87, s{sRING}")
    a.label("K2_SLOOP")
    a("s_waitcnt vmcnt(0)")
    for l in pf_reads(0) + ao_reads(0) + [so_read(0)] + idx_reads(2): a(l)
    a("s_waitcnt lgkmcnt(0)")
    for l in dma(a, 0): a(l)
    for c in range(2):
        for l in zmf(c): a(l)
        a("s_nop 15")
        for l in exps(c): a(l)
        for r in range(16): a(f"v_add_f32 v{DD+r}, 1.0, v{DD+r}")
        for r in range(16): a(f"v_rcp_f32 v{DD+r}, v{DD+r}")
        for g in range(4):
            for i in range(2):
                a(f"v_mul_f32 v{HF+2*g+i}, v{TT[c]+4*g+i}, v{DD+4*g+i}")
        for g in range(4):
            for i in range(2):
                a(f"v_fma_f32 v{HF+2*g+i}, v{TT[c]+4*g+i+2}, v{DD+4*g+i+2}, v{HF+2*g+i}")
        for l in cvts(): a(l)
        a("s_nop 1")
        a(ssmf(c))
    for k in range(4):
        a(f"v_xor_b32 v{PA+k}, 0x1000, v{PA+k}")
    a(f"s_xor_b32 s{sRING}, s{sRING}, 0x1000")
    a(f"v_add_u32 v{BA}, {BLKSZ}, v{BA}")
    a(f"v_add_u32 v{IA}, 128, v{IA}")
    a(f"s_sub_u32 s{sI}, s{sI}, 1")
    a(f"s_cmp_lg_u32 s{sI}, 0")
    a("s_cbranch_scc1 K2_SLOOP")
    a(f"s_xor_b32 s86, s87, s{sRING}")
    a(f"s_mov_b32 s{sRING}, s87")
    for k in range(4):
        a(f"v_xor_b32 v{PA+k}, s86, v{PA+k}")
    a.label("K2_BDONE")
    a(f"s_add_u32 s{sLO}, s{sLO}, {CAPR}")
    a(f"s_cmp_ge_u32 s{sLO}, s{sT}")
    a("s_cbranch_scc1 K2_EPI")
    a("s_waitcnt vmcnt(0) lgkmcnt(0)")
    a("s_barrier")
    a("s_branch K2_BATCH")
    a.label("K2_EPI")
    a.stamp(6)
    B2R = PF
    a("v_lshlrev_b32 v6, 3, v5")
    a("s_lshl_b32 s86, s3, 6")
    for g in range(4):
        a(f"buffer_load_dwordx2 {vr(B2R+2*g,2)}, v6, s[{sB2}:{sB2+3}], s86 offen offset:{16*g}")
    a(f"s_mov_b32 s87, {hex(f32bits(-LN2))}")
    a(f"v_add_u32 v7, s{sRING}, v4")
    a("s_nop 7")
    a("s_nop 3")
    for c in range(2):
        for r in range(16):
            a(f"v_mul_f32 v{S+16*c+r}, s87, v{S+16*c+r}")
        for p in range(8):
            a(f"v_cvt_pk_bf16_f32 v{DD+8*c+p}, v{S+16*c+2*p}, v{S+16*c+2*p+1}")
    a("s_waitcnt vmcnt(0)")
    for k in range(4):
        a(f"ds_write_b128 v7, {vr(DD+4*k,4)} offset:{1024*k}")
    ACC = T0
    for g in range(4):
        for p in range(2):
            a(f"v_lshlrev_b32 v{ACC+4*g+2*p}, 16, v{B2R+2*g+p}")
            a(f"v_and_b32 v{ACC+4*g+2*p+1}, 0xffff0000, v{B2R+2*g+p}")
    for r in range(16):
        a(f"v_mul_f32 v{ACC+r}, v{ACC+r}, v{DEG}")
    a("s_waitcnt lgkmcnt(0)")
    a("s_barrier")
    a.stamp(7)
    XB = S
    def xr(f):
        return f"ds_read_b128 {vr(XB+4*(f&7),4)}, v4 offset:{(f>>2)*8192 + (f&3)*1024}"
    for f in range(8): a(xr(f))
    for f in range(16):
        a(f"s_waitcnt lgkmcnt({min(7, 15-f) if f >= 8 else 7})")
        a(mfma(ACC, WBUF + 4*f, XB + 4*(f & 7), ACC))
        if f + 8 < 16:
            a(xr(f + 8))
    a("v_lshlrev_b32 v6, 4, v5")
    a("v_lshl_add_u32 v6, v2, 8, v6")
    a(f"s_lshl_b32 s86, s{sN0}, 8")
    a("s_lshl_b32 s87, s3, 6")
    a("s_add_u32 s86, s86, s87")
    a(f"v_cmp_gt_u32 vcc, s{sNN}, v2")
    a("s_nop 7")
    for p in range(8):
        a(f"v_cvt_pk_bf16_f32 v{DD+p}, v{ACC+2*p}, v{ACC+2*p+1}")
    a("s_nop 1")
    for gp in range(2):
        b = DD + 4*gp
        a(f"v_permlane32_swap_b32 v{b}, v{b+2}")
        a(f"v_permlane32_swap_b32 v{b+1}, v{b+3}")
    a("s_mov_b64 exec, vcc")
    for gp in range(2):
        a(f"buffer_store_dwordx4 {vr(DD+4*gp,4)}, v6, s[{sOUT}:{sOUT+3}], s86 offen offset:{32*gp}")
    if diag:
        a.stamp(8)
        a("s_waitcnt vmcnt(0)")
        a.stamp(9)
        a.stamp_flush(22, 1, 89, 3)
    a.label("K2_END")
    a("s_endpgm")
    return a.text()
```

```python
import sys
from common import *
from k1 import gen_k1, K1_LDS, K1_VGPR
from k2 import gen_k2, K2_LDS, K2_VGPR

HEADER = open("gather_scatter__edge_featured_mpnn_mpnn__graph.s.ref").read().split("; Override launch")[0]

def build(pk=True, prio=False, force_slow=False, order=("gemm","sort","prep"), extra=0, diag=False, dup1=1, dup2=1, pre=0):
    k1, n1 = gen_k1(order, diag)
    k2 = gen_k2(pk, prio, force_slow, diag)
    s = HEADER
    for i in range(pre):
        s += f"; @launch kernel=mpnn_nop_kernel grid=(256,1,1) block=(256,1,1) lds=0\n"
    for i in range(dup1):
        s += f"; @launch kernel=mpnn_pre_kernel grid=({n1},1,1) block=(256,1,1) lds={K1_LDS}\n"
    for i in range(extra):
        s += f"; @launch kernel=mpnn_nop_kernel grid=(256,1,1) block=(256,1,1) lds=0\n"
    for i in range(dup2):
        s += f"; @launch kernel=mpnn_main_kernel grid=({NWIN},1,1) block=(256,1,1) lds={K2_LDS}\n"
    s += '.amdgcn_target "amdgcn-amd-amdhsa--gfx950"\n'
    s += entry("mpnn_pre_kernel") + k1
    s += entry("mpnn_main_kernel") + k2
    if extra or pre:
        s += entry("mpnn_nop_kernel") + "    s_endpgm\n"
    s += descriptor("mpnn_pre_kernel", K1_VGPR) + descriptor("mpnn_main_kernel", K2_VGPR)
    if extra or pre:
        s += descriptor("mpnn_nop_kernel", 8)
    return s

if __name__ == "__main__":
    out = sys.argv[1] if len(sys.argv) > 1 else "gather_scatter__edge_featured_mpnn_mpnn__graph.s"
    kw = eval("dict(" + (sys.argv[2] if len(sys.argv) > 2 else "") + ")")
    open(out, "w").write(build(**kw))
```

```python
N, E, D, H = 10000, 160000, 128, 256
NWIN = 512
BM = 3355
START_MAGIC, START_SH = 0x1388a917, 8
NCHUNK = 125
CH = E // NCHUNK
LOG2E = 1.4426950408889634
LN2 = 0.6931471805599453

WS_REC = 0x000000
WS_TAB = 0x280000
WS_P = 0x300000
WS_WB = 0x800000
WS_W2F = 0x810000
WS_CST = WS_W2F + 72 * 1024
WS_PMAX = 0x830000
WS_EMAX = WS_PMAX + 5120
NFRAG = 64 + 72 + 8
WS_STAMP = 0x900000
NGEMM = 314
NGEMMW = 320

import struct
def f32bits(x):
    return struct.unpack("<I", struct.pack("<f", x))[0]


class Asm:
    def __init__(s):
        s.lines = []

    def __call__(s, txt=""):
        for l in txt.split("\n"):
            l = l.strip()
            if l:
                s.lines.append("    " + l)

    def label(s, name):
        s.lines.append(name + ":")

    def raw(s, txt):
        s.lines.append(txt)

    def text(s):
        return "\n".join(s.lines) + "\n"

    diag = False

    def stamp(s, k):
        if not s.diag:
            return
        s("s_memrealtime s[90:91]")
        s("s_waitcnt lgkmcnt(0)")
        s(f"s_mov_b32 s{92+k}, s90")

    def cyc(s, reg):
        if not s.diag:
            return
        s("s_memtime s[90:91]")
        s("s_waitcnt lgkmcnt(0)")
        s(f"s_mov_b32 s{reg}, s90")

    def stamp_flush(s, wsptr, kern, wg, wave, n=10):
        if not s.diag:
            return
        s("s_mov_b64 exec, 1")
        s.srd(84, wsptr, 0x80000, WS_STAMP + kern * 0x80000)
        s(f"s_lshl_b32 s90, s{wg}, 2")
        s(f"s_add_u32 s90, s90, s{wave}")
        s("s_lshl_b32 s90, s90, 6")
        s("s_mov_b32 s82, s90")
        s("v_mov_b32 v0, 0")
        for k in range(n):
            s(f"v_mov_b32 v1, s{92+k}")
            s(f"buffer_store_dword v1, v0, s[84:87], s90 offen offset:{4*k}")
        s.cyc(83)
        s("s_sub_u32 s83, s83, s88")
        s("v_mov_b32 v1, s83")
        s(f"buffer_store_dword v1, v0, s[84:87], s90 offen offset:40".replace("s90", "s82"))
        s("s_waitcnt vmcnt(0)")

    def srd(s, d, p, nrec, off=0, stride=0):
        if off:
            s(f"s_add_u32 s{d}, s{p}, {hex(off)}")
            s(f"s_addc_u32 s{d+1}, s{p+1}, 0")
        else:
            s(f"s_mov_b32 s{d}, s{p}")
            s(f"s_mov_b32 s{d+1}, s{p+1}")
        if stride:
            s(f"s_or_b32 s{d+1}, s{d+1}, {hex(stride << 16)}")
        s(f"s_mov_b32 s{d+2}, {hex(nrec)}")
        s(f"s_mov_b32 s{d+3}, 0x00020000")


def vr(a, n=1):
    return f"v{a}" if n == 1 else f"v[{a}:{a+n-1}]"


def sr(a, n=1):
    return f"s{a}" if n == 1 else f"s[{a}:{a+n-1}]"


def mfma(d, a, b, c):
    cs = "0" if c is None else vr(c, 16)
    return f"v_mfma_f32_32x32x16_bf16 {vr(d,16)}, {vr(a,4)}, {vr(b,4)}, {cs}"


def mfma16(d, a, b, c):
    cs = "0" if c is None else vr(c, 4)
    return f"v_mfma_f32_16x16x32_bf16 {vr(d,4)}, {vr(a,4)}, {vr(b,4)}, {cs}"


def dpp_scan32(a, v):
    for sh in (1, 2, 4, 8):
        a("s_nop 1")
        a(f"v_add_u32_dpp v{v}, v{v}, v{v} row_shr:{sh} row_mask:0xf bank_mask:0xf bound_ctrl:0")
    a("s_nop 1")
    a(f"v_add_u32_dpp v{v}, v{v}, v{v} row_bcast:15 row_mask:0xa bank_mask:0xf")


def dpp_scan64(a, v):
    dpp_scan32(a, v)
    a("s_nop 1")
    a(f"v_add_u32_dpp v{v}, v{v}, v{v} row_bcast:31 row_mask:0xc bank_mask:0xf")


def dpp_max64(a, v):
    for sh in (1, 2, 4, 8):
        a("s_nop 1")
        a(f"v_max_u32_dpp v{v}, v{v}, v{v} row_shr:{sh} row_mask:0xf bank_mask:0xf bound_ctrl:0")
    a("s_nop 1")
    a(f"v_max_u32_dpp v{v}, v{v}, v{v} row_bcast:15 row_mask:0xa bank_mask:0xf")
    a("s_nop 1")
    a(f"v_max_u32_dpp v{v}, v{v}, v{v} row_bcast:31 row_mask:0xc bank_mask:0xf")


def descriptor(name, vgpr, sgpr=102):
    acc = (vgpr + 3) // 4 * 4
    return f""".section .rodata,"a"
.p2align 6
.amdhsa_kernel {name}
  .amdhsa_next_free_vgpr {vgpr}
  .amdhsa_next_free_sgpr {sgpr}
  .amdhsa_accum_offset {acc}
  .amdhsa_group_segment_fixed_size 0
  .amdhsa_kernarg_size 88
  .amdhsa_user_sgpr_count 2
  .amdhsa_user_sgpr_kernarg_segment_ptr 1
  .amdhsa_system_sgpr_workgroup_id_x 1
.end_amdhsa_kernel
"""


def entry(name):
    return f""".text
.globl {name}
.p2align 8
.type {name},@function
{name}:
"""
```

```python
from common import *

K1_LDS = 49152
K1_VGPR = 128
K1_BLOCK = 320


def gen_k1(order=("sort", "gemm"), diag=False):
    a = Asm()
    a.diag = diag
    counts = {"gemm": NGEMM, "sort": NCHUNK}
    total = sum(counts.values())
    a(f"s_cmp_ge_u32 s2, {total}")
    a("s_cbranch_scc1 K1_END")
    a.stamp(0)
    a.cyc(88)
    if diag:
        a("s_mov_b32 s89, s2")
        for k in range(1, 10): a(f"s_mov_b32 s{92+k}, 0")
    a("s_load_dwordx16 s[4:19], s[0:1], 0")
    a("s_load_dwordx2 s[20:21], s[0:1], 80")
    a("v_lshrrev_b32 v2, 6, v0")
    a("v_and_b32 v1, 63, v0")
    a("v_readfirstlane_b32 s3, v2")
    a(f"s_cmp_lt_u32 s2, {counts[order[0]]}")
    a(f"s_cbranch_scc1 K1_{order[0]}")
    a(f"s_sub_u32 s2, s2, {counts[order[0]]}")
    gens = {"gemm": k1_gemm, "sort": k1_sort}

    def fin():
        if diag:
            a.stamp(8)
            a("s_waitcnt vmcnt(0)")
            a.stamp(9)
            a("s_cmp_eq_u32 s3, 4")
            a("s_cbranch_scc1 K1_END")
            a.stamp_flush(20, 0, 89, 3)
        a("s_endpgm")
    for r in (order[1], order[0]):
        a.label(f"K1_{r}")
        gens[r](a)
        fin()
    a.label("K1_prep")
    k1_prep(a)
    a.label("K1_END")
    a("s_endpgm")
    return a.text(), total


def k1_sort(a):
    HIST, STRT, EMX, RB = 0, 2048, 4096, 4352
    DST, SRC, EV, BK, RK = 8, 12, 16, 24, 28
    a("v_lshlrev_b32 v3, 4, v0")
    a("v_lshlrev_b32 v4, 5, v0")
    a("v_lshlrev_b32 v5, 3, v0")
    a("v_mov_b32 v6, 0")
    a("v_mov_b32 v7, 0")
    a(f"s_mul_i32 s22, s2, {CH*4}")
    a(f"s_mul_i32 s23, s2, {CH*8}")
    a(f"ds_write_b64 v5, v[6:7] offset:{HIST}")
    a(f"ds_write_b32 v6, v6 offset:{EMX}")
    a("s_waitcnt lgkmcnt(0)")
    a.srd(24, 10, E * 4)
    a(f"buffer_load_dwordx4 {vr(DST,4)}, v3, s[24:27], s22 offen")
    a.srd(32, 6, E * 8)
    a(f"buffer_load_dwordx4 {vr(EV,4)}, v4, s[32:35], s23 offen")
    a(f"buffer_load_dwordx4 {vr(EV+4,4)}, v4, s[32:35], s23 offen offset:16")
    a.srd(28, 8, E * 4)
    a(f"buffer_load_dwordx4 {vr(SRC,4)}, v3, s[28:31], s22 offen")
    a.srd(40, 20, E * 16, WS_REC)
    a.srd(44, 20, NCHUNK * NWIN * 4, WS_TAB)
    a.srd(48, 20, NCHUNK * 4, WS_EMAX)
    a("v_mov_b32 v32, 1")
    a(f"s_movk_i32 s37, {BM}")
    a("s_mov_b32 s52, 0x7fff7fff")
    a("v_lshlrev_b32 v33, 5, v1")
    a("s_barrier")
    a.stamp(1)
    a("s_waitcnt vmcnt(3)")
    a.stamp(2)
    for j in range(4):
        a(f"v_mul_u32_u24 v{BK+j}, s37, v{DST+j}")
    for j in range(4):
        a(f"v_lshrrev_b32 v{BK+j}, 16, v{BK+j}")
    for j in range(4):
        a(f"v_lshlrev_b32 v{BK+j}, 2, v{BK+j}")
        a(f"ds_add_rtn_u32 v{RK+j}, v{BK+j}, v32 offset:{HIST}")
    a("s_waitcnt vmcnt(1)")
    for j in range(8):
        a(f"v_and_b32 v{36+j}, s52, v{EV+j}")
    for st in (1, 2, 4):
        for j in range(0, 8, 2*st):
            a(f"v_pk_max_u16 v{36+j}, v{36+j}, v{36+j+st}")
    a("v_lshlrev_b32 v37, 16, v36")
    a("v_and_b32 v36, 0xffff0000, v36")
    a("v_max_u32 v36, v36, v37")
    dpp_max64(a, 36)
    a("s_mov_b32 exec_lo, 0")
    a("s_mov_b32 exec_hi, 0x80000000")
    a(f"ds_max_u32 v6, v36 offset:{EMX}")
    a("s_mov_b64 exec, -1")
    a("s_waitcnt lgkmcnt(0)")
    a("s_barrier")
    a.stamp(3)
    a(f"ds_read_b128 v[40:43], v33 offset:{HIST}")
    a(f"ds_read_b128 v[44:47], v33 offset:{HIST+16}")
    a(f"ds_read_b32 v34, v6 offset:{EMX}")
    a("s_waitcnt vmcnt(0)")
    for j in range(4):
        a(f"v_lshl_or_b32 v{SRC+j}, v{DST+j}, 14, v{SRC+j}")
    a("s_waitcnt lgkmcnt(1)")
    a("v_mov_b32 v48, 0")
    a("v_mov_b32 v49, v40")
    for k in range(2, 8):
        a(f"v_add_u32 v{48+k}, v{48+k-1}, v{40+k-1}")
    a("v_add_u32 v56, v55, v47")
    a("v_mov_b32 v57, v56")
    dpp_scan64(a, 56)
    a("v_sub_u32 v56, v56, v57")
    for k in range(8):
        a(f"v_add_u32 v{48+k}, v{48+k}, v56")
    a(f"ds_write_b128 v33, v[48:51] offset:{STRT}")
    a(f"ds_write_b128 v33, v[52:55] offset:{STRT+16}")
    a("s_waitcnt lgkmcnt(0)")
    for j in range(4):
        a(f"ds_read_b32 v{BK+j}, v{BK+j} offset:{STRT}")
    a("s_cmp_lg_u32 s3, 4")
    a("s_cbranch_scc1 K1S_notab")
    for k in range(8):
        a(f"v_lshl_or_b32 v{40+k}, v{40+k}, 16, v{48+k}")
    a("s_lshl_b32 s53, s2, 11")
    a("s_lshl_b32 s54, s2, 2")
    a("buffer_store_dwordx4 v[40:43], v33, s[44:47], s53 offen")
    a("buffer_store_dwordx4 v[44:47], v33, s[44:47], s53 offen offset:16")
    a("s_mov_b64 exec, 1")
    a("buffer_store_dword v34, v6, s[48:51], s54 offen")
    a("s_mov_b64 exec, -1")
    a.label("K1S_notab")
    a(f"s_mul_i32 s53, s2, {CH*16}")
    for j in range(4):
        a(f"s_waitcnt lgkmcnt({3 - j + 2*j})")
        a(f"v_add_lshl_u32 v{BK+j}, v{BK+j}, v{RK+j}, 4")
        a(f"ds_write_b64 v{BK+j}, {vr(EV+2*j,2)} offset:{RB}")
        a(f"ds_write_b32 v{BK+j}, v{SRC+j} offset:{RB+8}")
    a("s_waitcnt lgkmcnt(0)")
    a("s_barrier")
    a.stamp(4)
    for j in range(4):
        a(f"ds_read_b128 {vr(40+4*j,4)}, v3 offset:{RB + 5120*j}")
    for j in range(4):
        a(f"s_waitcnt lgkmcnt({3-j})")
        a(f"buffer_store_dwordx4 {vr(40+4*j,4)}, v3, s[40:43], s53 offen")
        if j < 3:
            a("s_add_u32 s53, s53, 5120")


def k1_prep(a):
    a(f"s_cmp_ge_u32 s2, {NFRAG}")
    a("s_cbranch_scc1 K1_END")
    a("v_and_b32 v3, 31, v1")
    a("v_lshlrev_b32 v3, 1, v3")
    a("v_lshrrev_b32 v4, 5, v1")
    a("v_lshlrev_b32 v5, 4, v1")
    a(f"s_mov_b32 s38, {hex(f32bits(-LOG2E))}")
    a("s_lshl_b32 s22, s2, 10")
    a("s_waitcnt lgkmcnt(0)")
    a.srd(40, 20, NFRAG * 1024, WS_WB)
    a.srd(24, 12, 260 * 512)
    a("s_cmp_ge_u32 s2, 136")
    a("s_cbranch_scc1 K1P_cst")
    a("s_cmp_ge_u32 s2, 64")
    a("s_cbranch_scc1 K1P_w2")
    a("v_lshl_add_u32 v3, v4, 12, v3")
    a("s_lshr_b32 s23, s2, 3")
    a("s_and_b32 s36, s2, 7")
    a("s_lshl_b32 s23, s23, 6")
    a("s_lshl_b32 s36, s36, 13")
    a("s_add_u32 s23, s23, s36")
    a("s_add_u32 s23, s23, 0x10000")
    for j in range(8):
        a(f"buffer_load_ushort v{8+j}, v3, s[24:27], s23 offen offset:{512*j}")
    a("s_waitcnt vmcnt(0)")
    a("s_barrier")
    for j in range(8):
        a(f"v_lshlrev_b32 v{8+j}, 16, v{8+j}")
    for j in range(8):
        a(f"v_mul_f32 v{8+j}, s38, v{8+j}")
    for q in range(4):
        a(f"v_cvt_pk_bf16_f32 v{16+q}, v{8+2*q}, v{9+2*q}")
    a("buffer_store_dwordx4 v[16:19], v5, s[40:43], s22 offen")
    a("s_endpgm")
    a.label("K1P_w2")
    a("s_sub_u32 s37, s2, 64")
    a("s_mul_i32 s23, s37, 57")
    a("s_lshr_b32 s23, s23, 9")
    a("s_mul_i32 s36, s23, 9")
    a("s_sub_u32 s36, s37, s36")
    a("s_lshl_b32 s23, s23, 5")
    a("v_and_b32 v3, 15, v1")
    a("v_lshlrev_b32 v3, 1, v3")
    a("s_cmp_eq_u32 s36, 8")
    a("s_cbranch_scc1 K1P_b2")
    a.srd(24, 16, 256 * 256)
    a("v_lshl_add_u32 v3, v4, 12, v3")
    a("v_bfe_u32 v6, v1, 4, 1")
    a("v_lshl_add_u32 v3, v6, 10, v3")
    a("s_lshl_b32 s36, s36, 13")
    a("s_add_u32 s23, s23, s36")
    for j in range(8):
        a(f"buffer_load_ushort v{8+j}, v3, s[24:27], s23 offen offset:{256*(8*(j>>2)+(j&3))}")
    a("s_waitcnt vmcnt(0)")
    a("s_barrier")
    for q in range(4):
        a(f"v_lshl_or_b32 v{16+q}, v{9+2*q}, 16, v{8+2*q}")
    a("buffer_store_dwordx4 v[16:19], v5, s[40:43], s22 offen")
    a("s_endpgm")
    a.label("K1P_b2")
    a.srd(24, 18, 256)
    a("buffer_load_ushort v8, v3, s[24:27], s23 offen")
    for q in range(4):
        a(f"v_mov_b32 v{16+q}, 0")
    a("s_waitcnt vmcnt(0)")
    a("s_barrier")
    a("s_mov_b64 exec, 0xffff")
    a("v_lshl_or_b32 v16, v8, 16, v8")
    a("v_mov_b32 v17, v8")
    a("s_mov_b64 exec, -1")
    a("buffer_store_dwordx4 v[16:19], v5, s[40:43], s22 offen")
    a("s_endpgm")
    a.label("K1P_cst")
    a("s_sub_u32 s37, s2, 136")
    a("s_lshl_b32 s23, s37, 6")
    a("s_add_u32 s36, s23, 0x20000")
    a.srd(28, 14, 512)
    for k in range(4):
        a(f"buffer_load_ushort v{8+k}, v3, s[24:27], s36 offen offset:{512*k}")
    a("buffer_load_ushort v12, v3, s[28:31], s23 offen")
    a("s_waitcnt vmcnt(0)")
    a("s_barrier")
    for k in range(5):
        a(f"v_lshlrev_b32 v{8+k}, 16, v{8+k}")
    for k in range(4):
        a(f"v_mul_f32 v{8+k}, s38, v{8+k}")
    a("v_mul_f32 v18, s38, v12")
    a("v_add_f32 v19, |v8|, |v9|")
    a("v_add_f32 v19, |v10|, v19")
    a("v_add_f32 v19, |v11|, v19")
    for p in range(2):
        a(f"v_cvt_pk_bf16_f32 v{16+p}, v{8+2*p}, v{9+2*p}")
    a("s_mov_b32 exec_hi, 0")
    for p in range(2):
        a(f"v_lshlrev_b32 v6, 16, v{16+p}")
        a(f"v_and_b32 v7, 0xffff0000, v{16+p}")
        a(f"v_sub_f32 v6, v{8+2*p}, v6")
        a(f"v_sub_f32 v7, v{9+2*p}, v7")
        a(f"v_cvt_pk_bf16_f32 v{16+p}, v6, v7")
    a("s_mov_b32 exec_hi, -1")
    a("buffer_store_dwordx4 v[16:19], v5, s[40:43], s22 offen")


def k1_gemm(a):
    WL, XL = 0, 32768
    XB, WA, ACC = 32, 64, 96
    a("s_cmp_eq_u32 s3, 4")
    a("s_cbranch_scc1 K1_prep")
    a("s_lshr_b32 s22, s2, 1")
    a("s_and_b32 s23, s2, 1")
    a("s_and_b32 s36, s3, 1")
    a("s_lshr_b32 s37, s3, 1")
    a("v_lshrrev_b32 v3, 3, v1")
    a("v_and_b32 v4, 7, v1")
    a("v_lshlrev_b32 v4, 4, v4")
    a("v_lshl_add_u32 v3, v3, 9, v4")
    a("v_lshrrev_b32 v5, 4, v1")
    a("v_and_b32 v6, 15, v1")
    a("v_xor_b32 v6, v6, v5")
    a("v_lshlrev_b32 v6, 4, v6")
    a("v_lshl_add_u32 v8, v5, 8, v6")
    for z in range(1, 4):
        a(f"v_xor_b32 v{8+z}, {64*z}, v8")
    a("s_lshl_b32 s38, s37, 15")
    a("s_lshl_b32 s39, s23, 8")
    a("s_add_u32 s38, s38, s39")
    a("s_lshl_b32 s39, s36, 7")
    a("s_add_u32 s38, s38, s39")
    a("s_lshl_b32 s52, s36, 14")
    a("s_lshl_b32 s39, s37, 13")
    a("s_add_u32 s52, s52, s39")
    a("s_lshl_b32 s53, s22, 1")
    a("s_add_u32 s53, s53, s37")
    a("s_lshl_b32 s54, s53, 13")
    a("s_lshl_b32 s39, s36, 12")
    a("s_add_u32 s54, s54, s39")
    a("s_lshl_b32 s55, s37, 13")
    a("s_add_u32 s55, s55, s39")
    a(f"s_add_u32 m0, s55, {XL}")
    a("s_waitcnt lgkmcnt(0)")
    a.srd(24, 4, N * 256)
    for z in range(4):
        a(f"buffer_load_dwordx4 v{8+z}, s[24:27], s54 offen offset:{1024*z} lds")
    a.srd(28, 12, 260 * 512)
    for z in range(8):
        a("s_mov_b32 m0, s52")
        a("s_add_u32 s52, s52, 1024")
        a("buffer_load_dwordx4 v3, s[28:31], s38 offen lds")
        a("s_add_u32 s38, s38, 4096")
    a.srd(40, 20, N * 512, WS_P)
    a.srd(44, 20, NGEMM * 16, WS_PMAX)
    a("v_lshrrev_b32 v12, 5, v1")
    a("v_and_b32 v13, 31, v1")
    a("v_bfe_u32 v14, v1, 2, 2")
    a("v_lshl_add_u32 v14, v12, 3, v14")
    a("v_lshlrev_b32 v14, 7, v14")
    a("v_and_b32 v15, 3, v1")
    a("v_lshl_add_u32 v14, v15, 3, v14")
    a("v_bfe_u32 v15, v1, 4, 1")
    a("v_lshl_add_u32 v14, v15, 5, v14")
    a("s_lshl_b32 s39, s36, 14")
    a("v_add_u32 v14, s39, v14")
    a("v_and_b32 v15, 15, v1")
    a("v_xor_b32 v15, v15, v12")
    a("v_lshlrev_b32 v15, 4, v15")
    a("v_lshl_add_u32 v15, v13, 8, v15")
    a("s_lshl_b32 s39, s37, 13")
    a(f"s_add_u32 s39, s39, {XL}")
    a("v_add_u32 v16, s39, v15")
    for s in range(1, 8):
        a(f"v_xor_b32 v{16+s}, {32*s}, v16")
    a("v_lshlrev_b32 v24, 4, v12")
    a("v_lshl_add_u32 v24, v13, 9, v24")
    a("s_lshl_b32 s56, s53, 14")
    a("s_lshl_b32 s39, s23, 8")
    a("s_add_u32 s56, s56, s39")
    a("s_lshl_b32 s39, s36, 7")
    a("s_add_u32 s56, s56, s39")
    a(f"s_mov_b32 s57, {hex(f32bits(-LOG2E))}")
    a.stamp(1)
    a("s_waitcnt vmcnt(0)")
    a.stamp(2)
    a("s_barrier")
    a.stamp(3)
    def reads(s):
        a(f"ds_read_b128 {vr(XB+4*s,4)}, v{16+s}")
        for T in range(2):
            for i in range(2):
                a(f"ds_read_b64_tr_b16 {vr(WA+((s&3)*2+T)*4+2*i,2)}, v14 offset:{16*s*128+4*i*128+64*T}")
    reads(0); reads(1)
    for s in range(8):
        if s + 2 < 8:
            reads(s + 2)
            a("s_waitcnt lgkmcnt(10)")
        else:
            a(f"s_waitcnt lgkmcnt({5 if s == 6 else 0})")
        for T in range(2):
            a(mfma(ACC + 16*T, WA + ((s&3)*2+T)*4, XB + 4*s, None if s == 0 else ACC + 16*T))
    a.stamp(4)
    a("s_nop 11")
    a("v_mov_b32 v25, 0")
    for T in range(2):
        for r in range(16):
            a(f"v_mul_f32 v{ACC+16*T+r}, s57, v{ACC+16*T+r}")
        for p in range(8):
            a(f"v_cvt_pk_bf16_f32 v{XB+8*T+p}, v{ACC+16*T+2*p}, v{ACC+16*T+2*p+1}")
        a("s_nop 1")
        for gp in range(2):
            b = XB + 8*T + 4*gp
            a(f"v_permlane32_swap_b32 v{b}, v{b+2}")
            a(f"v_permlane32_swap_b32 v{b+1}, v{b+3}")
        for gp in range(2):
            b = XB + 8*T + 4*gp
            a(f"buffer_store_dwordx4 {vr(b,4)}, v24, s[40:43], s56 offen offset:{64*T+32*gp}")
    for r in range(0, 32, 2):
        a(f"v_max3_f32 v25, |v{ACC+r}|, |v{ACC+r+1}|, v25")
    dpp_max64(a, 25)
    a("s_lshl_b32 s39, s2, 4")
    a("s_lshl_b32 s36, s3, 2")
    a("s_add_u32 s39, s39, s36")
    a("v_mov_b32 v26, 0")
    a("s_mov_b32 exec_lo, 0")
    a("s_mov_b32 exec_hi, 0x80000000")
    a("buffer_store_dword v25, v26, s[44:47], s39 offen")
```

```python
from common import *

MAXT = 13
BLKSZ = 3072
XW = 65536
IDX = XW + 10240
IDXW = MAXT * 128
CNT = IDX + 2 * IDXW
MISC = CNT + 256
LIST = MISC + 64
BLK = LIST + 4096
BLKW = MAXT * BLKSZ
K2_LDS = BLK + 2 * BLKW
CAP1, CAP2 = 128, 96
PADIDX = N
K2_BLOCK = 512
NBKT = NWIN // 2

IDN, QB, S, T0, T1, DD, MM, NN, HF, HB = 8, 16, 32, 64, 80, 96, 112, 120, 128, 136
PF, AO, SO0, IX, PA, BA, IA, DEG = 140, 156, 164, 168, 176, 180, 181, 182
VBASE, VCNT, VREC = 183, 184, 185
W2R = 188
WBQ = 224
SO1 = 224
K2_VGPR = 256
TT = (T0, T1)
SO = (SO0, SO1)

sTAB, sREC, sP, sX, sWF, sOUT, sMX = 24, 28, 32, 36, 40, 44, 48
sWIN, sWV, sN0, sNA, sNW, sNB_ = 52, 53, 54, 55, 56, 57
sTW, sLO, sCAP, sNB, sNT, sI, sRING = 58, 59, 60, 61, 62, 63, 64
sF1, sF2, sSLOW, sSINIT, sBLK, sIDX = 65, 66, 67, 68, 69, 70
sM0, sM1 = 72, 74
sLIST, sCA, sSA, sW2, sNB2 = 6, 7, 8, 9, 10
t0, t1, t2, t3 = 76, 77, 78, 79

OPT = dict()


def dma(stage_off):
    out = []
    for q in range(4):
        out.append(f"s_add_u32 m0, s{sRING}, {stage_off + 1024*q}")
        out.append("s_nop 0")
        out.append(f"buffer_load_dwordx4 {vr(IX+2*q,2)}, s[{sP}:{sP+3}], 0 idxen offen lds")
    return out


def idx_reads(tile_off):
    return [f"ds_read_b32 v{IX+2*q}, v{IA} offset:{tile_off*128 + 32*q}" for q in range(4)]


def pf_reads(stage):
    return [f"ds_read_b128 {vr(PF+4*k,4)}, v{PA+k} offset:{stage*4096}" for k in range(4)]


def ao_reads(tile_off):
    return [f"ds_read_b128 {vr(AO+4*u,4)}, v{BA} offset:{tile_off*BLKSZ + 1024*u}" for u in range(2)]


def so_read(tile_off, buf):
    return f"ds_read_b128 {vr(SO[buf],4)}, v{BA} offset:{tile_off*BLKSZ + 2048}"


def zmf(c):
    t = TT[c]
    return [mfma(t, PF + 8*c, IDN, None), mfma(t, PF + 8*c + 4, IDN + 4, t),
            mfma(t, AO, QB + 8*c, t), mfma(t, AO + 4, QB + 8*c + 4, t)]


def ssmf(c, buf, first=False):
    return mfma(S + 16*c, HB, SO[buf], None if first else S + 16*c)


def cvts():
    return [f"v_cvt_pk_bf16_f32 v{HB+p}, v{HF+2*p}, v{HF+2*p+1}" for p in range(4)]


def exps(c):
    return [f"v_exp_f32 v{DD+r}, v{TT[c]+r}" for r in range(16)]


def rcps():
    return [f"v_rcp_f32 v{MM+r}, v{MM+r}" for r in range(8)]


def fms():
    return [f"v_mul_f32 v{HF+r}, v{NN+r}, v{MM+r}" for r in range(8)]


def prun(c, fm=True):
    t = TT[c]
    P = fms() if fm else []
    P += [f"v_add_f32 v{DD+r}, 1.0, v{DD+r}" for r in range(16)]
    P += [f"v_mul_f32 v{MM+j}, v{DD+2*j}, v{DD+2*j+1}" for j in range(8)]
    P += [f"v_mul_f32 v{NN+j}, v{t+2*j}, v{DD+2*j+1}" for j in range(8)]
    P += [f"v_fma_f32 v{NN+j}, v{t+2*j+1}, v{DD+2*j}, v{NN+j}" for j in range(8)]
    return P


def weave(base, inserts):
    out = []
    ins = sorted(inserts, key=lambda x: x[0])
    k = 0
    for i, l in enumerate(base):
        while k < len(ins) and ins[k][0] <= i:
            out += ins[k][1]; k += 1
        out.append(l)
    while k < len(ins):
        out += ins[k][1]; k += 1
    return out


def trun(c, par, stage, role):
    z = zmf(1 - c)
    late = role == "B" and c == 1
    w = ["s_waitcnt lgkmcnt(0)"] if late else []
    if stage == 0:
        base = exps(c)
        pos = [0, 4, 8, 12]
    elif stage == 1:
        base = exps(c) + rcps()
        pos = [8, 12, 16, 20] if late else [0, 5, 10, 15]
    else:
        base = cvts() + exps(c) + rcps()
        pos = [12, 16, 20, 24, 6] if late else [0, 6, 11, 16, 21]
    ins = [(pos[0], w + [z[0]])] + [(pos[k], [z[k]]) for k in (1, 2, 3)]
    if stage >= 2:
        ins.append((pos[4], [ssmf(c, par ^ 1, stage < 4)]))
    return [f"s_setprio {2 if role == 'A' else 1}"] + weave(base, ins) + ["s_setprio 0"]


def w2_loads(fs):
    out = []
    for f in fs:
        if f in (4, 8):
            out.append(f"s_add_u32 s{t3}, s{sW2}, {1024*f}")
        so = sW2 if f < 4 else t3
        out.append(f"buffer_load_dwordx4 {vr(W2R+4*f,4)}, v4, s[{sWF}:{sWF+3}], s{so} offen offset:{(f & 3) * 1024}")
    return out


def blk1(par, role, vm=4, w2=()):
    nst = (par + 1) & 1
    pf, ao = pf_reads(nst), ao_reads(par + 1)
    out = [f"s_waitcnt vmcnt({vm})"] + pf[:2] + ao + pf[2:] + idx_reads(par + 3) + [so_read(par, par)] + w2_loads(w2)
    return out + (["s_waitcnt lgkmcnt(0)"] if role == "A" else [])


def blk2(par):
    nst = (par + 1) & 1
    tr = OPT.get("trace")
    return (dma(nst * 4096) + (["s_memtime s[90:91]"] if tr else [])
            + [f"s_sub_u32 s{sI}, s{sI}, 1", f"s_cmp_eq_u32 s{sI}, 0"]
            + (["s_waitcnt lgkmcnt(0)", f"s_mov_b32 m0, s{sI}", "v_writelane_b32 v186, s90, m0"] if tr else []))


INC = [f"v_add_u32 v{BA}, {2*BLKSZ}, v{BA}", f"v_add_u32 v{IA}, 256, v{IA}"]


def drain(par):
    return (cvts() + rcps()[:2] + [ssmf(0, par)] + rcps()[2:] + ["s_nop 0"] + fms() + cvts() + ["s_nop 1", ssmf(1, par)])


def fast_loop(a, role):
    L = "K2" + role
    em = lambda ls: [a(l) for l in ls]
    A = role == "A"
    T = lambda c, par, stage: trun(c, par, stage, role)
    def unit(T_, blk, P):
        em(T_)
        em(blk + P if A else P + blk)
    unit(T(0, 0, 0), blk1(0, role, 4, (5, 6)), prun(0, False))
    unit(T(1, 0, 1), blk2(0), prun(1))
    unit(T(0, 1, 2), blk1(1, role, 6, (7, 8)), prun(0))
    if A:
        em(T(1, 1, 3)); em(blk2(1))
        a(f"s_cbranch_scc1 {L}_EXIT1")
        a.raw(".p2align 6")
        a.label(f"{L}_LOOP")
        em(INC + prun(1))
        unit(T(0, 0, 4), blk1(0, role), prun(0))
        em(T(1, 0, 4)); em(blk2(0))
        a(f"s_cbranch_scc1 {L}_EXIT0")
        em(prun(1))
        unit(T(0, 1, 4), blk1(1, role), prun(0))
        em(T(1, 1, 4)); em(blk2(1))
        a(f"s_cbranch_scc0 {L}_LOOP")
    else:
        unit(T(1, 1, 3), blk2(1), prun(1))
        a(f"s_cbranch_scc1 {L}_EXIT1")
        a.raw(".p2align 6")
        a.label(f"{L}_LOOP")
        unit(T(0, 0, 4), blk1(0, role), INC + prun(0))
        unit(T(1, 0, 4), blk2(0), prun(1))
        a(f"s_cbranch_scc1 {L}_EXIT0")
        unit(T(0, 1, 4), blk1(1, role), prun(0))
        unit(T(1, 1, 4), blk2(1), prun(1))
        a(f"s_cbranch_scc0 {L}_LOOP")
    for par in (1, 0):
        a.label(f"{L}_EXIT{par}")
        if A: em(prun(1))
        em(drain(par))
        a("s_branch K2_EPI")


def gen_k2(force_slow=False, diag=False, nogather=False, **opt):
    OPT.clear(); OPT.update(opt)
    a = Asm()
    a.diag = diag
    smap = OPT.get("smap", dict(start=0, tab=1, rec=2, recl=3, b4=4, loop=5, epi=6, epb=7, end=8, drained=9))
    st = lambda name: a.stamp(smap[name]) if name in smap else None
    hi = lambda: a("s_setprio 3") if OPT.get("prio", True) else None
    lo = lambda: a("s_setprio 0") if OPT.get("prio", True) else None
    a(f"s_cmp_ge_u32 s2, {NBKT}")
    a("s_cbranch_scc1 K2_END")
    st("start")
    a.cyc(88)
    if diag:
        a("s_mov_b32 s89, s2")
    a("s_load_dwordx2 s[22:23], s[0:1], 80")
    a("s_load_dwordx2 s[4:5], s[0:1], 0")
    a("s_load_dwordx2 s[20:21], s[0:1], 64")
    Z = HF
    ZA = 187
    NZ0, NZ1, NZ2 = OPT.get("nz", (3, 3, 1))
    def clear(k0, k1):
        for k in range(k0, k1):
            if k == 8:
                a(f"v_add_u32 v{ZA}, 0x10000, v{ZA}")
            a(f"ds_write_b128 v{ZA}, {vr(Z,4)} offset:{8192*(k & 7)}")
    LA = AO
    LR, L64, Q1 = AO + 4, AO + 5, AO + 6
    CST = MM
    MX = [DD, DD + 4, DD + 8, DD + 12, NN, NN + 4]
    OH = 186
    a("v_lshrrev_b32 v2, 6, v0")
    a("v_and_b32 v1, 63, v0")
    a("v_readfirstlane_b32 s3, v2")
    for k in range(4):
        a(f"v_mov_b32 v{Z+k}, 0")
    a(f"v_lshlrev_b32 v{ZA}, 4, v0")
    a(f"v_add_u32 v{ZA}, {BLK}, v{ZA}")
    clear(0, NZ0)
    a(f"s_and_b32 s{t0}, s2, 7")
    a("s_lshr_b32 s2, s2, 3")
    a(f"s_lshl_b32 s{t0}, s{t0}, 5")
    a(f"s_add_u32 s2, s2, s{t0}")
    a(f"s_lshr_b32 s{sWIN}, s3, 2")
    a("v_bfe_u32 v3, v0, 1, 7")
    a("v_lshlrev_b32 v7, 11, v3")
    a(f"s_lshl_b32 s{t3}, s2, 3")
    a(f"s_lshl_b32 s{t1}, s{sWIN}, 2")
    a(f"s_add_u32 s{t3}, s{t3}, s{t1}")
    a(f"s_mov_b32 s{sTAB+2}, {hex(NCHUNK * NWIN * 4)}")
    a(f"s_mov_b32 s{sTAB+3}, 0x00020000")
    a(f"s_and_b32 s{sWV}, s3, 3")
    a(f"s_lshl_b32 s{t0}, s2, 17")
    a(f"s_add_u32 s{t0}, s{t0}, {BM-1}")
    a(f"s_add_u32 s{t1}, s{t0}, 0x10000")
    a(f"s_add_u32 s{t2}, s{t0}, 0x20000")
    a(f"s_mul_hi_u32 s{sN0}, s{t0}, {hex(START_MAGIC)}")
    a(f"s_mul_hi_u32 s{t1}, s{t1}, {hex(START_MAGIC)}")
    a(f"s_mul_hi_u32 s{t2}, s{t2}, {hex(START_MAGIC)}")
    a(f"s_lshr_b32 s{sN0}, s{sN0}, {START_SH}")
    a(f"s_lshr_b32 s{t1}, s{t1}, {START_SH}")
    a(f"s_lshr_b32 s{t2}, s{t2}, {START_SH}")
    a(f"s_min_u32 s{t2}, s{t2}, {N}")
    a(f"s_sub_u32 s{sNA}, s{t1}, s{sN0}")
    a(f"s_sub_u32 s{sNB_}, s{t2}, s{t1}")
    a(f"s_cmp_eq_u32 s{sWIN}, 0")
    a(f"s_cselect_b32 s{sNW}, s{sN0}, s{t1}")
    a(f"s_lshl_b32 s{sRING}, s3, 13")
    a("s_waitcnt lgkmcnt(0)")
    a(f"s_add_u32 s{sTAB}, s22, {hex(WS_TAB)}")
    a(f"s_addc_u32 s{sTAB+1}, s23, 0")
    a(f"buffer_load_dword v{VCNT}, v7, s[{sTAB}:{sTAB+3}], s{t3} offen")
    clear(NZ0, NZ0 + NZ1)
    a("v_lshrrev_b32 v5, 4, v1")
    a("v_and_b32 v6, 15, v1")
    a("v_xor_b32 v6, v6, v5")
    a(f"s_lshl_b32 s{t1}, s{sWV}, 2")
    a(f"v_xor_b32 v6, s{t1}, v6")
    a("v_lshlrev_b32 v6, 4, v6")
    a("v_lshl_add_u32 v6, v5, 8, v6")
    a("v_lshlrev_b32 v4, 4, v1")
    a(f"s_lshl_b32 s{t1}, s{sN0}, 8")
    a(f"s_lshl_b32 s{t2}, s3, 10")
    a(f"s_add_u32 s{t1}, s{t1}, s{t2}")
    a(f"s_add_u32 m0, s{t2}, {XW}")
    a.srd(sX, 4, N * 256)
    a(f"buffer_load_dwordx4 v6, s[{sX}:{sX+3}], s{t1} offen lds")
    a("s_cmp_ge_u32 s3, 2")
    a("s_cbranch_scc1 K2_X2")
    a(f"s_add_u32 m0, s{t2}, {XW + 8192}")
    a(f"s_add_u32 s{t1}, s{t1}, 8192")
    a(f"buffer_load_dwordx4 v6, s[{sX}:{sX+3}], s{t1} offen lds")
    a.label("K2_X2")
    a(f"s_mov_b32 m0, s{sRING}")
    a.srd(sWF, 22, NFRAG * 1024, WS_WB)
    for z in range(4):
        a(f"buffer_load_dwordx4 v4, s[{sWF}:{sWF+3}], s{sRING} offen offset:{1024*z} lds")
    a.srd(sREC, 22, E * 16, WS_REC)
    a(f"s_mov_b32 s{sLO}, 0")
    a(f"s_mov_b32 s{sCAP}, {CAP1}")
    a(f"s_mov_b32 s{sF1}, 1")
    a(f"s_mov_b32 s{sF2}, 1")
    a(f"s_lshl_b32 s{sLIST}, s3, 9")
    a(f"s_add_u32 s{sLIST}, s{sLIST}, {LIST}")
    a("v_and_b32 v7, 1, v0")
    a(f"s_movk_i32 s{t0}, {CH}")
    a(f"v_mad_u32_u24 v{VREC}, v3, s{t0}, v7")
    a(f"v_lshlrev_b32 v{VREC}, 4, v{VREC}")
    a(f"v_xor_b32 v{Q1}, 1, v7")
    a(f"v_lshlrev_b32 v{Q1}, 16, v{Q1}")
    a(f"v_lshl_add_u32 v{LR}, v1, 2, s{sLIST}")
    a(f"v_add_u32 v{L64}, 64, v1")
    clear(NZ0 + NZ1, NZ0 + NZ1 + NZ2)
    hi()
    a("s_waitcnt vmcnt(5)")
    st("tab")
    a(f"v_add_u32 v7, v{VCNT}, v{Q1}")
    a(f"v_and_b32 v6, 0xffff, v{VCNT}")
    a(f"v_lshrrev_b32 v{VCNT}, 17, v7")
    a(f"v_lshl_add_u32 v{VREC}, v6, 4, v{VREC}")
    a(f"v_add_u32 v{LA+1}, 32, v{VREC}")
    D = lambda src, ctl: a(f"v_add_u32_dpp v{VBASE}, v{src}, v{src} {ctl}")
    D(VCNT, "row_shr:1 row_mask:0xf bank_mask:0xf bound_ctrl:0")
    a(f"v_add_u32 v{LA+2}, 64, v{VREC}")
    a(f"v_add_u32 v{LA+3}, 0x60, v{VREC}")
    D(VBASE, "row_shr:2 row_mask:0xf bank_mask:0xf bound_ctrl:0")
    a(f"v_cmp_lt_u32 vcc, 4, v{VCNT}")
    a("s_nop 0")
    D(VBASE, "row_shr:4 row_mask:0xf bank_mask:0xf bound_ctrl:0")
    a("s_nop 1")
    D(VBASE, "row_shr:8 row_mask:0xf bank_mask:0xf bound_ctrl:0")
    a("s_nop 1")
    D(VBASE, "row_bcast:15 row_mask:0xa bank_mask:0xf")
    a("s_nop 1")
    D(VBASE, "row_bcast:31 row_mask:0xc bank_mask:0xf")
    a("s_cbranch_vccnz K2_GEN0")
    a(f"v_readlane_b32 s{sTW}, v{VBASE}, 63")
    a(f"v_sub_u32 v{VBASE}, v{VBASE}, v{VCNT}")
    a(f"v_lshl_add_u32 v6, v{VBASE}, 2, s{sLIST}")
    a(f"s_cmp_gt_u32 s{sTW}, {CAP1}")
    a("s_cbranch_scc1 K2_GEN")
    a(f"s_mov_b32 s{t0}, s{sTW}")
    for j in range(4):
        a(f"v_cmpx_lt_u32 vcc, {j}, v{VCNT}")
        a(f"ds_write_b32 v6, v{VREC if j == 0 else LA+j} offset:{4*j}")
    a.label("K2_LISTED")
    a("s_mov_b64 exec, -1")
    a(f"ds_read_b32 v{LA}, v{LR}")
    a(f"ds_read_b32 v{LA+1}, v{LR} offset:256")
    a(f"v_cmp_gt_u32 s[{sM0}:{sM0+1}], s{t0}, v1")
    a(f"v_cmp_gt_u32 s[{sM1}:{sM1+1}], s{t0}, v{L64}")
    R = (PF, PF + 4)
    for r in range(2):
        a(f"s_waitcnt lgkmcnt({1-r})")
        a(f"buffer_load_dwordx4 {vr(R[r],4)}, v{LA+r}, s[{sREC}:{sREC+3}], 0 offen")
    lo()
    st("rec")
    clear(NZ0 + NZ1 + NZ2, 9)
    a(f"v_mov_b32 v{Z+4}, {PADIDX}")
    a(f"v_mov_b32 v{Z+5}, {PADIDX}")
    a("v_lshlrev_b32 v7, 3, v0")
    a(f"v_add_u32 v7, {IDX}, v7")
    a("s_cmp_ge_u32 s3, 6")
    a("s_cbranch_scc1 K2_Z6")
    clear(9, 10)
    a(f"ds_write_b64 v7, {vr(Z+4,2)}")
    a.label("K2_Z7")
    a(f"s_cmp_eq_u32 s{sF1}, 0")
    a("s_cbranch_scc1 K2_NF3")
    a(f"s_add_u32 m0, s{sRING}, 4096")
    a(f"s_add_u32 s{t0}, s{sRING}, 4096")
    for z in range(4):
        a(f"buffer_load_dwordx4 v4, s[{sWF}:{sWF+3}], s{t0} offen offset:{1024*z} lds")
    a("v_and_b32 v2, 31, v1")
    a("v_lshrrev_b32 v5, 5, v1")
    a(f"s_mul_i32 s{t0}, s{sWIN}, s{sNA}")
    a(f"v_add_u32 v6, s{t0}, v2")
    a("v_and_b32 v7, 15, v6")
    a("v_xor_b32 v7, v7, v5")
    a("v_lshlrev_b32 v7, 4, v7")
    a("v_lshl_add_u32 v6, v6, 8, v7")
    a(f"v_add_u32 v6, {XW}, v6")
    a(f"s_lshl_b32 s{t0}, s{sWV}, 14")
    a(f"v_add_u32 v3, s{t0}, v4")
    st("pb2")
    a("s_waitcnt vmcnt(6) lgkmcnt(0)")
    a("s_barrier")
    st("b2")
    for s in range(4):
        a(f"v_xor_b32 v7, {32*s}, v6")
        a(f"ds_read_b128 {vr(T0+4*s,4)}, v7")
        for c in range(2):
            a(f"ds_read_b128 {vr(WBQ+4*(4*c+s),4)}, v3 offset:{(8*c+s)*1024}")
    a(f"s_lshl_b32 s{t0}, s{sWV}, 11")
    a(f"s_add_u32 s{t0}, s{t0}, {WS_CST - WS_WB}")
    for c in range(2):
        a(f"buffer_load_dwordx4 {vr(CST+4*c,4)}, v4, s[{sWF}:{sWF+3}], s{t0} offen offset:{1024*c}")
    a("s_cmp_lg_u32 s3, 7")
    a("s_cbranch_scc1 K2_NMX")
    a.srd(sMX, 22, NGEMM * 16, WS_PMAX)
    a(f"s_movk_i32 s{t0}, 0x1000")
    for k in range(5):
        so = "0" if k < 4 else f"s{t0}"
        a(f"buffer_load_dwordx4 {vr(MX[k],4)}, v4, s[{sMX}:{sMX+3}], {so} offen offset:{(k & 3) * 1024}")
    a.srd(sMX, 22, NCHUNK * 4, WS_EMAX)
    a(f"buffer_load_dwordx4 {vr(MX[5],4)}, v4, s[{sMX}:{sMX+3}], 0 offen")
    a.label("K2_NMX")
    a.srd(sP, 22, N, WS_P, stride=512)
    a.srd(sOUT, 20, N * 256)
    a(f"s_mov_b32 s{sSINIT}, 0")
    a(f"s_mul_i32 s{sBLK}, s{sWIN}, {BLKW}")
    a(f"s_add_u32 s{sBLK}, s{sBLK}, {BLK}")
    a(f"s_mul_i32 s{sIDX}, s{sWIN}, {IDXW}")
    a(f"s_add_u32 s{sIDX}, s{sIDX}, {IDX}")
    a(f"s_lshl_b32 s{t0}, s{sWIN}, 5")
    a(f"s_sub_u32 s{t0}, s{t0}, s{sNW}")
    a(f"s_lshl_b32 s{t0}, s{t0}, 2")
    a(f"s_add_u32 s{sCA}, s{t0}, {CNT}")
    a(f"s_lshl_b32 s{t0}, s{sWIN}, 9")
    a(f"s_sub_u32 s{t0}, s{sBLK}, s{t0}")
    a(f"s_sub_u32 s{sSA}, s{t0}, {4*CNT}")
    a(f"s_mul_i32 s{sW2}, s3, {9*1024}")
    a(f"s_add_u32 s{sW2}, s{sW2}, {WS_W2F - WS_WB}")
    a("v_bfe_u32 v7, v1, 1, 3")
    a("v_xor_b32 v7, v7, v5")
    a("v_lshlrev_b32 v7, 4, v7")
    a("v_lshl_add_u32 v7, v2, 7, v7")
    a(f"v_add_u32 v{PA}, s{sRING}, v7")
    for k in range(1, 4):
        a(f"v_xor_b32 v{PA+k}, {32*k}, v{PA}")
    a(f"v_and_b32 v{IX}, 7, v1")
    a("v_lshrrev_b32 v7, 4, v1")
    a(f"v_xor_b32 v7, v{IX}, v7")
    a("v_lshlrev_b32 v7, 4, v7")
    a(f"s_lshl_b32 s{t0}, s{sWV}, 7")
    a(f"v_add_u32 v{IX+1}, s{t0}, v7")
    a(f"v_xor_b32 v{IX+3}, 64, v{IX+1}")
    a(f"v_mov_b32 v{IX+5}, v{IX+1}")
    a(f"v_mov_b32 v{IX+7}, v{IX+3}")
    a(f"v_mov_b32 v{DEG}, 0")
    a(f"v_lshrrev_b32 v{OH}, 4, v2")
    a(f"v_lshlrev_b32 v{OH}, 26, v{OH}")
    a("v_bfe_u32 v7, v2, 2, 1")
    a(f"v_lshl_add_u32 v{OH}, v7, 25, v{OH}")
    a("v_and_b32 v7, 3, v2")
    a(f"v_lshl_add_u32 v{OH}, v7, 17, v{OH}")
    a("v_bfe_u32 v7, v2, 3, 1")
    a(f"v_lshl_add_u32 v{OH}, v7, 19, v{OH}")
    for s in range(4):
        a(f"s_waitcnt lgkmcnt({9 - 3*s})")
        for c in range(2):
            a(mfma(S + 16*c, T0 + 4*s, WBQ + 4*(4*c+s), None if s == 0 else S + 16*c))
        a(f"v_xor_b32 v{HB+s}, {32*(s+4)}, v6")
    for s in range(4, 8):
        a(f"ds_read_b128 {vr(T0+4*s,4)}, v{HB+s-4}")
    st("shend")
    a("s_cmp_eq_u32 s3, 7")
    a("s_cbranch_scc1 K2_W7")
    a("s_waitcnt vmcnt(6)")
    a.label("K2_J3")
    hi()
    st("recl")
    AC = (PF + 8, PF + 9); RK = (PF + 10, PF + 11); SU = (PF + 12, PF + 13); BP = (PF + 14, PF + 15)
    a("v_mov_b32 v6, 1")
    for r in range(2):
        a(f"v_lshrrev_b32 v{AC[r]}, 14, v{R[r]+2}")
    for r in range(2):
        a(f"v_lshl_add_u32 v{AC[r]}, v{AC[r]}, 2, s{sCA}")
    for r in range(2):
        a(f"s_mov_b64 exec, s[{(sM0, sM1)[r]}:{(sM0, sM1)[r]+1}]")
        a(f"ds_add_rtn_u32 v{RK[r]}, v{AC[r]}, v6")
    a("s_mov_b64 exec, -1")
    a(f"v_mov_b32 v7, {MISC}")
    a(f"v_mov_b32 v{Z+4}, s{sTW}")
    a(f"v_lshlrev_b32 v{Z+5}, 2, v1")
    a("s_mov_b64 exec, 1")
    a(f"ds_max_u32 v7, v{Z+4}")
    a("s_mov_b64 exec, -1")
    a(f"v_add_u32 v6, {CNT}, v{Z+5}")
    a("s_waitcnt lgkmcnt(0)")
    st("pb3")
    a("s_barrier")
    st("b3")
    a(f"ds_read_b32 v{Z+5}, v6")
    a(f"ds_read_b32 v{Z+4}, v7")
    for l in w2_loads(range(0, 2)): a(l)
    for r in range(2):
        a(f"v_and_b32 v{R[r]+2}, 0x3fff, v{R[r]+2}")
        a(f"v_lshl_add_u32 v{SU[r]}, v{AC[r]}, 2, s{sSA}")
    a("s_waitcnt lgkmcnt(1)")
    a(f"v_add_u32 v7, 1, v{Z+5}")
    a("v_and_b32 v7, -2, v7")
    a(f"v_sub_u32 v6, v{OH}, v7")
    a(f"v_cvt_f32_u32 v{Z+5}, v{Z+5}")
    D7 = lambda ctl: a(f"v_add_u32_dpp v7, v7, v7 {ctl}")
    D7("row_shr:1 row_mask:0xf bank_mask:0xf bound_ctrl:0")
    a(f"v_mov_b32 v{Z+6}, {BLKSZ - 512}")
    a(f"v_mov_b32 v{Z+7}, {BLKSZ}")
    D7("row_shr:2 row_mask:0xf bank_mask:0xf bound_ctrl:0")
    a(f"v_add_u32 v{BA}, s{sBLK}, v4")
    a(f"v_lshrrev_b32 v{IA}, 3, v1")
    D7("row_shr:4 row_mask:0xf bank_mask:0xf bound_ctrl:0")
    a(f"v_lshl_add_u32 v{IA}, v{IA}, 2, s{sIDX}")
    a("s_waitcnt lgkmcnt(0)")
    D7("row_shr:8 row_mask:0xf bank_mask:0xf bound_ctrl:0")
    a(f"v_readfirstlane_b32 s{t2}, v{Z+4}")
    a(f"v_mov_b32 v{Z+4}, 0x3f80")
    D7("row_bcast:15 row_mask:0xa bank_mask:0xf")
    a("v_add_u32 v6, v6, v7")
    for r in range(2):
        a(f"ds_bpermute_b32 v{BP[r]}, v{AC[r]}, v6")
    a(f"v_readlane_b32 s{t0}, v7, 31")
    a(f"v_readlane_b32 s{t1}, v7, 63")
    for l in w2_loads(range(2, 5)): a(l)
    a(f"s_mov_b32 s{sF1}, 0")
    a(f"s_cmp_eq_u32 s{sWIN}, 0")
    a(f"s_cselect_b32 s{sNT}, s{t0}, s{t1}")
    a(f"s_add_u32 s{sNT}, s{sNT}, 31")
    a(f"s_lshr_b32 s{sNT}, s{sNT}, 5")
    a(f"s_max_u32 s{t0}, s{t0}, s{t1}")
    a(f"s_cmp_gt_u32 s{t0}, {MAXT*32}")
    a(f"s_cselect_b32 s{t0}, 0x7fffffff, s{t2}")
    a(f"s_cmp_gt_u32 s{t0}, s{sCAP}")
    a("s_cbranch_scc1 K2_OV")
    a.label("K2_NOOV")
    t = [AO + k for k in range(8)]
    for r in range(2):
        a(f"s_waitcnt lgkmcnt({1-r})" if r == 0 else f"s_cmp_eq_u64 s[{sM1}:{sM1+1}], 0")
        if r == 1:
            a("s_cbranch_scc1 K2_SC1")
            a(f"s_waitcnt lgkmcnt({4 if nogather else 5})")
        p = BP[r]
        a(f"v_add_u32 v{p}, v{p}, v{RK[r]}")
        a(f"v_bfe_u32 v{t[0]}, v{p}, 5, 11")
        a(f"v_mad_u32_u16 v{t[1]}, v{p}, 4, s{sIDX}")
        a(f"v_mad_u32_u24 v{t[2]}, v{t[0]}, v{Z+6}, s{sBLK}")
        a(f"v_mad_u32_u24 v{t[3]}, v{t[0]}, v{Z+7}, v{SU[r]}")
        a(f"v_mad_u32_u16 v{t[2]}, v{p}, 16, v{t[2]}")
        a(f"v_and_b32 v{t[4]}, 4, v{p}")
        a(f"v_lshrrev_b32 v{t[5]}, 1, v{p}")
        a(f"v_lshl_add_u32 v{t[3]}, v{t[4]}, 7, v{t[3]}")
        a(f"v_mad_u32_u16 v{t[4]}, v{p}, 1, v{t[2]} op_sel:[1,0,0,0]")
        a(f"v_and_or_b32 v{t[3]}, v{t[5]}, 12, v{t[3]}")
        a(f"v_and_or_b32 v{t[3]}, v{p}, 2, v{t[3]}")
        a(f"s_mov_b64 exec, s[{(sM0, sM1)[r]}:{(sM0, sM1)[r]+1}]")
        if not nogather:
            a(f"ds_write_b32 v{t[1]}, v{R[r]+2}")
        a(f"ds_write_b16 v{t[4]}, v{Z+4}")
        a(f"ds_write_b64 v{t[2]}, {vr(R[r],2)} offset:1536")
        a(f"ds_write_b64 v{t[2]}, {vr(R[r],2)} offset:1032")
        a(f"ds_write_b16 v{t[3]}, v{Z+4} offset:2048")
        a("s_mov_b64 exec, -1")
    a.label("K2_SC1")
    a(f"v_add_f32 v{DEG}, v{DEG}, v{Z+5}")
    a("s_waitcnt vmcnt(5) lgkmcnt(0)")
    st("pb4")
    a("s_barrier")
    st("b4")
    for l in idx_reads(0): a(l)
    a(f"s_cmp_eq_u32 s{sF2}, 0")
    a("s_cbranch_scc1 K2_NF4")
    for s in range(4, 8):
        for c in range(2):
            a(f"ds_read_b128 {vr(WBQ+4*(4*c+s-4),4)}, v3 offset:{(8*c+s)*1024}")
    a("s_waitcnt lgkmcnt(8)")
    for l in dma(0): a(l)
    for l in idx_reads(1): a(l)
    lo()
    a("s_cmp_lg_u32 s3, 7")
    a("s_cbranch_scc1 K2_NMX2")
    mx = [MX[k] + q for k in range(5) for q in range(4)]
    for k in range(1, 10):
        a(f"v_max3_u32 v{mx[0]}, v{mx[0]}, v{mx[2*k-1]}, v{mx[2*k]}")
    a(f"v_max_u32 v{Z}, v{mx[0]}, v{mx[19]}")
    a(f"v_max3_u32 v{MX[5]}, v{MX[5]}, v{MX[5]+1}, v{MX[5]+2}")
    a(f"v_max_u32 v{Z+1}, v{MX[5]}, v{MX[5]+3}")
    for sh in (1, 2, 4, 8):
        a("s_nop 0")
        for k in range(2):
            a(f"v_max_u32_dpp v{Z+k}, v{Z+k}, v{Z+k} row_shr:{sh} row_mask:0xf bank_mask:0xf bound_ctrl:0")
    for bc, rm in ((15, "0xa"), (31, "0xc")):
        a("s_nop 0")
        for k in range(2):
            a(f"v_max_u32_dpp v{Z+k}, v{Z+k}, v{Z+k} row_bcast:{bc} row_mask:{rm} bank_mask:0xf")
    a(f"v_mov_b32 v7, {MISC + 4}")
    a("s_mov_b32 exec_lo, 0")
    a("s_mov_b32 exec_hi, 0x80000000")
    a(f"ds_write2_b32 v7, v{Z}, v{Z+1} offset0:0 offset1:1")
    a("s_mov_b64 exec, -1")
    a.label("K2_NMX2")
    a("v_and_b32 v7, 1, v1")
    a("v_lshlrev_b32 v7, 4, v7")
    a("v_mov_b32 v6, 0x3f80")
    a("v_lshlrev_b32 v7, v7, v6")
    for k in range(8):
        a(f"v_mov_b32 v{IDN+k}, 0")
    a("s_waitcnt lgkmcnt(0)")
    k = 0
    for s in range(4, 8):
        for c in range(2):
            a(mfma(S + 16*c, T0 + 4*s, WBQ + 4*(4*c+s-4), S + 16*c))
            i, q = k >> 2, k & 3
            a(f"s_mov_b32 exec_lo, {hex(3 << (16*i + 2*q))}")
            a(f"s_mov_b32 exec_hi, {hex(3 << (16*i + 8 + 2*q))}")
            a(f"v_mov_b32 v{IDN+4*i+q}, v7")
            a("s_mov_b64 exec, -1")
            k += 1
    a(f"v_mov_b32 v7, {MISC + 4}")
    a("s_barrier")
    a(f"ds_read2_b32 {vr(Z+4,2)}, v7 offset0:0 offset1:1")
    for l in dma(4096): a(l)
    a(f"s_mov_b32 s{sSLOW}, {1 if force_slow else 0}")
    a(f"s_mov_b32 s{sF2}, 0")
    a(f"s_mov_b32 s{sNB}, 1")
    for c in range(2):
        q = S + 16*c
        for r in range(16):
            a(f"v_add_f32 v{q+r}, v{q+r}, v{CST+4*c+2}")
        a(f"v_max_f32 v6, |v{q}|, |v{q+1}|")
        for r in range(2, 16, 2):
            a(f"v_max3_f32 v6, |v{q+r}|, |v{q+r+1}|, v6")
        for p in range(8):
            a(f"v_cvt_pk_bf16_f32 v{QB+8*c+p}, v{q+2*p}, v{q+2*p+1}")
        if c == 0:
            a("s_waitcnt lgkmcnt(0)")
        a(f"v_fma_f32 v7, v{Z+5}, v{CST+4*c+3}, v{Z+4}")
        a("v_add_f32 v6, v7, v6")
        a("v_cmp_nge_f32 vcc, 0x42700000, v6")
        a("s_mov_b32 exec_lo, 0")
        for p in range(2):
            a(f"v_mov_b32 v{QB+8*c+4+p}, v{CST+4*c+p}")
            a(f"v_mov_b32 v{QB+8*c+6+p}, 0")
        a("s_mov_b32 exec_lo, -1")
        a("s_mov_b32 exec_hi, 0")
        for p in range(2):
            a(f"v_mov_b32 v{QB+8*c+6+p}, v{CST+4*c+p}")
        a("s_mov_b32 exec_hi, -1")
        a("s_cmp_lg_u64 vcc, 0")
        a(f"s_cselect_b32 s{sSLOW}, 1, s{sSLOW}")
    a(f"s_cmp_lt_u32 s{sNT}, 2")
    a(f"s_cselect_b32 s{t0}, 1, s{sSLOW}")
    a(f"s_cmp_eq_u32 s{sCAP}, {CAP2}")
    a("s_cbranch_scc1 K2_SLOW0")
    a(f"s_mov_b32 s{sI}, s{sNT}")
    a(f"s_cmp_lg_u32 s{t0}, 0")
    a("s_cbranch_scc1 K2_SLOW")
    for l in ao_reads(0) + idx_reads(2): a(l)
    a("s_waitcnt vmcnt(4)")
    st("loop")
    a.cyc(71)
    for l in pf_reads(0): a(l)
    a("s_waitcnt lgkmcnt(0)")
    for l in zmf(0): a(l)
    for l in dma(0): a(l)
    a(f"s_cmp_lg_u32 s{sWIN}, 0")
    a("s_cbranch_scc1 K2_FA")
    a("s_nop 1")
    fast_loop(a, "B")
    a.label("K2_FA")
    a("s_nop 1")
    fast_loop(a, "A")
    a.label("K2_W7")
    a("s_waitcnt vmcnt(12)")
    a("s_branch K2_J3")
    a.label("K2_Z6")
    a("s_cmp_eq_u32 s3, 7")
    a("s_cbranch_scc1 K2_Z7B")
    a("s_mov_b32 exec_hi, 0")
    a(f"ds_write_b64 v7, {vr(Z+4,2)}")
    a("s_mov_b32 exec_hi, -1")
    a("s_branch K2_Z7")
    a.label("K2_Z7B")
    a("v_lshlrev_b32 v7, 3, v1")
    a(f"v_add_u32 v7, {CNT}, v7")
    a("s_mov_b32 exec_hi, 1")
    a(f"ds_write_b32 v7, v{Z}")
    a("s_mov_b32 exec_hi, 0")
    a(f"ds_write_b32 v7, v{Z} offset:4")
    a("s_mov_b32 exec_hi, -1")
    a("s_branch K2_Z7")
    a.label("K2_NF3")
    a("s_waitcnt vmcnt(0) lgkmcnt(0)")
    a("s_barrier")
    a("s_branch K2_J3")
    a.label("K2_NF4")
    a("s_waitcnt lgkmcnt(0)")
    for l in dma(0) + idx_reads(1): a(l)
    a("s_waitcnt lgkmcnt(0)")
    for l in dma(4096): a(l)
    a("s_branch K2_SLOW")
    a.label("K2_OV")
    a(f"s_cmp_eq_u32 s{sCAP}, {CAP2}")
    a("s_cbranch_scc1 K2_NOOV")
    a(f"s_mov_b32 s{sCAP}, {CAP2}")
    a(f"s_add_u32 s{t2}, s{t2}, {CAP2-1}")
    a(f"s_mul_hi_u32 s{sNB2}, s{t2}, {hex((2**32 + CAP2 - 1)//CAP2)}")
    a("s_waitcnt lgkmcnt(0)")
    a("s_barrier")
    a.label("K2_BATCH")
    for k in range(4):
        a(f"v_mov_b32 v{Z+k}, 0")
    a(f"v_lshlrev_b32 v{ZA}, 4, v0")
    a(f"v_add_u32 v{ZA}, {BLK}, v{ZA}")
    clear(0, NZ0 + NZ1 + NZ2)
    a(f"v_lshl_add_u32 v{LR}, v1, 2, s{sLIST}")
    a(f"v_add_u32 v{L64}, 64, v1")
    a("s_branch K2_GEN")
    a.label("K2_GEN0")
    a(f"v_readlane_b32 s{sTW}, v{VBASE}, 63")
    a(f"v_sub_u32 v{VBASE}, v{VBASE}, v{VCNT}")
    a.label("K2_GEN")
    a(f"s_add_u32 s{t0}, s{sLO}, s{sCAP}")
    a(f"s_lshl_b32 s{t2}, s{sLO}, 2")
    a(f"s_sub_u32 s{t2}, s{sLIST}, s{t2}")
    a(f"v_max_u32 v6, s{sLO}, v{VBASE}")
    a(f"v_add_u32 v7, v{VBASE}, v{VCNT}")
    a(f"v_min_u32 v7, s{t0}, v7")
    a(f"v_sub_u32 v{LA}, v6, v{VBASE}")
    a(f"v_lshl_add_u32 v{LA}, v{LA}, 5, v{VREC}")
    a("v_sub_u32 v7, v7, v6")
    a(f"v_lshl_add_u32 v6, v6, 2, s{t2}")
    a.label("K2_EXP")
    for j in range(4):
        a(f"v_cmpx_lt_i32 vcc, {j}, v7")
        a(f"ds_write_b32 v6, v{LA} offset:{4*j}")
        a(f"v_add_u32 v{LA}, 32, v{LA}")
    a("v_cmpx_lt_i32 vcc, 4, v7")
    a("v_add_u32 v6, 16, v6")
    a("v_subrev_u32 v7, 4, v7")
    a(f"s_sub_u32 s{t0}, s{sTW}, s{sLO}")
    a(f"s_max_i32 s{t0}, s{t0}, 0")
    a(f"s_min_u32 s{t0}, s{t0}, s{sCAP}")
    a("s_nop 1")
    a("s_cbranch_execnz K2_EXP")
    a("s_branch K2_LISTED")
    a.label("K2_SLOW0")
    a(f"s_mov_b32 s{sNB}, s{sNB2}")
    a.label("K2_SLOW")
    a(f"s_mov_b32 s{sI}, s{sNT}")
    a(f"s_cmp_lg_u32 s{sSINIT}, 0")
    a("s_cbranch_scc1 K2_SL1")
    for l in w2_loads(range(5, 9)): a(l)
    for r in range(32):
        a(f"v_mov_b32 v{S+r}, 0")
    a(f"s_mov_b32 s{sSINIT}, 1")
    a.label("K2_SL1")
    a(f"s_cmp_eq_u32 s{sNT}, 0")
    a("s_cbranch_scc1 K2_BDONE")
    a(f"s_mov_b32 s{t1}, s{sRING}")
    a.label("K2_SLOOP")
    a("s_waitcnt vmcnt(0)")
    for l in pf_reads(0) + ao_reads(0) + [so_read(0, 0)] + idx_reads(2): a(l)
    a("s_waitcnt lgkmcnt(0)")
    for l in dma(0): a(l)
    for c in range(2):
        for l in zmf(c): a(l)
        a("s_nop 15")
        for l in exps(c): a(l)
        for r in range(16): a(f"v_add_f32 v{DD+r}, 1.0, v{DD+r}")
        for r in range(16): a(f"v_rcp_f32 v{DD+r}, v{DD+r}")
        for j in range(8):
            a(f"v_mul_f32 v{HF+j}, v{TT[c]+2*j}, v{DD+2*j}")
        for j in range(8):
            a(f"v_fma_f32 v{HF+j}, v{TT[c]+2*j+1}, v{DD+2*j+1}, v{HF+j}")
        for l in cvts(): a(l)
        a("s_nop 1")
        a(ssmf(c, 0))
    for k in range(4):
        a(f"v_xor_b32 v{PA+k}, 0x1000, v{PA+k}")
    a(f"s_xor_b32 s{sRING}, s{sRING}, 0x1000")
    a(f"v_add_u32 v{BA}, {BLKSZ}, v{BA}")
    a(f"v_add_u32 v{IA}, 128, v{IA}")
    a(f"s_sub_u32 s{sI}, s{sI}, 1")
    a(f"s_cmp_lg_u32 s{sI}, 0")
    a("s_cbranch_scc1 K2_SLOOP")
    a(f"s_xor_b32 s{t0}, s{t1}, s{sRING}")
    a(f"s_mov_b32 s{sRING}, s{t1}")
    for k in range(4):
        a(f"v_xor_b32 v{PA+k}, s{t0}, v{PA+k}")
    a.label("K2_BDONE")
    a(f"s_add_u32 s{sLO}, s{sLO}, s{sCAP}")
    a(f"s_sub_u32 s{sNB}, s{sNB}, 1")
    a(f"s_cmp_eq_u32 s{sNB}, 0")
    a("s_cbranch_scc1 K2_EPI")
    a("s_waitcnt vmcnt(0) lgkmcnt(0)")
    a("s_barrier")
    a("s_branch K2_BATCH")
    a.label("K2_EPI")
    st("epi")
    a.cyc(81)
    if diag: a("s_sub_u32 s71, s81, s71")
    DG = T1
    a(f"v_and_b32 v6, 0xffff0000, v{DEG}")
    a(f"v_sub_f32 v{HF+1}, v{DEG}, v6")
    a(f"v_and_b32 v{HF}, 0xffff0000, v{HF+1}")
    a(f"v_sub_f32 v{HF+1}, v{HF+1}, v{HF}")
    a("v_lshrrev_b32 v6, 16, v6")
    a(f"v_or_b32 v{HF}, v{HF}, v6")
    a(f"v_lshrrev_b32 v{HF+1}, 16, v{HF+1}")
    a("v_and_b32 v2, 15, v1")
    a("v_lshrrev_b32 v5, 4, v1")
    a("v_bfe_u32 v6, v1, 2, 1")
    a("v_and_b32 v7, 3, v1")
    a("v_add_u32 v7, 16, v7")
    a(f"v_lshlrev_b32 v{HF+2}, 2, v2")
    a(f"v_add_u32 v{HF+3}, 128, v{HF+2}")
    a(f"v_lshl_add_u32 v{HF+4}, v6, 5, v7")
    a(f"v_lshlrev_b32 v{HF+4}, 2, v{HF+4}")
    for tl in range(3):
        for k in range(2):
            a(f"ds_bpermute_b32 v{DG+4*tl+k}, v{HF+2+tl}, v{HF+k}")
        a(f"v_mov_b32 v{DG+4*tl+2}, 0")
        a(f"v_mov_b32 v{DG+4*tl+3}, 0")
    a(f"s_mov_b32 s{t1}, {hex(f32bits(-LN2))}")
    a(f"v_add_u32 v3, s{sRING}, v4")
    for c in range(2):
        for r in range(16):
            a(f"v_mul_f32 v{S+16*c+r}, s{t1}, v{S+16*c+r}")
        for p in range(8):
            a(f"v_cvt_pk_bf16_f32 v{DD+8*c+p}, v{S+16*c+2*p}, v{S+16*c+2*p+1}")
    a("s_waitcnt vmcnt(0)")
    for k in range(4):
        a(f"ds_write_b128 v3, {vr(DD+4*k,4)} offset:{1024*k}")
    RA, RR, SA, SR = HF, HF + 1, HF + 2, HF + 3
    a(f"v_lshlrev_b32 v{RA}, 9, v5")
    a(f"v_lshl_add_u32 v{RR}, v7, 4, v{RA}")
    a(f"v_lshl_add_u32 v{RR}, v6, 15, v{RR}")
    a(f"v_lshl_add_u32 v{RA}, v2, 4, v{RA}")
    a(f"v_lshlrev_b32 v{SA}, 3, v5")
    a(f"v_mul_u32_u24 v{SR}, s{sNA}, v6")
    a(f"v_add_u32 v{SR}, v{SR}, v7")
    a(f"v_lshl_add_u32 v{SR}, v{SR}, 8, v{SA}")
    a(f"v_lshl_add_u32 v{SA}, v2, 8, v{SA}")
    a(f"s_sub_u32 s{t0}, s{sNB_}, s{sNA}")
    a(f"v_mul_i32_i24 v6, s{t0}, v6")
    a(f"v_add_u32 v6, s{sNA}, v6")
    a("v_cmp_gt_u32 vcc, v6, v7")
    a("s_mov_b32 s72, 0x00ff00ff")
    a("s_mov_b32 s73, 0x00ff00ff")
    a("s_and_b64 vcc, vcc, s[72:73]")
    a(f"s_lshl_b32 s{t0}, s{sN0}, 8")
    a(f"s_lshl_b32 s{t1}, s3, 5")
    a(f"s_add_u32 s{t0}, s{t0}, s{t1}")
    a(f"s_lshl_b32 s{t1}, s{sNA}, 8")
    a(f"s_add_u32 s{t1}, s{t1}, s{t0}")
    ACC = T0
    a("s_waitcnt lgkmcnt(4)")
    for tl in range(3):
        a(mfma16(ACC + 4*tl, W2R + 32, DG + 4*tl, None))
    a("s_waitcnt lgkmcnt(0)")
    a("s_barrier")
    st("epb")
    XB = S
    jobs = [(ct, tl) for ct in range(8) for tl in range(3)]
    def xr(k):
        ct, tl = jobs[k]
        off = (ct >> 1) * 8192 + (ct & 1) * 2048 + (32768 if tl == 1 else 0)
        return f"ds_read_b128 {vr(XB+4*(k&7),4)}, v{RR if tl == 2 else RA} offset:{off}"
    for k in range(8): a(xr(k))
    for k, (ct, tl) in enumerate(jobs):
        a(f"s_waitcnt lgkmcnt({min(7, 23-k)})")
        a(mfma16(ACC + 4*tl, W2R + 4*ct, XB + 4*(k & 7), ACC + 4*tl))
        if k + 8 < 24:
            a(xr(k + 8))
    a("s_nop 5")
    for tl in range(3):
        for p in range(2):
            a(f"v_cvt_pk_bf16_f32 v{DD+2*tl+p}, v{ACC+4*tl+2*p}, v{ACC+4*tl+2*p+1}")
        if tl == 2:
            a("s_mov_b64 exec, vcc")
        a(f"buffer_store_dwordx2 {vr(DD+2*tl,2)}, v{SR if tl == 2 else SA}, s[{sOUT}:{sOUT+3}], s{t1 if tl == 1 else t0} offen")
    if diag:
        st("end")
        a("s_waitcnt vmcnt(0)")
        st("drained")
        if OPT.get("trace"):
            a("s_mov_b64 exec, -1")
            a("v_writelane_b32 v186, s81, 20")
            a("s_sub_u32 s90, s81, s71")
            a("v_writelane_b32 v186, s90, 21")
            a(f"v_writelane_b32 v186, s{sNT}, 22")
            a.srd(84, 22, 0x80000, WS_STAMP + 0x100000)
            a("s_lshl_b32 s90, s89, 3")
            a("s_add_u32 s90, s90, s3")
            a("s_lshl_b32 s90, s90, 8")
            a("v_lshlrev_b32 v6, 2, v1")
            a("buffer_store_dword v186, v6, s[84:87], s90 offen")
        if "smap" not in OPT: a("s_mov_b32 s100, s71")
        a("s_lshl_b32 s89, s89, 1")
        a(f"s_add_u32 s89, s89, s{sWIN}")
        a.stamp_flush(22, 1, 89, sWV)
    a.label("K2_END")
    a("s_endpgm")
    return a.text()
```

```python
import sys
from common import *
from k1 import gen_k1, K1_LDS, K1_VGPR, K1_BLOCK
from k2 import gen_k2, K2_LDS, K2_VGPR, K2_BLOCK

HEADER = open("gather_scatter__edge_featured_mpnn_mpnn__graph.s.ref").read().split("; Override launch")[0]

def build(order=("sort","gemm"), extra=0, diag=False, dup1=1, dup2=1, pre=0, pf='nt', rf='', cpf=16, xc=True, wf='', wfirst=False, slast=False, sprio=False, elate=1, **kw):
    k1, n1 = gen_k1(order, diag, pf, rf, cpf, xc, wf, wfirst, slast, sprio, elate)
    k2 = gen_k2(diag=diag, **kw)
    s = HEADER
    nop = "; @launch kernel=mpnn_nop_kernel grid=(256,1,1) block=(256,1,1) lds=0\n"
    s += nop * pre
    s += f"; @launch kernel=mpnn_pre_kernel grid=({n1},1,1) block=({K1_BLOCK},1,1) lds={K1_LDS}\n" * dup1
    s += nop * extra
    s += f"; @launch kernel=mpnn_main_kernel grid=({NBKT},1,1) block=({K2_BLOCK},1,1) lds={K2_LDS}\n" * dup2
    s += '.amdgcn_target "amdgcn-amd-amdhsa--gfx950"\n'
    s += entry("mpnn_pre_kernel") + k1
    s += entry("mpnn_main_kernel") + k2
    if extra or pre:
        s += entry("mpnn_nop_kernel") + "    s_endpgm\n"
    s += descriptor("mpnn_pre_kernel", K1_VGPR) + descriptor("mpnn_main_kernel", K2_VGPR)
    if extra or pre:
        s += descriptor("mpnn_nop_kernel", 8)
    return s

if __name__ == "__main__":
    out = sys.argv[1] if len(sys.argv) > 1 else "gather_scatter__edge_featured_mpnn_mpnn__graph.s"
    kw = eval("dict(" + (sys.argv[2] if len(sys.argv) > 2 else "") + ")")
    open(out, "w").write(build(**kw))
```

```python
from common import *

K1_LDS = 49152
K1_VGPR = 128
K1_BLOCK = 320


SF = {"p": "", "r": ""}


def gen_k1(order=("sort", "gemm"), diag=False, pf="", rf="", cpf=16):
    SF["p"], SF["r"] = pf, rf
    a = Asm()
    a.diag = diag
    total = NCHUNK + NGEMMW
    a(f"s_cmp_ge_u32 s2, {total}")
    a("s_cbranch_scc1 K1_END")
    a.stamp(0)
    a.cyc(88)
    if diag:
        a("s_mov_b32 s89, s2")
        for k in range(1, 10): a(f"s_mov_b32 s{92+k}, 0")
    a("s_load_dwordx16 s[4:19], s[0:1], 0")
    a("s_load_dwordx2 s[20:21], s[0:1], 80")
    a("v_lshrrev_b32 v2, 6, v0")
    a("v_and_b32 v1, 63, v0")
    a("v_readfirstlane_b32 s3, v2")
    if cpf:
        a(f"s_cmp_ge_u32 s2, {cpf}")
        a("s_cbranch_scc1 K1_NOPF")
        a("s_getpc_b64 s[60:61]")
        a.label("K1_PC")
        a("s_mov_b32 s62, K2_END-K1_PC")
        a("s_mov_b32 s63, 0x00020000")
        a("v_lshlrev_b32 v60, 7, v0")
        a("buffer_load_dword v61, v60, s[60:63], 0 offen")
        a.label("K1_NOPF")
    a(f"s_cmp_ge_u32 s2, {NCHUNK}")
    a("s_cbranch_scc1 K1_gemm")

    def fin():
        if diag:
            a.stamp(8)
            a("s_waitcnt vmcnt(0)")
            a.stamp(9)
            a("s_cmp_eq_u32 s3, 4")
            a("s_cbranch_scc1 K1_END")
            a.stamp_flush(20, 0, 89, 3)
        a("s_endpgm")
    k1_sort(a, 0)
    a("s_branch K1_sort2")
    a.label("K1_gemm")
    a(f"s_sub_u32 s2, s2, {NCHUNK}")
    k1_gemm(a)
    fin()
    a.label("K1_sort2")
    k1_sort(a, 1)
    fin()
    a.label("K1_prep")
    k1_prep(a)
    a.label("K1_END")
    a("s_endpgm")
    return a.text(), total


def k1_sort_head(a):
    HIST, STRT, EMX, RB = 0, 2048, 4096, 4352
    DST, SRC, EV, BK, RK = 8, 12, 16, 24, 28
    a("v_lshlrev_b32 v3, 4, v0")
    a("v_lshlrev_b32 v4, 5, v0")
    a("v_lshlrev_b32 v5, 3, v0")
    a("v_mov_b32 v6, 0")
    a("v_mov_b32 v7, 0")
    a(f"s_mul_i32 s22, s2, {CH*4}")
    a(f"s_mul_i32 s23, s2, {CH*8}")
    a(f"ds_write_b64 v5, v[6:7] offset:{HIST}")
    a(f"ds_write_b32 v6, v6 offset:{EMX}")
    a("s_waitcnt lgkmcnt(0)")
    a.srd(24, 10, E * 4)
    a(f"buffer_load_dwordx4 {vr(DST,4)}, v3, s[24:27], s22 offen")
    a.srd(32, 6, E * 8)
    a(f"buffer_load_dwordx4 {vr(EV,4)}, v4, s[32:35], s23 offen")
    a(f"buffer_load_dwordx4 {vr(EV+4,4)}, v4, s[32:35], s23 offen offset:16")
    a.srd(28, 8, E * 4)
    a(f"buffer_load_dwordx4 {vr(SRC,4)}, v3, s[28:31], s22 offen")


def k1_sort(a, part):
    HIST, STRT, EMX, RB = 0, 2048, 4096, 4352
    DST, SRC, EV, BK, RK = 8, 12, 16, 24, 28
    if part == 0:
        return k1_sort_head(a)
    a.srd(40, 20, E * 16, WS_REC)
    a.srd(44, 20, NCHUNK * NWIN * 4, WS_TAB)
    a.srd(48, 20, NCHUNK * 4, WS_EMAX)
    a("v_mov_b32 v32, 1")
    a(f"s_movk_i32 s37, {BM}")
    a("s_mov_b32 s52, 0x7fff7fff")
    a("v_lshlrev_b32 v33, 5, v1")
    a("s_barrier")
    a.stamp(1)
    a("s_waitcnt vmcnt(3)")
    a.stamp(2)
    for j in range(4):
        a(f"v_mul_u32_u24 v{BK+j}, s37, v{DST+j}")
    for j in range(4):
        a(f"v_lshrrev_b32 v{BK+j}, 16, v{BK+j}")
    for j in range(4):
        a(f"v_lshlrev_b32 v{BK+j}, 2, v{BK+j}")
        a(f"ds_add_rtn_u32 v{RK+j}, v{BK+j}, v32 offset:{HIST}")
    a("s_waitcnt vmcnt(1)")
    for j in range(8):
        a(f"v_and_b32 v{36+j}, s52, v{EV+j}")
    for st in (1, 2, 4):
        for j in range(0, 8, 2*st):
            a(f"v_pk_max_u16 v{36+j}, v{36+j}, v{36+j+st}")
    a("v_lshlrev_b32 v37, 16, v36")
    a("v_and_b32 v36, 0xffff0000, v36")
    a("v_max_u32 v36, v36, v37")
    dpp_max64(a, 36)
    a("s_mov_b32 exec_lo, 0")
    a("s_mov_b32 exec_hi, 0x80000000")
    a(f"ds_max_u32 v6, v36 offset:{EMX}")
    a("s_mov_b64 exec, -1")
    a("s_waitcnt lgkmcnt(0)")
    a("s_barrier")
    a.stamp(3)
    a(f"ds_read_b128 v[40:43], v33 offset:{HIST}")
    a(f"ds_read_b128 v[44:47], v33 offset:{HIST+16}")
    a(f"ds_read_b32 v34, v6 offset:{EMX}")
    a("s_waitcnt vmcnt(0)")
    for j in range(4):
        a(f"v_lshl_or_b32 v{SRC+j}, v{DST+j}, 14, v{SRC+j}")
    a("s_waitcnt lgkmcnt(1)")
    a("v_mov_b32 v48, 0")
    a("v_mov_b32 v49, v40")
    for k in range(2, 8):
        a(f"v_add_u32 v{48+k}, v{48+k-1}, v{40+k-1}")
    a("v_add_u32 v56, v55, v47")
    a("v_mov_b32 v57, v56")
    dpp_scan64(a, 56)
    a("v_sub_u32 v56, v56, v57")
    for k in range(8):
        a(f"v_add_u32 v{48+k}, v{48+k}, v56")
    a(f"ds_write_b128 v33, v[48:51] offset:{STRT}")
    a(f"ds_write_b128 v33, v[52:55] offset:{STRT+16}")
    a("s_waitcnt lgkmcnt(0)")
    for j in range(4):
        a(f"ds_read_b32 v{BK+j}, v{BK+j} offset:{STRT}")
    a("s_cmp_lg_u32 s3, 4")
    a("s_cbranch_scc1 K1S_notab")
    for k in range(8):
        a(f"v_lshl_or_b32 v{40+k}, v{40+k}, 16, v{48+k}")
    a("s_lshl_b32 s53, s2, 11")
    a("s_lshl_b32 s54, s2, 2")
    a(f"buffer_store_dwordx4 v[40:43], v33, s[44:47], s53 offen {SF['r']}")
    a(f"buffer_store_dwordx4 v[44:47], v33, s[44:47], s53 offen offset:16 {SF['r']}")
    a("s_mov_b64 exec, 1")
    a("buffer_store_dword v34, v6, s[48:51], s54 offen")
    a("s_mov_b64 exec, -1")
    a.label("K1S_notab")
    a(f"s_mul_i32 s53, s2, {CH*16}")
    for j in range(4):
        a(f"s_waitcnt lgkmcnt({3 - j + 2*j})")
        a(f"v_add_lshl_u32 v{BK+j}, v{BK+j}, v{RK+j}, 4")
        a(f"ds_write_b64 v{BK+j}, {vr(EV+2*j,2)} offset:{RB}")
        a(f"ds_write_b32 v{BK+j}, v{SRC+j} offset:{RB+8}")
    a("s_waitcnt lgkmcnt(0)")
    a("s_barrier")
    a.stamp(4)
    for j in range(4):
        a(f"ds_read_b128 {vr(40+4*j,4)}, v3 offset:{RB + 5120*j}")
    for j in range(4):
        a(f"s_waitcnt lgkmcnt({3-j})")
        a(f"buffer_store_dwordx4 {vr(40+4*j,4)}, v3, s[40:43], s53 offen {SF['r']}")
        if j < 3:
            a("s_add_u32 s53, s53, 5120")


def k1_prep(a):
    a(f"s_cmp_ge_u32 s2, {NFRAG}")
    a("s_cbranch_scc1 K1_END")
    a("v_and_b32 v3, 31, v1")
    a("v_lshlrev_b32 v3, 1, v3")
    a("v_lshrrev_b32 v4, 5, v1")
    a("v_lshlrev_b32 v5, 4, v1")
    a(f"s_mov_b32 s38, {hex(f32bits(-LOG2E))}")
    a("s_lshl_b32 s22, s2, 10")
    a("s_waitcnt lgkmcnt(0)")
    a.srd(40, 20, NFRAG * 1024, WS_WB)
    a.srd(24, 12, 260 * 512)
    a("s_cmp_ge_u32 s2, 136")
    a("s_cbranch_scc1 K1P_cst")
    a("s_cmp_ge_u32 s2, 64")
    a("s_cbranch_scc1 K1P_w2")
    a("v_lshl_add_u32 v3, v4, 12, v3")
    a("s_lshr_b32 s23, s2, 3")
    a("s_and_b32 s36, s2, 7")
    a("s_lshl_b32 s23, s23, 6")
    a("s_lshl_b32 s36, s36, 13")
    a("s_add_u32 s23, s23, s36")
    a("s_add_u32 s23, s23, 0x10000")
    for j in range(8):
        a(f"buffer_load_ushort v{8+j}, v3, s[24:27], s23 offen offset:{512*j}")
    a("s_barrier")
    a("s_waitcnt vmcnt(0)")
    for j in range(8):
        a(f"v_lshlrev_b32 v{8+j}, 16, v{8+j}")
    for j in range(8):
        a(f"v_mul_f32 v{8+j}, s38, v{8+j}")
    for q in range(4):
        a(f"v_cvt_pk_bf16_f32 v{16+q}, v{8+2*q}, v{9+2*q}")
    a("buffer_store_dwordx4 v[16:19], v5, s[40:43], s22 offen")
    a("s_endpgm")
    a.label("K1P_w2")
    a("s_sub_u32 s37, s2, 64")
    a("s_mul_i32 s23, s37, 57")
    a("s_lshr_b32 s23, s23, 9")
    a("s_mul_i32 s36, s23, 9")
    a("s_sub_u32 s36, s37, s36")
    a("s_lshl_b32 s23, s23, 5")
    a("v_and_b32 v3, 15, v1")
    a("v_lshlrev_b32 v3, 1, v3")
    a("s_cmp_eq_u32 s36, 8")
    a("s_cbranch_scc1 K1P_b2")
    a.srd(24, 16, 256 * 256)
    a("v_lshl_add_u32 v3, v4, 12, v3")
    a("v_bfe_u32 v6, v1, 4, 1")
    a("v_lshl_add_u32 v3, v6, 10, v3")
    a("s_lshl_b32 s36, s36, 13")
    a("s_add_u32 s23, s23, s36")
    for j in range(8):
        a(f"buffer_load_ushort v{8+j}, v3, s[24:27], s23 offen offset:{256*(8*(j>>2)+(j&3))}")
    a("s_barrier")
    a("s_waitcnt vmcnt(0)")
    for q in range(4):
        a(f"v_lshl_or_b32 v{16+q}, v{9+2*q}, 16, v{8+2*q}")
    a("buffer_store_dwordx4 v[16:19], v5, s[40:43], s22 offen")
    a("s_endpgm")
    a.label("K1P_b2")
    a.srd(24, 18, 256)
    a("buffer_load_ushort v8, v3, s[24:27], s23 offen")
    for q in range(4):
        a(f"v_mov_b32 v{16+q}, 0")
    a("s_barrier")
    a("s_waitcnt vmcnt(0)")
    a("s_mov_b64 exec, 0xffff")
    a("v_lshl_or_b32 v16, v8, 16, v8")
    a("v_mov_b32 v17, v8")
    a("s_mov_b64 exec, -1")
    a("buffer_store_dwordx4 v[16:19], v5, s[40:43], s22 offen")
    a("s_endpgm")
    a.label("K1P_cst")
    a("s_sub_u32 s37, s2, 136")
    a("s_lshl_b32 s23, s37, 6")
    a("s_add_u32 s36, s23, 0x20000")
    a.srd(28, 14, 512)
    for k in range(4):
        a(f"buffer_load_ushort v{8+k}, v3, s[24:27], s36 offen offset:{512*k}")
    a("buffer_load_ushort v12, v3, s[28:31], s23 offen")
    a("s_barrier")
    a("s_waitcnt vmcnt(0)")
    for k in range(5):
        a(f"v_lshlrev_b32 v{8+k}, 16, v{8+k}")
    for k in range(4):
        a(f"v_mul_f32 v{8+k}, s38, v{8+k}")
    a("v_mul_f32 v18, s38, v12")
    a("v_add_f32 v19, |v8|, |v9|")
    a("v_add_f32 v19, |v10|, v19")
    a("v_add_f32 v19, |v11|, v19")
    for p in range(2):
        a(f"v_cvt_pk_bf16_f32 v{16+p}, v{8+2*p}, v{9+2*p}")
    a("s_mov_b32 exec_hi, 0")
    for p in range(2):
        a(f"v_lshlrev_b32 v6, 16, v{16+p}")
        a(f"v_and_b32 v7, 0xffff0000, v{16+p}")
        a(f"v_sub_f32 v6, v{8+2*p}, v6")
        a(f"v_sub_f32 v7, v{9+2*p}, v7")
        a(f"v_cvt_pk_bf16_f32 v{16+p}, v6, v7")
    a("s_mov_b32 exec_hi, -1")
    a("buffer_store_dwordx4 v[16:19], v5, s[40:43], s22 offen")


def k1_gemm(a):
    WL, XL = 0, 32768
    XB, WA, ACC = 32, 64, 96
    a("s_cmp_eq_u32 s3, 4")
    a("s_cbranch_scc1 K1_prep")
    a("s_lshr_b32 s22, s2, 4")
    a("s_lshl_b32 s22, s22, 3")
    a("s_and_b32 s23, s2, 7")
    a("s_add_u32 s22, s22, s23")
    a(f"s_cmp_ge_u32 s22, {NGEMM // 2}")
    a("s_cbranch_scc1 K1_END")
    a("s_bfe_u32 s23, s2, 0x10003")
    a("s_and_b32 s36, s3, 1")
    a("s_lshr_b32 s37, s3, 1")
    a("v_lshrrev_b32 v3, 3, v1")
    a("v_and_b32 v4, 7, v1")
    a("v_lshlrev_b32 v4, 4, v4")
    a("v_lshl_add_u32 v3, v3, 9, v4")
    a("v_and_b32 v4, 16, v1")
    a("v_lshlrev_b32 v4, 2, v4")
    a("v_xor_b32 v3, v3, v4")
    a("v_lshrrev_b32 v5, 4, v1")
    a("v_and_b32 v6, 15, v1")
    a("v_xor_b32 v6, v6, v5")
    a("v_lshlrev_b32 v6, 4, v6")
    a("v_lshl_add_u32 v8, v5, 8, v6")
    for z in range(1, 4):
        a(f"v_xor_b32 v{8+z}, {64*z}, v8")
    a("s_lshl_b32 s38, s37, 15")
    a("s_lshl_b32 s39, s23, 8")
    a("s_add_u32 s38, s38, s39")
    a("s_lshl_b32 s39, s36, 7")
    a("s_add_u32 s38, s38, s39")
    a("s_lshl_b32 s52, s36, 14")
    a("s_lshl_b32 s39, s37, 13")
    a("s_add_u32 s52, s52, s39")
    a("s_lshl_b32 s53, s22, 1")
    a("s_add_u32 s53, s53, s37")
    a("s_lshl_b32 s54, s53, 13")
    a("s_lshl_b32 s39, s36, 12")
    a("s_add_u32 s54, s54, s39")
    a("s_lshl_b32 s55, s37, 13")
    a("s_add_u32 s55, s55, s39")
    a(f"s_add_u32 m0, s55, {XL}")
    a("s_waitcnt lgkmcnt(0)")
    a.srd(24, 4, N * 256)
    for z in range(4):
        a(f"buffer_load_dwordx4 v{8+z}, s[24:27], s54 offen offset:{1024*z} lds")
    a.srd(28, 12, 260 * 512)
    for z in range(8):
        a("s_mov_b32 m0, s52")
        a("s_add_u32 s52, s52, 1024")
        a("buffer_load_dwordx4 v3, s[28:31], s38 offen lds")
        a("s_add_u32 s38, s38, 4096")
    a.srd(40, 20, N * 512, WS_P)
    a.srd(44, 20, NGEMM * 16, WS_PMAX)
    a("v_lshrrev_b32 v12, 5, v1")
    a("v_and_b32 v13, 31, v1")
    a("v_bfe_u32 v14, v1, 2, 2")
    a("v_lshl_add_u32 v14, v12, 3, v14")
    a("v_lshlrev_b32 v14, 7, v14")
    a("v_and_b32 v15, 3, v1")
    a("v_lshl_add_u32 v14, v15, 3, v14")
    a("v_bfe_u32 v15, v1, 4, 1")
    a("v_lshl_add_u32 v14, v15, 5, v14")
    a("v_bfe_u32 v15, v1, 3, 1")
    a("v_lshl_add_u32 v14, v15, 6, v14")
    a("s_lshl_b32 s39, s36, 14")
    a("v_add_u32 v14, s39, v14")
    a("v_xor_b32 v26, 64, v14")
    a("v_and_b32 v15, 15, v1")
    a("v_xor_b32 v15, v15, v12")
    a("v_lshlrev_b32 v15, 4, v15")
    a("v_lshl_add_u32 v15, v13, 8, v15")
    a("s_lshl_b32 s39, s37, 13")
    a(f"s_add_u32 s39, s39, {XL}")
    a("v_add_u32 v16, s39, v15")
    for s in range(1, 8):
        a(f"v_xor_b32 v{16+s}, {32*s}, v16")
    a("v_lshlrev_b32 v24, 4, v12")
    a("v_lshl_add_u32 v24, v13, 9, v24")
    a("s_lshl_b32 s56, s53, 14")
    a("s_lshl_b32 s39, s23, 8")
    a("s_add_u32 s56, s56, s39")
    a("s_lshl_b32 s39, s36, 7")
    a("s_add_u32 s56, s56, s39")
    a(f"s_mov_b32 s57, {hex(f32bits(-LOG2E))}")
    a.stamp(1)
    a("s_waitcnt vmcnt(0)")
    a.stamp(2)
    a("s_barrier")
    a.stamp(3)
    def reads(s):
        a(f"ds_read_b128 {vr(XB+4*s,4)}, v{16+s}")
        for T in range(2):
            for i in range(2):
                a(f"ds_read_b64_tr_b16 {vr(WA+((s&3)*2+T)*4+2*i,2)}, v{(14, 26)[T]} offset:{16*s*128+4*i*128}")
    reads(0); reads(1)
    for s in range(8):
        if s + 2 < 8:
            reads(s + 2)
            a("s_waitcnt lgkmcnt(10)")
        else:
            a(f"s_waitcnt lgkmcnt({5 if s == 6 else 0})")
        for T in range(2):
            a(mfma(ACC + 16*T, WA + ((s&3)*2+T)*4, XB + 4*s, None if s == 0 else ACC + 16*T))
    a.stamp(4)
    a("s_nop 11")
    a("v_mov_b32 v25, 0")
    for T in range(2):
        for r in range(16):
            a(f"v_mul_f32 v{ACC+16*T+r}, s57, v{ACC+16*T+r}")
        for p in range(8):
            a(f"v_cvt_pk_bf16_f32 v{XB+8*T+p}, v{ACC+16*T+2*p}, v{ACC+16*T+2*p+1}")
        a("s_nop 1")
        for gp in range(2):
            b = XB + 8*T + 4*gp
            a(f"v_permlane32_swap_b32 v{b}, v{b+2}")
            a(f"v_permlane32_swap_b32 v{b+1}, v{b+3}")
        for gp in range(2):
            b = XB + 8*T + 4*gp
            a(f"buffer_store_dwordx4 {vr(b,4)}, v24, s[40:43], s56 offen offset:{64*T+32*gp} {SF['p']}")
    for r in range(0, 32, 2):
        a(f"v_max3_f32 v25, |v{ACC+r}|, |v{ACC+r+1}|, v25")
    dpp_max64(a, 25)
    a("s_lshl_b32 s39, s22, 1")
    a("s_add_u32 s39, s39, s23")
    a("s_lshl_b32 s39, s39, 4")
    a("s_lshl_b32 s36, s3, 2")
    a("s_add_u32 s39, s39, s36")
    a("v_mov_b32 v26, 0")
    a("s_mov_b32 exec_lo, 0")
    a("s_mov_b32 exec_hi, 0x80000000")
    a("buffer_store_dword v25, v26, s[44:47], s39 offen")
```

```python
from common import *

MAXT = 13
BLKSZ = 3072
XW = 65536
IDX = XW + 10240
IDXW = MAXT * 128
CNT = IDX + 2 * IDXW
MISC = CNT + 256
LIST = MISC + 64
BLK = LIST + 4096
BLKW = MAXT * BLKSZ
K2_LDS = BLK + 2 * BLKW
CAP1, CAP2 = 128, 96
PADIDX = N
K2_BLOCK = 512
NBKT = NWIN // 2

IDN, QB, S, T0, T1, DD, MM, NN, HF, HB = 8, 16, 32, 64, 80, 96, 112, 120, 128, 136
PF, AO, SO0, IX, PA, BA, IA, DEG = 140, 156, 164, 168, 176, 180, 181, 182
VBASE, VCNT, VREC = 183, 184, 185
W2R = 188
WBQ = 224
SO1 = 224
K2_VGPR = 256
TT = (T0, T1)
SO = (SO0, SO1)

sTAB, sREC, sP, sX, sWF, sOUT, sMX = 24, 28, 32, 36, 40, 44, 48
sWIN, sWV, sN0, sNA, sNW, sNB_ = 52, 53, 54, 55, 56, 57
sTW, sLO, sCAP, sNB, sNT, sI, sRING = 58, 59, 60, 61, 62, 63, 64
sF1, sF2, sSLOW, sSINIT, sBLK, sIDX = 65, 66, 67, 68, 69, 70
sM0, sM1 = 72, 74
sLIST, sCA, sSA, sW2, sNB2 = 6, 7, 8, 9, 10
t0, t1, t2, t3 = 76, 77, 78, 79

OPT = dict()


def dma(stage_off):
    out = []
    for q in range(4):
        out.append(f"s_add_u32 m0, s{sRING}, {stage_off + 1024*q}")
        out.append("s_nop 0")
        out.append(f"buffer_load_dwordx4 {vr(IX+2*q,2)}, s[{sP}:{sP+3}], 0 idxen offen lds")
    return out


def idx_reads(tile_off):
    return [f"ds_read_b32 v{IX+2*q}, v{IA} offset:{tile_off*128 + 32*q}" for q in range(4)]


def pf_reads(stage):
    return [f"ds_read_b128 {vr(PF+4*k,4)}, v{PA+k} offset:{stage*4096}" for k in range(4)]


def ao_reads(tile_off):
    return [f"ds_read_b128 {vr(AO+4*u,4)}, v{BA} offset:{tile_off*BLKSZ + 1024*u}" for u in range(2)]


def so_read(tile_off, buf):
    return f"ds_read_b128 {vr(SO[buf],4)}, v{BA} offset:{tile_off*BLKSZ + 2048}"


def zmf(c):
    t = TT[c]
    return [mfma(t, PF + 8*c, IDN, None), mfma(t, PF + 8*c + 4, IDN + 4, t),
            mfma(t, AO, QB + 8*c, t), mfma(t, AO + 4, QB + 8*c + 4, t)]


def ssmf(c, buf, first=False):
    return mfma(S + 16*c, HB, SO[buf], None if first else S + 16*c)


def cvts():
    return [f"v_cvt_pk_bf16_f32 v{HB+p}, v{HF+2*p}, v{HF+2*p+1}" for p in range(4)]


def exps(c):
    return [f"v_exp_f32 v{DD+r}, v{TT[c]+r}" for r in range(16)]


def rcps():
    return [f"v_rcp_f32 v{MM+r}, v{MM+r}" for r in range(8)]


def fms():
    return [f"v_mul_f32 v{HF+r}, v{NN+r}, v{MM+r}" for r in range(8)]


def prun(c, fm=True):
    t = TT[c]
    P = fms() if fm else []
    if OPT.get("p5"):
        P += [f"v_add_f32 v{DD+r}, 1.0, v{DD+r}" for r in range(16)]
        P += [f"v_mul_f32 v{MM+j}, v{DD+2*j}, v{DD+2*j+1}" for j in range(8)]
        P += [f"v_mul_f32 v{NN+j}, v{t+2*j}, v{DD+2*j+1}" for j in range(8)]
        P += [f"v_fma_f32 v{NN+j}, v{t+2*j+1}, v{DD+2*j}, v{NN+j}" for j in range(8)]
        return P
    P += [f"v_add_f32 v{DD+2*j+1}, 1.0, v{DD+2*j+1}" for j in range(8)]
    P += [f"v_fma_f32 v{NN+j}, v{t+2*j+1}, v{DD+2*j}, v{t+2*j+1}" for j in range(8)]
    P += [f"v_fma_f32 v{MM+j}, v{DD+2*j}, v{DD+2*j+1}, v{DD+2*j+1}" for j in range(8)]
    P += [f"v_fmac_f32 v{NN+j}, v{t+2*j}, v{DD+2*j+1}" for j in range(8)]
    return P


def weave(base, inserts):
    out = []
    ins = sorted(inserts, key=lambda x: x[0])
    k = 0
    for i, l in enumerate(base):
        while k < len(ins) and ins[k][0] <= i:
            out += ins[k][1]; k += 1
        out.append(l)
    while k < len(ins):
        out += ins[k][1]; k += 1
    return out


def trun(c, par, stage, role):
    z = zmf(1 - c)
    late = role == "B" and c == 1
    w = ["s_waitcnt lgkmcnt(0)"] if late else []
    if stage == 0:
        base = exps(c)
        pos = [0, 4, 8, 12]
    elif stage == 1:
        base = exps(c) + rcps()
        pos = [8, 12, 16, 20] if late else [0, 5, 10, 15]
    else:
        base = cvts() + exps(c) + rcps()
        pos = [12, 16, 20, 24, 6] if late else [0, 6, 11, 16, 21]
    ins = [(pos[0], w + [z[0]])] + [(pos[k], [z[k]]) for k in (1, 2, 3)]
    if stage >= 2:
        ins.append((pos[4], [ssmf(c, par ^ 1, stage < 4)]))
    return [f"s_setprio {2 if role == 'A' else 1}"] + weave(base, ins) + ["s_setprio 0"]


def w2_loads(fs):
    out = []
    for f in fs:
        if f in (4, 8):
            out.append(f"s_add_u32 s{t3}, s{sW2}, {1024*f}")
        so = sW2 if f < 4 else t3
        out.append(f"buffer_load_dwordx4 {vr(W2R+4*f,4)}, v4, s[{sWF}:{sWF+3}], s{so} offen offset:{(f & 3) * 1024}")
    return out


def blk1(par, role, vm=4, w2=()):
    nst = (par + 1) & 1
    pf, ao = pf_reads(nst), ao_reads(par + 1)
    out = [f"s_waitcnt vmcnt({vm})"] + pf[:2] + ao + pf[2:] + idx_reads(par + 3) + [so_read(par, par)] + w2_loads(w2)
    return out + (["s_waitcnt lgkmcnt(0)"] if role == "A" else [])


def blk2(par):
    nst = (par + 1) & 1
    tr = OPT.get("trace")
    return (dma(nst * 4096) + (["s_memtime s[90:91]"] if tr else [])
            + [f"s_sub_u32 s{sI}, s{sI}, 1", f"s_cmp_eq_u32 s{sI}, 0"]
            + (["s_waitcnt lgkmcnt(0)", f"s_mov_b32 m0, s{sI}", "v_writelane_b32 v186, s90, m0"] if tr else []))


INC = [f"v_add_u32 v{BA}, {2*BLKSZ}, v{BA}", f"v_add_u32 v{IA}, 256, v{IA}"]


def drain(par):
    return (cvts() + rcps()[:2] + [ssmf(0, par)] + rcps()[2:] + ["s_nop 0"] + fms() + cvts() + ["s_nop 1", ssmf(1, par)])


def fast_loop(a, role):
    L = "K2" + role
    em = lambda ls: [a(l) for l in ls]
    A = role == "A"
    T = lambda c, par, stage: trun(c, par, stage, role)
    def unit(T_, blk, P):
        em(T_)
        em(blk + P if A else P + blk)
    unit(T(0, 0, 0), blk1(0, role, 4, (5, 6)), prun(0, False))
    unit(T(1, 0, 1), blk2(0), prun(1))
    unit(T(0, 1, 2), blk1(1, role, 6, (7, 8)), prun(0))
    if A:
        em(T(1, 1, 3)); em(blk2(1))
        a(f"s_cbranch_scc1 {L}_EXIT1")
        a.raw(".p2align 6")
        a.label(f"{L}_LOOP")
        em(INC + prun(1))
        unit(T(0, 0, 4), blk1(0, role), prun(0))
        em(T(1, 0, 4)); em(blk2(0))
        a(f"s_cbranch_scc1 {L}_EXIT0")
        em(prun(1))
        unit(T(0, 1, 4), blk1(1, role), prun(0))
        em(T(1, 1, 4)); em(blk2(1))
        a(f"s_cbranch_scc0 {L}_LOOP")
    else:
        unit(T(1, 1, 3), blk2(1), prun(1))
        a(f"s_cbranch_scc1 {L}_EXIT1")
        a.raw(".p2align 6")
        a.label(f"{L}_LOOP")
        unit(T(0, 0, 4), blk1(0, role), INC + prun(0))
        unit(T(1, 0, 4), blk2(0), prun(1))
        a(f"s_cbranch_scc1 {L}_EXIT0")
        unit(T(0, 1, 4), blk1(1, role), prun(0))
        unit(T(1, 1, 4), blk2(1), prun(1))
        a(f"s_cbranch_scc0 {L}_LOOP")
    for par in (1, 0):
        a.label(f"{L}_EXIT{par}")
        if A: em(prun(1))
        em(drain(par))
        a("s_branch K2_EPI")


def gen_k2(force_slow=False, diag=False, nogather=False, **opt):
    OPT.clear(); OPT.update(opt)
    a = Asm()
    a.diag = diag
    smap = OPT.get("smap", dict(start=0, tab=1, rec=2, recl=3, b4=4, loop=5, epi=6, epb=7, end=8, drained=9))
    st = lambda name: a.stamp(smap[name]) if name in smap else None
    hi = lambda: a("s_setprio 3") if OPT.get("prio", True) else None
    lo = lambda: a("s_setprio 0") if OPT.get("prio", True) else None
    a(f"s_cmp_ge_u32 s2, {NBKT}")
    a("s_cbranch_scc1 K2_END")
    st("start")
    a.cyc(88)
    if diag:
        a("s_mov_b32 s89, s2")
    a("s_load_dwordx2 s[22:23], s[0:1], 80")
    a("s_load_dwordx2 s[4:5], s[0:1], 0")
    a("s_load_dwordx2 s[20:21], s[0:1], 64")
    Z = HF
    ZA = 187
    NZ0, NZ1, NZ2 = OPT.get("nz", (3, 2, 0))
    def clear(k0, k1):
        for k in range(k0, k1):
            if k == 8:
                a(f"v_add_u32 v{ZA}, 0x10000, v{ZA}")
            a(f"ds_write_b128 v{ZA}, {vr(Z,4)} offset:{8192*(k & 7)}")
    LA = AO
    LR, L64, Q1 = AO + 4, AO + 5, AO + 6
    CST = MM
    MX = [DD, DD + 4, DD + 8, DD + 12, NN, NN + 4]
    OH = 186
    a("v_lshrrev_b32 v2, 6, v0")
    a("v_and_b32 v1, 63, v0")
    a("v_readfirstlane_b32 s3, v2")
    for k in range(4):
        a(f"v_mov_b32 v{Z+k}, 0")
    a(f"v_lshlrev_b32 v{ZA}, 4, v0")
    a(f"v_add_u32 v{ZA}, {BLK}, v{ZA}")
    clear(0, NZ0)
    a(f"s_and_b32 s{t0}, s2, 7")
    a("s_lshr_b32 s2, s2, 3")
    a(f"s_lshl_b32 s{t0}, s{t0}, 5")
    a(f"s_add_u32 s2, s2, s{t0}")
    a(f"s_lshr_b32 s{sWIN}, s3, 2")
    a("v_bfe_u32 v3, v0, 1, 7")
    a("v_lshlrev_b32 v7, 11, v3")
    a(f"s_lshl_b32 s{t3}, s2, 3")
    a(f"s_lshl_b32 s{t1}, s{sWIN}, 2")
    a(f"s_add_u32 s{t3}, s{t3}, s{t1}")
    a(f"s_mov_b32 s{sTAB+2}, {hex(NCHUNK * NWIN * 4)}")
    a(f"s_mov_b32 s{sTAB+3}, 0x00020000")
    a(f"s_and_b32 s{sWV}, s3, 3")
    a(f"s_lshl_b32 s{t0}, s2, 17")
    a(f"s_add_u32 s{t0}, s{t0}, {BM-1}")
    a(f"s_add_u32 s{t1}, s{t0}, 0x10000")
    a(f"s_add_u32 s{t2}, s{t0}, 0x20000")
    a(f"s_mul_hi_u32 s{sN0}, s{t0}, {hex(START_MAGIC)}")
    a(f"s_mul_hi_u32 s{t1}, s{t1}, {hex(START_MAGIC)}")
    a(f"s_mul_hi_u32 s{t2}, s{t2}, {hex(START_MAGIC)}")
    a(f"s_lshr_b32 s{sN0}, s{sN0}, {START_SH}")
    a(f"s_lshr_b32 s{t1}, s{t1}, {START_SH}")
    a(f"s_lshr_b32 s{t2}, s{t2}, {START_SH}")
    a(f"s_min_u32 s{t2}, s{t2}, {N}")
    a(f"s_sub_u32 s{sNA}, s{t1}, s{sN0}")
    a(f"s_sub_u32 s{sNB_}, s{t2}, s{t1}")
    a(f"s_cmp_eq_u32 s{sWIN}, 0")
    a(f"s_cselect_b32 s{sNW}, s{sN0}, s{t1}")
    a(f"s_lshl_b32 s{sRING}, s3, 13")
    a("s_waitcnt lgkmcnt(0)")
    a(f"s_add_u32 s{sTAB}, s22, {hex(WS_TAB)}")
    a(f"s_addc_u32 s{sTAB+1}, s23, 0")
    a(f"buffer_load_dword v{VCNT}, v7, s[{sTAB}:{sTAB+3}], s{t3} offen")
    clear(NZ0, NZ0 + NZ1)
    a("v_lshrrev_b32 v5, 4, v1")
    a("v_and_b32 v6, 15, v1")
    a("v_xor_b32 v6, v6, v5")
    a(f"s_lshl_b32 s{t1}, s{sWV}, 2")
    a(f"v_xor_b32 v6, s{t1}, v6")
    a("v_lshlrev_b32 v6, 4, v6")
    a("v_lshl_add_u32 v6, v5, 8, v6")
    a("v_lshlrev_b32 v4, 4, v1")
    a(f"s_lshl_b32 s{t1}, s{sN0}, 8")
    a(f"s_lshl_b32 s{t2}, s3, 10")
    a(f"s_add_u32 s{t1}, s{t1}, s{t2}")
    a(f"s_add_u32 m0, s{t2}, {XW}")
    a.srd(sX, 4, N * 256)
    a(f"buffer_load_dwordx4 v6, s[{sX}:{sX+3}], s{t1} offen lds")
    a("s_cmp_ge_u32 s3, 2")
    a("s_cbranch_scc1 K2_X2")
    a(f"s_add_u32 m0, s{t2}, {XW + 8192}")
    a(f"s_add_u32 s{t1}, s{t1}, 8192")
    a(f"buffer_load_dwordx4 v6, s[{sX}:{sX+3}], s{t1} offen lds")
    a.label("K2_X2")
    a(f"s_mov_b32 m0, s{sRING}")
    a.srd(sWF, 22, NFRAG * 1024, WS_WB)
    for z in range(4):
        a(f"buffer_load_dwordx4 v4, s[{sWF}:{sWF+3}], s{sRING} offen offset:{1024*z} lds")
    a.srd(sREC, 22, E * 16, WS_REC)
    a(f"s_mov_b32 s{sLO}, 0")
    a(f"s_mov_b32 s{sCAP}, {CAP1}")
    a(f"s_mov_b32 s{sF1}, 1")
    a(f"s_mov_b32 s{sF2}, 1")
    a(f"s_lshl_b32 s{sLIST}, s3, 9")
    a(f"s_add_u32 s{sLIST}, s{sLIST}, {LIST}")
    a("v_and_b32 v7, 1, v0")
    a(f"s_movk_i32 s{t0}, {CH}")
    a(f"v_mad_u32_u24 v{VREC}, v3, s{t0}, v7")
    a(f"v_lshlrev_b32 v{VREC}, 4, v{VREC}")
    a(f"v_xor_b32 v{Q1}, 1, v7")
    a(f"v_lshlrev_b32 v{Q1}, 16, v{Q1}")
    a(f"v_lshl_add_u32 v{LR}, v1, 2, s{sLIST}")
    a(f"v_add_u32 v{L64}, 64, v1")
    clear(NZ0 + NZ1, NZ0 + NZ1 + NZ2)
    hi()
    a("s_waitcnt vmcnt(5)")
    st("tab")
    a(f"v_add_u32 v7, v{VCNT}, v{Q1}")
    a(f"v_and_b32 v6, 0xffff, v{VCNT}")
    a(f"v_lshrrev_b32 v{VCNT}, 17, v7")
    a(f"v_lshl_add_u32 v{VREC}, v6, 4, v{VREC}")
    a(f"v_add_u32 v{LA+1}, 32, v{VREC}")
    D = lambda src, ctl: a(f"v_add_u32_dpp v{VBASE}, v{src}, v{src} {ctl}")
    D(VCNT, "row_shr:1 row_mask:0xf bank_mask:0xf bound_ctrl:0")
    a(f"v_add_u32 v{LA+2}, 64, v{VREC}")
    a(f"v_add_u32 v{LA+3}, 0x60, v{VREC}")
    D(VBASE, "row_shr:2 row_mask:0xf bank_mask:0xf bound_ctrl:0")
    a(f"v_cmp_lt_u32 vcc, 4, v{VCNT}")
    a("s_nop 0")
    D(VBASE, "row_shr:4 row_mask:0xf bank_mask:0xf bound_ctrl:0")
    a("s_nop 1")
    D(VBASE, "row_shr:8 row_mask:0xf bank_mask:0xf bound_ctrl:0")
    a("s_nop 1")
    D(VBASE, "row_bcast:15 row_mask:0xa bank_mask:0xf")
    a("s_nop 1")
    D(VBASE, "row_bcast:31 row_mask:0xc bank_mask:0xf")
    a("s_cbranch_vccnz K2_GEN0")
    a(f"v_readlane_b32 s{sTW}, v{VBASE}, 63")
    a(f"v_sub_u32 v{VBASE}, v{VBASE}, v{VCNT}")
    a(f"v_lshl_add_u32 v6, v{VBASE}, 2, s{sLIST}")
    a(f"s_cmp_gt_u32 s{sTW}, {CAP1}")
    a("s_cbranch_scc1 K2_GEN")
    a(f"s_mov_b32 s{t0}, s{sTW}")
    for j in range(4):
        a(f"v_cmpx_lt_u32 vcc, {j}, v{VCNT}")
        a(f"ds_write_b32 v6, v{VREC if j == 0 else LA+j} offset:{4*j}")
    a.label("K2_LISTED")
    a("s_mov_b64 exec, -1")
    a(f"ds_read_b32 v{LA}, v{LR}")
    a(f"ds_read_b32 v{LA+1}, v{LR} offset:256")
    a(f"v_cmp_gt_u32 s[{sM0}:{sM0+1}], s{t0}, v1")
    a(f"v_cmp_gt_u32 s[{sM1}:{sM1+1}], s{t0}, v{L64}")
    R = (PF, PF + 4)
    for r in range(2):
        a(f"s_waitcnt lgkmcnt({1-r})")
        a(f"buffer_load_dwordx4 {vr(R[r],4)}, v{LA+r}, s[{sREC}:{sREC+3}], 0 offen")
    lo()
    st("rec")
    clear(NZ0 + NZ1 + NZ2, 9)
    a(f"v_mov_b32 v{Z+4}, {PADIDX}")
    a(f"v_mov_b32 v{Z+5}, {PADIDX}")
    a("v_lshlrev_b32 v7, 3, v0")
    a(f"v_add_u32 v7, {IDX}, v7")
    a("s_cmp_ge_u32 s3, 6")
    a("s_cbranch_scc1 K2_Z6")
    clear(9, 10)
    a(f"ds_write_b64 v7, {vr(Z+4,2)}")
    a.label("K2_Z7")
    a(f"s_cmp_eq_u32 s{sF1}, 0")
    a("s_cbranch_scc1 K2_NF3")
    a(f"s_add_u32 m0, s{sRING}, 4096")
    a(f"s_add_u32 s{t0}, s{sRING}, 4096")
    for z in range(4):
        a(f"buffer_load_dwordx4 v4, s[{sWF}:{sWF+3}], s{t0} offen offset:{1024*z} lds")
    a("v_and_b32 v2, 31, v1")
    a("v_lshrrev_b32 v5, 5, v1")
    a(f"s_mul_i32 s{t0}, s{sWIN}, s{sNA}")
    a(f"v_add_u32 v6, s{t0}, v2")
    a("v_and_b32 v7, 15, v6")
    a("v_xor_b32 v7, v7, v5")
    a("v_lshlrev_b32 v7, 4, v7")
    a("v_lshl_add_u32 v6, v6, 8, v7")
    a(f"v_add_u32 v6, {XW}, v6")
    a(f"s_lshl_b32 s{t0}, s{sWV}, 14")
    a(f"v_add_u32 v3, s{t0}, v4")
    st("pb2")
    a("s_waitcnt vmcnt(6) lgkmcnt(0)")
    a("s_barrier")
    st("b2")
    for s in range(4):
        a(f"v_xor_b32 v7, {32*s}, v6")
        a(f"ds_read_b128 {vr(T0+4*s,4)}, v7")
        for c in range(2):
            a(f"ds_read_b128 {vr(WBQ+4*(4*c+s),4)}, v3 offset:{(8*c+s)*1024}")
    a(f"s_lshl_b32 s{t0}, s{sWV}, 11")
    a(f"s_add_u32 s{t0}, s{t0}, {WS_CST - WS_WB}")
    for c in range(2):
        a(f"buffer_load_dwordx4 {vr(CST+4*c,4)}, v4, s[{sWF}:{sWF+3}], s{t0} offen offset:{1024*c}")
    a("s_cmp_lg_u32 s3, 7")
    a("s_cbranch_scc1 K2_NMX")
    a.srd(sMX, 22, NGEMM * 16, WS_PMAX)
    a(f"s_movk_i32 s{t0}, 0x1000")
    for k in range(5):
        so = "0" if k < 4 else f"s{t0}"
        a(f"buffer_load_dwordx4 {vr(MX[k],4)}, v4, s[{sMX}:{sMX+3}], {so} offen offset:{(k & 3) * 1024}")
    a.srd(sMX, 22, NCHUNK * 4, WS_EMAX)
    a(f"buffer_load_dwordx4 {vr(MX[5],4)}, v4, s[{sMX}:{sMX+3}], 0 offen")
    a.label("K2_NMX")
    a.srd(sP, 22, N, WS_P, stride=512)
    a.srd(sOUT, 20, N * 256)
    a(f"s_mov_b32 s{sSINIT}, 0")
    a(f"s_mul_i32 s{sBLK}, s{sWIN}, {BLKW}")
    a(f"s_add_u32 s{sBLK}, s{sBLK}, {BLK}")
    a(f"s_mul_i32 s{sIDX}, s{sWIN}, {IDXW}")
    a(f"s_add_u32 s{sIDX}, s{sIDX}, {IDX}")
    a(f"s_lshl_b32 s{t0}, s{sWIN}, 5")
    a(f"s_sub_u32 s{t0}, s{t0}, s{sNW}")
    a(f"s_lshl_b32 s{t0}, s{t0}, 2")
    a(f"s_add_u32 s{sCA}, s{t0}, {CNT}")
    a(f"s_lshl_b32 s{t0}, s{sWIN}, 9")
    a(f"s_sub_u32 s{t0}, s{sBLK}, s{t0}")
    a(f"s_sub_u32 s{sSA}, s{t0}, {4*CNT}")
    a(f"s_mul_i32 s{sW2}, s3, {9*1024}")
    a(f"s_add_u32 s{sW2}, s{sW2}, {WS_W2F - WS_WB}")
    a("v_bfe_u32 v7, v1, 1, 3")
    a("v_xor_b32 v7, v7, v5")
    a("v_lshlrev_b32 v7, 4, v7")
    a("v_lshl_add_u32 v7, v2, 7, v7")
    a(f"v_add_u32 v{PA}, s{sRING}, v7")
    for k in range(1, 4):
        a(f"v_xor_b32 v{PA+k}, {32*k}, v{PA}")
    a(f"v_and_b32 v{IX}, 7, v1")
    a("v_lshrrev_b32 v7, 4, v1")
    a(f"v_xor_b32 v7, v{IX}, v7")
    a("v_lshlrev_b32 v7, 4, v7")
    a(f"s_lshl_b32 s{t0}, s{sWV}, 7")
    a(f"v_add_u32 v{IX+1}, s{t0}, v7")
    a(f"v_xor_b32 v{IX+3}, 64, v{IX+1}")
    a(f"v_mov_b32 v{IX+5}, v{IX+1}")
    a(f"v_mov_b32 v{IX+7}, v{IX+3}")
    a(f"v_mov_b32 v{DEG}, 0")
    a(f"v_lshrrev_b32 v{OH}, 4, v2")
    a(f"v_lshlrev_b32 v{OH}, 26, v{OH}")
    a("v_bfe_u32 v7, v2, 2, 1")
    a(f"v_lshl_add_u32 v{OH}, v7, 25, v{OH}")
    a("v_and_b32 v7, 3, v2")
    a(f"v_lshl_add_u32 v{OH}, v7, 17, v{OH}")
    a("v_bfe_u32 v7, v2, 3, 1")
    a(f"v_lshl_add_u32 v{OH}, v7, 19, v{OH}")
    for s in range(4):
        a(f"s_waitcnt lgkmcnt({9 - 3*s})")
        for c in range(2):
            a(mfma(S + 16*c, T0 + 4*s, WBQ + 4*(4*c+s), None if s == 0 else S + 16*c))
        a(f"v_xor_b32 v{HB+s}, {32*(s+4)}, v6")
    for s in range(4, 8):
        a(f"ds_read_b128 {vr(T0+4*s,4)}, v{HB+s-4}")
    st("shend")
    a("s_cmp_eq_u32 s3, 7")
    a("s_cbranch_scc1 K2_W7")
    a("s_waitcnt vmcnt(6)")
    a.label("K2_J3")
    hi()
    st("recl")
    AC = (PF + 8, PF + 9); RK = (PF + 10, PF + 11); SU = (PF + 12, PF + 13); BP = (PF + 14, PF + 15)
    a("v_mov_b32 v6, 1")
    for r in range(2):
        a(f"v_lshrrev_b32 v{AC[r]}, 14, v{R[r]+2}")
    for r in range(2):
        a(f"v_lshl_add_u32 v{AC[r]}, v{AC[r]}, 2, s{sCA}")
    for r in range(2):
        a(f"s_mov_b64 exec, s[{(sM0, sM1)[r]}:{(sM0, sM1)[r]+1}]")
        a(f"ds_add_rtn_u32 v{RK[r]}, v{AC[r]}, v6")
    a("s_mov_b64 exec, -1")
    a(f"v_mov_b32 v7, {MISC}")
    a(f"v_mov_b32 v{Z+4}, s{sTW}")
    a(f"v_lshlrev_b32 v{Z+5}, 2, v1")
    a("s_mov_b64 exec, 1")
    a(f"ds_max_u32 v7, v{Z+4}")
    a("s_mov_b64 exec, -1")
    a(f"v_add_u32 v6, {CNT}, v{Z+5}")
    a("s_waitcnt lgkmcnt(0)")
    st("pb3")
    a("s_barrier")
    st("b3")
    a(f"ds_read_b32 v{Z+5}, v6")
    a(f"ds_read_b32 v{Z+4}, v7")
    for l in w2_loads(range(0, 2)): a(l)
    for r in range(2):
        a(f"v_and_b32 v{R[r]+2}, 0x3fff, v{R[r]+2}")
        a(f"v_lshl_add_u32 v{SU[r]}, v{AC[r]}, 2, s{sSA}")
    a("s_waitcnt lgkmcnt(1)")
    a(f"v_add_u32 v7, 1, v{Z+5}")
    a("v_and_b32 v7, -2, v7")
    a(f"v_sub_u32 v6, v{OH}, v7")
    a(f"v_cvt_f32_u32 v{Z+5}, v{Z+5}")
    D7 = lambda ctl: a(f"v_add_u32_dpp v7, v7, v7 {ctl}")
    D7("row_shr:1 row_mask:0xf bank_mask:0xf bound_ctrl:0")
    a(f"v_mov_b32 v{Z+6}, {BLKSZ - 512}")
    a(f"v_mov_b32 v{Z+7}, {BLKSZ}")
    D7("row_shr:2 row_mask:0xf bank_mask:0xf bound_ctrl:0")
    a(f"v_add_u32 v{BA}, s{sBLK}, v4")
    a(f"v_lshrrev_b32 v{IA}, 3, v1")
    D7("row_shr:4 row_mask:0xf bank_mask:0xf bound_ctrl:0")
    a(f"v_lshl_add_u32 v{IA}, v{IA}, 2, s{sIDX}")
    a("s_waitcnt lgkmcnt(0)")
    D7("row_shr:8 row_mask:0xf bank_mask:0xf bound_ctrl:0")
    a(f"v_readfirstlane_b32 s{t2}, v{Z+4}")
    a(f"v_mov_b32 v{Z+4}, 0x3f80")
    D7("row_bcast:15 row_mask:0xa bank_mask:0xf")
    a("v_add_u32 v6, v6, v7")
    for r in range(2):
        a(f"ds_bpermute_b32 v{BP[r]}, v{AC[r]}, v6")
    a(f"v_readlane_b32 s{t0}, v7, 31")
    a(f"v_readlane_b32 s{t1}, v7, 63")
    for l in w2_loads(range(2, 5)): a(l)
    a(f"s_mov_b32 s{sF1}, 0")
    a(f"s_cmp_eq_u32 s{sWIN}, 0")
    a(f"s_cselect_b32 s{sNT}, s{t0}, s{t1}")
    a(f"s_add_u32 s{sNT}, s{sNT}, 31")
    a(f"s_lshr_b32 s{sNT}, s{sNT}, 5")
    a(f"s_max_u32 s{t0}, s{t0}, s{t1}")
    a(f"s_cmp_gt_u32 s{t0}, {MAXT*32}")
    a(f"s_cselect_b32 s{t0}, 0x7fffffff, s{t2}")
    a(f"s_cmp_gt_u32 s{t0}, s{sCAP}")
    a("s_cbranch_scc1 K2_OV")
    a.label("K2_NOOV")
    t = [AO + k for k in range(8)]
    for r in range(2):
        a(f"s_waitcnt lgkmcnt({1-r})" if r == 0 else f"s_cmp_eq_u64 s[{sM1}:{sM1+1}], 0")
        if r == 1:
            a("s_cbranch_scc1 K2_SC1")
            a(f"s_waitcnt lgkmcnt({4 if nogather else 5})")
        p = BP[r]
        a(f"v_add_u32 v{p}, v{p}, v{RK[r]}")
        a(f"v_bfe_u32 v{t[0]}, v{p}, 5, 11")
        a(f"v_mad_u32_u16 v{t[1]}, v{p}, 4, s{sIDX}")
        a(f"v_mad_u32_u24 v{t[2]}, v{t[0]}, v{Z+6}, s{sBLK}")
        a(f"v_mad_u32_u24 v{t[3]}, v{t[0]}, v{Z+7}, v{SU[r]}")
        a(f"v_mad_u32_u16 v{t[2]}, v{p}, 16, v{t[2]}")
        a(f"v_and_b32 v{t[4]}, 4, v{p}")
        a(f"v_lshrrev_b32 v{t[5]}, 1, v{p}")
        a(f"v_lshl_add_u32 v{t[3]}, v{t[4]}, 7, v{t[3]}")
        a(f"v_mad_u32_u16 v{t[4]}, v{p}, 1, v{t[2]} op_sel:[1,0,0,0]")
        a(f"v_and_or_b32 v{t[3]}, v{t[5]}, 12, v{t[3]}")
        a(f"v_and_or_b32 v{t[3]}, v{p}, 2, v{t[3]}")
        a(f"s_mov_b64 exec, s[{(sM0, sM1)[r]}:{(sM0, sM1)[r]+1}]")
        if not nogather:
            a(f"ds_write_b32 v{t[1]}, v{R[r]+2}")
        a(f"ds_write_b16 v{t[4]}, v{Z+4}")
        a(f"ds_write_b64 v{t[2]}, {vr(R[r],2)} offset:1536")
        a(f"ds_write_b64 v{t[2]}, {vr(R[r],2)} offset:1032")
        a(f"ds_write_b16 v{t[3]}, v{Z+4} offset:2048")
        a("s_mov_b64 exec, -1")
    a.label("K2_SC1")
    a(f"v_add_f32 v{DEG}, v{DEG}, v{Z+5}")
    a("s_waitcnt vmcnt(5) lgkmcnt(0)")
    st("pb4")
    a("s_barrier")
    st("b4")
    for l in idx_reads(0): a(l)
    a(f"s_cmp_eq_u32 s{sF2}, 0")
    a("s_cbranch_scc1 K2_NF4")
    for s in range(4, 8):
        for c in range(2):
            a(f"ds_read_b128 {vr(WBQ+4*(4*c+s-4),4)}, v3 offset:{(8*c+s)*1024}")
    a("s_waitcnt lgkmcnt(8)")
    for l in dma(0): a(l)
    for l in idx_reads(1): a(l)
    lo()
    a("s_cmp_lg_u32 s3, 7")
    a("s_cbranch_scc1 K2_NMX2")
    mx = [MX[k] + q for k in range(5) for q in range(4)]
    for k in range(1, 10):
        a(f"v_max3_u32 v{mx[0]}, v{mx[0]}, v{mx[2*k-1]}, v{mx[2*k]}")
    a(f"v_max_u32 v{Z}, v{mx[0]}, v{mx[19]}")
    a(f"v_max3_u32 v{MX[5]}, v{MX[5]}, v{MX[5]+1}, v{MX[5]+2}")
    a(f"v_max_u32 v{Z+1}, v{MX[5]}, v{MX[5]+3}")
    for sh in (1, 2, 4, 8):
        a("s_nop 0")
        for k in range(2):
            a(f"v_max_u32_dpp v{Z+k}, v{Z+k}, v{Z+k} row_shr:{sh} row_mask:0xf bank_mask:0xf bound_ctrl:0")
    for bc, rm in ((15, "0xa"), (31, "0xc")):
        a("s_nop 0")
        for k in range(2):
            a(f"v_max_u32_dpp v{Z+k}, v{Z+k}, v{Z+k} row_bcast:{bc} row_mask:{rm} bank_mask:0xf")
    a(f"v_mov_b32 v7, {MISC + 4}")
    a("s_mov_b32 exec_lo, 0")
    a("s_mov_b32 exec_hi, 0x80000000")
    a(f"ds_write2_b32 v7, v{Z}, v{Z+1} offset0:0 offset1:1")
    a("s_mov_b64 exec, -1")
    a.label("K2_NMX2")
    a("v_and_b32 v7, 1, v1")
    a("v_lshlrev_b32 v7, 4, v7")
    a("v_mov_b32 v6, 0x3f80")
    a("v_lshlrev_b32 v7, v7, v6")
    for k in range(8):
        a(f"v_mov_b32 v{IDN+k}, 0")
    a("s_waitcnt lgkmcnt(0)")
    k = 0
    for s in range(4, 8):
        for c in range(2):
            a(mfma(S + 16*c, T0 + 4*s, WBQ + 4*(4*c+s-4), S + 16*c))
            i, q = k >> 2, k & 3
            a(f"s_mov_b32 exec_lo, {hex(3 << (16*i + 2*q))}")
            a(f"s_mov_b32 exec_hi, {hex(3 << (16*i + 8 + 2*q))}")
            a(f"v_mov_b32 v{IDN+4*i+q}, v7")
            a("s_mov_b64 exec, -1")
            k += 1
    a(f"v_mov_b32 v7, {MISC + 4}")
    a("s_barrier")
    a(f"ds_read2_b32 {vr(Z+4,2)}, v7 offset0:0 offset1:1")
    for l in dma(4096): a(l)
    a(f"s_mov_b32 s{sSLOW}, {1 if force_slow else 0}")
    a(f"s_mov_b32 s{sF2}, 0")
    a(f"s_mov_b32 s{sNB}, 1")
    for c in range(2):
        q = S + 16*c
        for r in range(16):
            a(f"v_add_f32 v{q+r}, v{q+r}, v{CST+4*c+2}")
        a(f"v_max_f32 v6, |v{q}|, |v{q+1}|")
        for r in range(2, 16, 2):
            a(f"v_max3_f32 v6, |v{q+r}|, |v{q+r+1}|, v6")
        for p in range(8):
            a(f"v_cvt_pk_bf16_f32 v{QB+8*c+p}, v{q+2*p}, v{q+2*p+1}")
        if c == 0:
            a("s_waitcnt lgkmcnt(0)")
        a(f"v_fma_f32 v7, v{Z+5}, v{CST+4*c+3}, v{Z+4}")
        a("v_add_f32 v6, v7, v6")
        a("v_cmp_nge_f32 vcc, 0x42700000, v6")
        a("s_mov_b32 exec_lo, 0")
        for p in range(2):
            a(f"v_mov_b32 v{QB+8*c+4+p}, v{CST+4*c+p}")
            a(f"v_mov_b32 v{QB+8*c+6+p}, 0")
        a("s_mov_b32 exec_lo, -1")
        a("s_mov_b32 exec_hi, 0")
        for p in range(2):
            a(f"v_mov_b32 v{QB+8*c+6+p}, v{CST+4*c+p}")
        a("s_mov_b32 exec_hi, -1")
        a("s_cmp_lg_u64 vcc, 0")
        a(f"s_cselect_b32 s{sSLOW}, 1, s{sSLOW}")
    a(f"s_cmp_lt_u32 s{sNT}, 2")
    a(f"s_cselect_b32 s{t0}, 1, s{sSLOW}")
    a(f"s_cmp_eq_u32 s{sCAP}, {CAP2}")
    a("s_cbranch_scc1 K2_SLOW0")
    a(f"s_mov_b32 s{sI}, s{sNT}")
    a(f"s_cmp_lg_u32 s{t0}, 0")
    a("s_cbranch_scc1 K2_SLOW")
    for l in ao_reads(0) + idx_reads(2): a(l)
    a("s_waitcnt vmcnt(4)")
    st("loop")
    a.cyc(71)
    for l in pf_reads(0): a(l)
    a("s_waitcnt lgkmcnt(0)")
    for l in zmf(0): a(l)
    for l in dma(0): a(l)
    a(f"s_cmp_lg_u32 s{sWIN}, 0")
    a("s_cbranch_scc1 K2_FA")
    a("s_nop 1")
    fast_loop(a, "B")
    a.label("K2_FA")
    a("s_nop 1")
    fast_loop(a, "A")
    a.label("K2_W7")
    a("s_waitcnt vmcnt(12)")
    a("s_branch K2_J3")
    a.label("K2_Z6")
    a("s_cmp_eq_u32 s3, 7")
    a("s_cbranch_scc1 K2_Z7B")
    a("s_mov_b32 exec_hi, 0")
    a(f"ds_write_b64 v7, {vr(Z+4,2)}")
    a("s_mov_b32 exec_hi, -1")
    a("s_branch K2_Z7")
    a.label("K2_Z7B")
    a("v_lshlrev_b32 v7, 3, v1")
    a(f"v_add_u32 v7, {CNT}, v7")
    a("s_mov_b32 exec_hi, 1")
    a(f"ds_write_b32 v7, v{Z}")
    a("s_mov_b32 exec_hi, 0")
    a(f"ds_write_b32 v7, v{Z} offset:4")
    a("s_mov_b32 exec_hi, -1")
    a("s_branch K2_Z7")
    a.label("K2_NF3")
    a("s_waitcnt vmcnt(0) lgkmcnt(0)")
    a("s_barrier")
    a("s_branch K2_J3")
    a.label("K2_NF4")
    a("s_waitcnt lgkmcnt(0)")
    for l in dma(0) + idx_reads(1): a(l)
    a("s_waitcnt lgkmcnt(0)")
    for l in dma(4096): a(l)
    a("s_branch K2_SLOW")
    a.label("K2_OV")
    a(f"s_cmp_eq_u32 s{sCAP}, {CAP2}")
    a("s_cbranch_scc1 K2_NOOV")
    a(f"s_mov_b32 s{sCAP}, {CAP2}")
    a(f"s_add_u32 s{t2}, s{t2}, {CAP2-1}")
    a(f"s_mul_hi_u32 s{sNB2}, s{t2}, {hex((2**32 + CAP2 - 1)//CAP2)}")
    a("s_waitcnt lgkmcnt(0)")
    a("s_barrier")
    a.label("K2_BATCH")
    for k in range(4):
        a(f"v_mov_b32 v{Z+k}, 0")
    a(f"v_lshlrev_b32 v{ZA}, 4, v0")
    a(f"v_add_u32 v{ZA}, {BLK}, v{ZA}")
    clear(0, NZ0 + NZ1 + NZ2)
    a(f"v_lshl_add_u32 v{LR}, v1, 2, s{sLIST}")
    a(f"v_add_u32 v{L64}, 64, v1")
    a("s_branch K2_GEN")
    a.label("K2_GEN0")
    a(f"v_readlane_b32 s{sTW}, v{VBASE}, 63")
    a(f"v_sub_u32 v{VBASE}, v{VBASE}, v{VCNT}")
    a.label("K2_GEN")
    a(f"s_add_u32 s{t0}, s{sLO}, s{sCAP}")
    a(f"s_lshl_b32 s{t2}, s{sLO}, 2")
    a(f"s_sub_u32 s{t2}, s{sLIST}, s{t2}")
    a(f"v_max_u32 v6, s{sLO}, v{VBASE}")
    a(f"v_add_u32 v7, v{VBASE}, v{VCNT}")
    a(f"v_min_u32 v7, s{t0}, v7")
    a(f"v_sub_u32 v{LA}, v6, v{VBASE}")
    a(f"v_lshl_add_u32 v{LA}, v{LA}, 5, v{VREC}")
    a("v_sub_u32 v7, v7, v6")
    a(f"v_lshl_add_u32 v6, v6, 2, s{t2}")
    a.label("K2_EXP")
    for j in range(4):
        a(f"v_cmpx_lt_i32 vcc, {j}, v7")
        a(f"ds_write_b32 v6, v{LA} offset:{4*j}")
        a(f"v_add_u32 v{LA}, 32, v{LA}")
    a("v_cmpx_lt_i32 vcc, 4, v7")
    a("v_add_u32 v6, 16, v6")
    a("v_subrev_u32 v7, 4, v7")
    a(f"s_sub_u32 s{t0}, s{sTW}, s{sLO}")
    a(f"s_max_i32 s{t0}, s{t0}, 0")
    a(f"s_min_u32 s{t0}, s{t0}, s{sCAP}")
    a("s_nop 1")
    a("s_cbranch_execnz K2_EXP")
    a("s_branch K2_LISTED")
    a.label("K2_SLOW0")
    a(f"s_mov_b32 s{sNB}, s{sNB2}")
    a.label("K2_SLOW")
    a(f"s_mov_b32 s{sI}, s{sNT}")
    a(f"s_cmp_lg_u32 s{sSINIT}, 0")
    a("s_cbranch_scc1 K2_SL1")
    for l in w2_loads(range(5, 9)): a(l)
    for r in range(32):
        a(f"v_mov_b32 v{S+r}, 0")
    a(f"s_mov_b32 s{sSINIT}, 1")
    a.label("K2_SL1")
    a(f"s_cmp_eq_u32 s{sNT}, 0")
    a("s_cbranch_scc1 K2_BDONE")
    a(f"s_mov_b32 s{t1}, s{sRING}")
    a.label("K2_SLOOP")
    a("s_waitcnt vmcnt(0)")
    for l in pf_reads(0) + ao_reads(0) + [so_read(0, 0)] + idx_reads(2): a(l)
    a("s_waitcnt lgkmcnt(0)")
    for l in dma(0): a(l)
    for c in range(2):
        for l in zmf(c): a(l)
        a("s_nop 15")
        for l in exps(c): a(l)
        for r in range(16): a(f"v_add_f32 v{DD+r}, 1.0, v{DD+r}")
        for r in range(16): a(f"v_rcp_f32 v{DD+r}, v{DD+r}")
        for j in range(8):
            a(f"v_mul_f32 v{HF+j}, v{TT[c]+2*j}, v{DD+2*j}")
        for j in range(8):
            a(f"v_fma_f32 v{HF+j}, v{TT[c]+2*j+1}, v{DD+2*j+1}, v{HF+j}")
        for l in cvts(): a(l)
        a("s_nop 1")
        a(ssmf(c, 0))
    for k in range(4):
        a(f"v_xor_b32 v{PA+k}, 0x1000, v{PA+k}")
    a(f"s_xor_b32 s{sRING}, s{sRING}, 0x1000")
    a(f"v_add_u32 v{BA}, {BLKSZ}, v{BA}")
    a(f"v_add_u32 v{IA}, 128, v{IA}")
    a(f"s_sub_u32 s{sI}, s{sI}, 1")
    a(f"s_cmp_lg_u32 s{sI}, 0")
    a("s_cbranch_scc1 K2_SLOOP")
    a(f"s_xor_b32 s{t0}, s{t1}, s{sRING}")
    a(f"s_mov_b32 s{sRING}, s{t1}")
    for k in range(4):
        a(f"v_xor_b32 v{PA+k}, s{t0}, v{PA+k}")
    a.label("K2_BDONE")
    a(f"s_add_u32 s{sLO}, s{sLO}, s{sCAP}")
    a(f"s_sub_u32 s{sNB}, s{sNB}, 1")
    a(f"s_cmp_eq_u32 s{sNB}, 0")
    a("s_cbranch_scc1 K2_EPI")
    a("s_waitcnt vmcnt(0) lgkmcnt(0)")
    a("s_barrier")
    a("s_branch K2_BATCH")
    a.label("K2_EPI")
    st("epi")
    a.cyc(81)
    if diag: a("s_sub_u32 s71, s81, s71")
    DG = T1
    a(f"v_and_b32 v6, 0xffff0000, v{DEG}")
    a(f"v_sub_f32 v{HF+1}, v{DEG}, v6")
    a(f"v_and_b32 v{HF}, 0xffff0000, v{HF+1}")
    a(f"v_sub_f32 v{HF+1}, v{HF+1}, v{HF}")
    a("v_lshrrev_b32 v6, 16, v6")
    a(f"v_or_b32 v{HF}, v{HF}, v6")
    a(f"v_lshrrev_b32 v{HF+1}, 16, v{HF+1}")
    a("v_and_b32 v2, 15, v1")
    a("v_lshrrev_b32 v5, 4, v1")
    a("v_bfe_u32 v6, v1, 2, 1")
    a("v_and_b32 v7, 3, v1")
    a("v_add_u32 v7, 16, v7")
    a(f"v_lshlrev_b32 v{HF+2}, 2, v2")
    a(f"v_add_u32 v{HF+3}, 128, v{HF+2}")
    a(f"v_lshl_add_u32 v{HF+4}, v6, 5, v7")
    a(f"v_lshlrev_b32 v{HF+4}, 2, v{HF+4}")
    for tl in range(3):
        for k in range(2):
            a(f"ds_bpermute_b32 v{DG+4*tl+k}, v{HF+2+tl}, v{HF+k}")
        a(f"v_mov_b32 v{DG+4*tl+2}, 0")
        a(f"v_mov_b32 v{DG+4*tl+3}, 0")
    a(f"s_mov_b32 s{t1}, {hex(f32bits(-LN2))}")
    a(f"v_add_u32 v3, s{sRING}, v4")
    for c in range(2):
        for r in range(16):
            a(f"v_mul_f32 v{S+16*c+r}, s{t1}, v{S+16*c+r}")
        for p in range(8):
            a(f"v_cvt_pk_bf16_f32 v{DD+8*c+p}, v{S+16*c+2*p}, v{S+16*c+2*p+1}")
    a("s_waitcnt vmcnt(0)")
    for k in range(4):
        a(f"ds_write_b128 v3, {vr(DD+4*k,4)} offset:{1024*k}")
    RA, RR, SA, SR = HF, HF + 1, HF + 2, HF + 3
    a(f"v_lshlrev_b32 v{RA}, 9, v5")
    a(f"v_lshl_add_u32 v{RR}, v7, 4, v{RA}")
    a(f"v_lshl_add_u32 v{RR}, v6, 15, v{RR}")
    a(f"v_lshl_add_u32 v{RA}, v2, 4, v{RA}")
    a(f"v_lshlrev_b32 v{SA}, 3, v5")
    a(f"v_mul_u32_u24 v{SR}, s{sNA}, v6")
    a(f"v_add_u32 v{SR}, v{SR}, v7")
    a(f"v_lshl_add_u32 v{SR}, v{SR}, 8, v{SA}")
    a(f"v_lshl_add_u32 v{SA}, v2, 8, v{SA}")
    a(f"s_sub_u32 s{t0}, s{sNB_}, s{sNA}")
    a(f"v_mul_i32_i24 v6, s{t0}, v6")
    a(f"v_add_u32 v6, s{sNA}, v6")
    a("v_cmp_gt_u32 vcc, v6, v7")
    a("s_mov_b32 s72, 0x00ff00ff")
    a("s_mov_b32 s73, 0x00ff00ff")
    a("s_and_b64 vcc, vcc, s[72:73]")
    a(f"s_lshl_b32 s{t0}, s{sN0}, 8")
    a(f"s_lshl_b32 s{t1}, s3, 5")
    a(f"s_add_u32 s{t0}, s{t0}, s{t1}")
    a(f"s_lshl_b32 s{t1}, s{sNA}, 8")
    a(f"s_add_u32 s{t1}, s{t1}, s{t0}")
    ACC = T0
    a("s_waitcnt lgkmcnt(4)")
    for tl in range(3):
        a(mfma16(ACC + 4*tl, W2R + 32, DG + 4*tl, None))
    a("s_waitcnt lgkmcnt(0)")
    a("s_barrier")
    st("epb")
    XB = S
    jobs = [(ct, tl) for ct in range(8) for tl in range(3)]
    def xr(k):
        ct, tl = jobs[k]
        off = (ct >> 1) * 8192 + (ct & 1) * 2048 + (32768 if tl == 1 else 0)
        return f"ds_read_b128 {vr(XB+4*(k&7),4)}, v{RR if tl == 2 else RA} offset:{off}"
    for k in range(8): a(xr(k))
    for k, (ct, tl) in enumerate(jobs):
        a(f"s_waitcnt lgkmcnt({min(7, 23-k)})")
        a(mfma16(ACC + 4*tl, W2R + 4*ct, XB + 4*(k & 7), ACC + 4*tl))
        if k + 8 < 24:
            a(xr(k + 8))
    a("s_nop 5")
    for tl in range(3):
        for p in range(2):
            a(f"v_cvt_pk_bf16_f32 v{DD+2*tl+p}, v{ACC+4*tl+2*p}, v{ACC+4*tl+2*p+1}")
        if tl == 2:
            a("s_mov_b64 exec, vcc")
        a(f"buffer_store_dwordx2 {vr(DD+2*tl,2)}, v{SR if tl == 2 else SA}, s[{sOUT}:{sOUT+3}], s{t1 if tl == 1 else t0} offen")
    if diag:
        st("end")
        a("s_waitcnt vmcnt(0)")
        st("drained")
        if OPT.get("trace"):
            a("s_mov_b64 exec, -1")
            a("v_writelane_b32 v186, s81, 20")
            a("s_sub_u32 s90, s81, s71")
            a("v_writelane_b32 v186, s90, 21")
            a(f"v_writelane_b32 v186, s{sNT}, 22")
            a.srd(84, 22, 0x80000, WS_STAMP + 0x100000)
            a("s_lshl_b32 s90, s89, 3")
            a("s_add_u32 s90, s90, s3")
            a("s_lshl_b32 s90, s90, 8")
            a("v_lshlrev_b32 v6, 2, v1")
            a("buffer_store_dword v186, v6, s[84:87], s90 offen")
        if "smap" not in OPT: a("s_mov_b32 s100, s71")
        a("s_lshl_b32 s89, s89, 1")
        a(f"s_add_u32 s89, s89, s{sWIN}")
        a.stamp_flush(22, 1, 89, sWV)
    a.label("K2_END")
    a("s_endpgm")
    return a.text()
```

```python
N, E, D, H = 10000, 160000, 128, 256
NWIN = 512
NBKT = 256
BM = 3355
START_MAGIC, START_SH = 0x1388a917, 8
NCHUNK = 125
CH = E // NCHUNK
RECB = 12
LOG2E = 1.4426950408889634
LN2 = 0.6931471805599453

WS_REC = 0x000000
WS_TAB = 0x280000
WS_P = 0x300000
WS_WB = 0x800000
WS_W2F = 0x810000
WS_CST = WS_W2F + 72 * 1024
WS_PMAX = 0x830000
WS_EMAX = WS_PMAX + 5120
NFRAG = 64 + 72 + 8
WS_STAMP = 0x900000
NGEMM = 314
NGEMMW = 320

import struct
def f32bits(x):
    return struct.unpack("<I", struct.pack("<f", x))[0]


class Asm:
    def __init__(s):
        s.lines = []

    def __call__(s, txt=""):
        for l in txt.split("\n"):
            l = l.strip()
            if l:
                s.lines.append("    " + l)

    def label(s, name):
        s.lines.append(name + ":")

    def raw(s, txt):
        s.lines.append(txt)

    def text(s):
        return "\n".join(s.lines) + "\n"

    diag = False

    def stamp(s, k):
        if not s.diag:
            return
        s("s_memrealtime s[90:91]")
        s("s_waitcnt lgkmcnt(0)")
        s(f"s_mov_b32 s{92+k}, s90")

    def cyc(s, reg):
        if not s.diag:
            return
        s("s_memtime s[90:91]")
        s("s_waitcnt lgkmcnt(0)")
        s(f"s_mov_b32 s{reg}, s90")

    def stamp_flush(s, wsptr, kern, wg, wave, n=10):
        if not s.diag:
            return
        s("s_mov_b64 exec, 1")
        s.srd(84, wsptr, 0x80000, WS_STAMP + kern * 0x80000)
        s(f"s_lshl_b32 s90, s{wg}, 2")
        s(f"s_add_u32 s90, s90, s{wave}")
        s("s_lshl_b32 s90, s90, 6")
        s("s_mov_b32 s82, s90")
        s("v_mov_b32 v0, 0")
        for k in range(n):
            s(f"v_mov_b32 v1, s{92+k}")
            s(f"buffer_store_dword v1, v0, s[84:87], s90 offen offset:{4*k}")
        s.cyc(83)
        s("s_sub_u32 s83, s83, s88")
        s("v_mov_b32 v1, s83")
        s(f"buffer_store_dword v1, v0, s[84:87], s90 offen offset:40".replace("s90", "s82"))
        s("s_waitcnt vmcnt(0)")

    def srd(s, d, p, nrec, off=0, stride=0):
        if off:
            s(f"s_add_u32 s{d}, s{p}, {hex(off)}")
            s(f"s_addc_u32 s{d+1}, s{p+1}, 0")
        else:
            s(f"s_mov_b32 s{d}, s{p}")
            s(f"s_mov_b32 s{d+1}, s{p+1}")
        if stride:
            s(f"s_or_b32 s{d+1}, s{d+1}, {hex(stride << 16)}")
        s(f"s_mov_b32 s{d+2}, {hex(nrec)}")
        s(f"s_mov_b32 s{d+3}, 0x00020000")


class DsTrack:
    def __init__(s, a):
        s.a, s.ops = a, []

    def __call__(s, txt, tag=None):
        s.a(txt)
        if txt.strip().startswith("ds_"):
            s.ops.append(tag)

    def wait(s, *tags):
        last = max(i for i, t in enumerate(s.ops) if t in tags)
        s.a(f"s_waitcnt lgkmcnt({min(15, len(s.ops) - 1 - last)})")


def vr(a, n=1):
    return f"v{a}" if n == 1 else f"v[{a}:{a+n-1}]"


def sr(a, n=1):
    return f"s{a}" if n == 1 else f"s[{a}:{a+n-1}]"


def mfma(d, a, b, c):
    cs = "0" if c is None else vr(c, 16)
    return f"v_mfma_f32_32x32x16_bf16 {vr(d,16)}, {vr(a,4)}, {vr(b,4)}, {cs}"


def mfma16(d, a, b, c):
    cs = "0" if c is None else vr(c, 4)
    return f"v_mfma_f32_16x16x32_bf16 {vr(d,4)}, {vr(a,4)}, {vr(b,4)}, {cs}"


def dpp_scan32(a, v):
    for sh in (1, 2, 4, 8):
        a("s_nop 1")
        a(f"v_add_u32_dpp v{v}, v{v}, v{v} row_shr:{sh} row_mask:0xf bank_mask:0xf bound_ctrl:0")
    a("s_nop 1")
    a(f"v_add_u32_dpp v{v}, v{v}, v{v} row_bcast:15 row_mask:0xa bank_mask:0xf")


def dpp_scan64(a, v):
    dpp_scan32(a, v)
    a("s_nop 1")
    a(f"v_add_u32_dpp v{v}, v{v}, v{v} row_bcast:31 row_mask:0xc bank_mask:0xf")


def dpp_max64(a, v):
    for sh in (1, 2, 4, 8):
        a("s_nop 1")
        a(f"v_max_u32_dpp v{v}, v{v}, v{v} row_shr:{sh} row_mask:0xf bank_mask:0xf bound_ctrl:0")
    a("s_nop 1")
    a(f"v_max_u32_dpp v{v}, v{v}, v{v} row_bcast:15 row_mask:0xa bank_mask:0xf")
    a("s_nop 1")
    a(f"v_max_u32_dpp v{v}, v{v}, v{v} row_bcast:31 row_mask:0xc bank_mask:0xf")


def descriptor(name, vgpr, sgpr=102):
    acc = (vgpr + 3) // 4 * 4
    return f""".section .rodata,"a"
.p2align 6
.amdhsa_kernel {name}
  .amdhsa_next_free_vgpr {vgpr}
  .amdhsa_next_free_sgpr {sgpr}
  .amdhsa_accum_offset {acc}
  .amdhsa_group_segment_fixed_size 0
  .amdhsa_kernarg_size 88
  .amdhsa_user_sgpr_count 2
  .amdhsa_user_sgpr_kernarg_segment_ptr 1
  .amdhsa_system_sgpr_workgroup_id_x 1
.end_amdhsa_kernel
"""


def entry(name):
    return f""".text
.globl {name}
.p2align 8
.type {name},@function
{name}:
"""
```

```python
from common import *

K1_LDS = 65536
K1_VGPR = 128
K1_BLOCK = 320


SF = {"p": "", "r": ""}


def gen_k1(order=("sort", "gemm"), diag=False, pf="", rf="", cpf=16):
    SF["p"], SF["r"] = pf, rf
    a = Asm()
    a.diag = diag
    total = NCHUNK + NGEMMW
    a(f"s_cmp_ge_u32 s2, {total}")
    a("s_cbranch_scc1 K1_END")
    a.stamp(0)
    a.cyc(88)
    if diag:
        a("s_mov_b32 s89, s2")
        for k in range(1, 10): a(f"s_mov_b32 s{92+k}, 0")
    a("s_load_dwordx16 s[4:19], s[0:1], 0")
    a("s_load_dwordx2 s[20:21], s[0:1], 80")
    a("v_lshrrev_b32 v2, 6, v0")
    a("v_and_b32 v1, 63, v0")
    a("v_readfirstlane_b32 s3, v2")
    if cpf:
        a(f"s_cmp_ge_u32 s2, {cpf}")
        a("s_cbranch_scc1 K1_NOPF")
        a("s_getpc_b64 s[60:61]")
        a.label("K1_PC")
        a("s_mov_b32 s62, K2_END-K1_PC")
        a("s_mov_b32 s63, 0x00020000")
        a("v_lshlrev_b32 v60, 7, v0")
        a("buffer_load_dword v61, v60, s[60:63], 0 offen")
        a.label("K1_NOPF")
    a(f"s_cmp_ge_u32 s2, {NCHUNK}")
    a("s_cbranch_scc1 K1_gemm")

    def fin():
        if diag:
            a.stamp(8)
            a("s_waitcnt vmcnt(0)")
            a.stamp(9)
            a("s_cmp_eq_u32 s3, 4")
            a("s_cbranch_scc1 K1_END")
            a.stamp_flush(20, 0, 89, 3)
        a("s_endpgm")
    k1_sort(a, 0)
    a("s_branch K1_sort2")
    a.label("K1_gemm")
    a(f"s_sub_u32 s2, s2, {NCHUNK}")
    k1_gemm(a)
    fin()
    a.label("K1_sort2")
    k1_sort(a, 1)
    fin()
    a.label("K1_prep")
    k1_prep(a)
    a.label("K1_END")
    a("s_endpgm")
    return a.text(), total


def k1_sort_head(a):
    HIST, STRT, EMX, RB = 0, 2048, 4096, 4352
    DST, SRC, EV, BK, RK = 8, 12, 16, 24, 28
    a("v_lshlrev_b32 v3, 4, v0")
    a("v_lshlrev_b32 v4, 5, v0")
    a("v_lshlrev_b32 v5, 3, v0")
    a("v_mov_b32 v6, 0")
    a("v_mov_b32 v7, 0")
    a(f"s_mul_i32 s22, s2, {CH*4}")
    a(f"s_mul_i32 s23, s2, {CH*8}")
    a(f"ds_write_b64 v5, v[6:7] offset:{HIST}")
    a("s_waitcnt lgkmcnt(0)")
    a.srd(24, 10, E * 4)
    a(f"buffer_load_dwordx4 {vr(DST,4)}, v3, s[24:27], s22 offen")
    a.srd(32, 6, E * 8)
    a(f"buffer_load_dwordx4 {vr(EV,4)}, v4, s[32:35], s23 offen")
    a(f"buffer_load_dwordx4 {vr(EV+4,4)}, v4, s[32:35], s23 offen offset:16")
    a.srd(28, 8, E * 4)
    a(f"buffer_load_dwordx4 {vr(SRC,4)}, v3, s[28:31], s22 offen")


def k1_sort(a, part):
    HIST, STRT, EMX, RB = 0, 2048, 4096, 4352
    DST, SRC, EV, BK, RK = 8, 12, 16, 24, 28
    if part == 0:
        return k1_sort_head(a)
    a.srd(40, 20, E * 16, WS_REC)
    a.srd(44, 20, NCHUNK * NWIN * 4, WS_TAB)
    a.srd(48, 20, NCHUNK * 20, WS_EMAX)
    a("v_mov_b32 v32, 1")
    a(f"s_movk_i32 s37, {BM}")
    a("s_mov_b32 s52, 0x7fff7fff")
    a("v_lshlrev_b32 v33, 5, v1")
    a("s_barrier")
    a.stamp(1)
    a("s_waitcnt vmcnt(3)")
    a.stamp(2)
    for j in range(4):
        a(f"v_mul_u32_u24 v{BK+j}, s37, v{DST+j}")
    for j in range(4):
        a(f"v_lshrrev_b32 v{BK+j}, 16, v{BK+j}")
    for j in range(4):
        a(f"v_lshlrev_b32 v{BK+j}, 2, v{BK+j}")
        a(f"ds_add_rtn_u32 v{RK+j}, v{BK+j}, v32 offset:{HIST}")
    a("s_waitcnt lgkmcnt(0)")
    a("s_barrier")
    a.stamp(3)
    a(f"ds_read_b128 v[40:43], v33 offset:{HIST}")
    a(f"ds_read_b128 v[44:47], v33 offset:{HIST+16}")
    a("s_waitcnt lgkmcnt(0)")
    a("v_mov_b32 v48, 0")
    a("v_mov_b32 v49, v40")
    for k in range(2, 8):
        a(f"v_add_u32 v{48+k}, v{48+k-1}, v{40+k-1}")
    a("v_add_u32 v56, v55, v47")
    a("v_mov_b32 v57, v56")
    dpp_scan64(a, 56)
    a("v_sub_u32 v56, v56, v57")
    for k in range(8):
        a(f"v_add_u32 v{48+k}, v{48+k}, v56")
    a(f"ds_write_b128 v33, v[48:51] offset:{STRT}")
    a(f"ds_write_b128 v33, v[52:55] offset:{STRT+16}")
    a("s_waitcnt lgkmcnt(0)")
    for j in range(4):
        a(f"ds_read_b32 v{BK+j}, v{BK+j} offset:{STRT}")
    a("s_cmp_lg_u32 s3, 4")
    a("s_cbranch_scc1 K1S_notab")
    for k in range(8):
        a(f"v_lshl_or_b32 v{40+k}, v{40+k}, 16, v{48+k}")
    a("s_lshl_b32 s53, s2, 11")
    a(f"buffer_store_dwordx4 v[40:43], v33, s[44:47], s53 offen {SF['r']}")
    a(f"buffer_store_dwordx4 v[44:47], v33, s[44:47], s53 offen offset:16 {SF['r']}")
    a("s_waitcnt vmcnt(2)")
    a("s_branch K1S_j")
    a.label("K1S_notab")
    a("s_waitcnt vmcnt(0)")
    a.label("K1S_j")
    a(f"s_mul_i32 s53, s2, {CH*16}")
    for j in range(4):
        a(f"v_lshl_or_b32 v{SRC+j}, v{DST+j}, 14, v{SRC+j}")
    for j in range(4):
        a(f"s_waitcnt lgkmcnt({3 - j + 2*j})")
        a(f"v_add_lshl_u32 v{BK+j}, v{BK+j}, v{RK+j}, 4")
        a(f"ds_write_b64 v{BK+j}, {vr(EV+2*j,2)} offset:{RB}")
        a(f"ds_write_b32 v{BK+j}, v{SRC+j} offset:{RB+8}")
    a("s_waitcnt lgkmcnt(0)")
    a("s_barrier")
    a.stamp(4)
    for j in range(4):
        a(f"ds_read_b128 {vr(40+4*j,4)}, v3 offset:{RB + 5120*j}")
    for j in range(4):
        a(f"s_waitcnt lgkmcnt({3-j})")
        a(f"buffer_store_dwordx4 {vr(40+4*j,4)}, v3, s[40:43], s53 offen {SF['r']}")
        if j < 3:
            a("s_add_u32 s53, s53, 5120")
    for j in range(8):
        a(f"v_and_b32 v{60+j}, s52, v{EV+j}")
    for st in (1, 2, 4):
        for j in range(0, 8, 2*st):
            a(f"v_pk_max_u16 v{60+j}, v{60+j}, v{60+j+st}")
    a("v_lshlrev_b32 v61, 16, v60")
    a("v_and_b32 v60, 0xffff0000, v60")
    a("v_max_u32 v60, v60, v61")
    dpp_max64(a, 60)
    a("s_mov_b32 exec_lo, 0")
    a("s_mov_b32 exec_hi, 0x80000000")
    a("s_mul_i32 s54, s2, 20")
    a("s_lshl_b32 s55, s3, 2")
    a("s_add_u32 s54, s54, s55")
    a("buffer_store_dword v60, v6, s[48:51], s54 offen")


def k1_prep(a):
    a(f"s_cmp_ge_u32 s2, {NFRAG}")
    a("s_cbranch_scc1 K1_END")
    a("v_and_b32 v3, 31, v1")
    a("v_lshlrev_b32 v3, 1, v3")
    a("v_lshrrev_b32 v4, 5, v1")
    a("v_lshlrev_b32 v5, 4, v1")
    a(f"s_mov_b32 s38, {hex(f32bits(-LOG2E))}")
    a("s_lshl_b32 s22, s2, 10")
    a("s_waitcnt lgkmcnt(0)")
    a.srd(40, 20, NFRAG * 1024, WS_WB)
    a.srd(24, 12, 260 * 512)
    a("s_cmp_ge_u32 s2, 136")
    a("s_cbranch_scc1 K1P_cst")
    a("s_cmp_ge_u32 s2, 64")
    a("s_cbranch_scc1 K1P_w2")
    a("v_lshl_add_u32 v3, v4, 12, v3")
    a("s_lshr_b32 s23, s2, 3")
    a("s_and_b32 s36, s2, 7")
    a("s_lshl_b32 s23, s23, 6")
    a("s_lshl_b32 s36, s36, 13")
    a("s_add_u32 s23, s23, s36")
    a("s_add_u32 s23, s23, 0x10000")
    for j in range(8):
        a(f"buffer_load_ushort v{8+j}, v3, s[24:27], s23 offen offset:{512*j}")
    a("s_barrier")
    a("s_waitcnt vmcnt(0)")
    for j in range(8):
        a(f"v_lshlrev_b32 v{8+j}, 16, v{8+j}")
    for j in range(8):
        a(f"v_mul_f32 v{8+j}, s38, v{8+j}")
    for q in range(4):
        a(f"v_cvt_pk_bf16_f32 v{16+q}, v{8+2*q}, v{9+2*q}")
    a("buffer_store_dwordx4 v[16:19], v5, s[40:43], s22 offen")
    a("s_endpgm")
    a.label("K1P_w2")
    a("s_sub_u32 s37, s2, 64")
    a("s_mul_i32 s23, s37, 57")
    a("s_lshr_b32 s23, s23, 9")
    a("s_mul_i32 s36, s23, 9")
    a("s_sub_u32 s36, s37, s36")
    a("s_lshl_b32 s23, s23, 5")
    a("v_and_b32 v3, 15, v1")
    a("v_lshlrev_b32 v3, 1, v3")
    a("s_cmp_eq_u32 s36, 8")
    a("s_cbranch_scc1 K1P_b2")
    a.srd(24, 16, 256 * 256)
    a("v_lshl_add_u32 v3, v4, 12, v3")
    a("v_bfe_u32 v6, v1, 4, 1")
    a("v_lshl_add_u32 v3, v6, 10, v3")
    a("s_lshl_b32 s36, s36, 13")
    a("s_add_u32 s23, s23, s36")
    for j in range(8):
        a(f"buffer_load_ushort v{8+j}, v3, s[24:27], s23 offen offset:{256*(8*(j>>2)+(j&3))}")
    a("s_barrier")
    a("s_waitcnt vmcnt(0)")
    for q in range(4):
        a(f"v_lshl_or_b32 v{16+q}, v{9+2*q}, 16, v{8+2*q}")
    a("buffer_store_dwordx4 v[16:19], v5, s[40:43], s22 offen")
    a("s_endpgm")
    a.label("K1P_b2")
    a.srd(24, 18, 256)
    a("buffer_load_ushort v8, v3, s[24:27], s23 offen")
    for q in range(4):
        a(f"v_mov_b32 v{16+q}, 0")
    a("s_barrier")
    a("s_waitcnt vmcnt(0)")
    a("s_mov_b64 exec, 0xffff")
    a("v_lshl_or_b32 v16, v8, 16, v8")
    a("v_mov_b32 v17, v8")
    a("s_mov_b64 exec, -1")
    a("buffer_store_dwordx4 v[16:19], v5, s[40:43], s22 offen")
    a("s_endpgm")
    a.label("K1P_cst")
    a("s_sub_u32 s37, s2, 136")
    a("s_lshl_b32 s23, s37, 6")
    a("s_add_u32 s36, s23, 0x20000")
    a.srd(28, 14, 512)
    for k in range(4):
        a(f"buffer_load_ushort v{8+k}, v3, s[24:27], s36 offen offset:{512*k}")
    a("buffer_load_ushort v12, v3, s[28:31], s23 offen")
    a("s_barrier")
    a("s_waitcnt vmcnt(0)")
    for k in range(5):
        a(f"v_lshlrev_b32 v{8+k}, 16, v{8+k}")
    for k in range(4):
        a(f"v_mul_f32 v{8+k}, s38, v{8+k}")
    a("v_mul_f32 v18, s38, v12")
    a("v_add_f32 v19, |v8|, |v9|")
    a("v_add_f32 v19, |v10|, v19")
    a("v_add_f32 v19, |v11|, v19")
    for p in range(2):
        a(f"v_cvt_pk_bf16_f32 v{16+p}, v{8+2*p}, v{9+2*p}")
    a("s_mov_b32 exec_hi, 0")
    for p in range(2):
        a(f"v_lshlrev_b32 v6, 16, v{16+p}")
        a(f"v_and_b32 v7, 0xffff0000, v{16+p}")
        a(f"v_sub_f32 v6, v{8+2*p}, v6")
        a(f"v_sub_f32 v7, v{9+2*p}, v7")
        a(f"v_cvt_pk_bf16_f32 v{16+p}, v6, v7")
    a("s_mov_b32 exec_hi, -1")
    a("buffer_store_dwordx4 v[16:19], v5, s[40:43], s22 offen")


def k1_gemm(a):
    WL, XL = 0, 32768
    XB, WA, ACC = 32, 64, 96
    a("s_cmp_eq_u32 s3, 4")
    a("s_cbranch_scc1 K1_prep")
    a("s_lshr_b32 s22, s2, 4")
    a("s_lshl_b32 s22, s22, 3")
    a("s_and_b32 s23, s2, 7")
    a("s_add_u32 s22, s22, s23")
    a(f"s_cmp_ge_u32 s22, {NGEMM // 2}")
    a("s_cbranch_scc1 K1_END")
    a("s_bfe_u32 s23, s2, 0x10003")
    a("s_and_b32 s36, s3, 1")
    a("s_lshr_b32 s37, s3, 1")
    a("v_lshrrev_b32 v3, 3, v1")
    a("v_and_b32 v4, 7, v1")
    a("v_lshlrev_b32 v4, 4, v4")
    a("v_lshl_add_u32 v3, v3, 9, v4")
    a("v_and_b32 v4, 16, v1")
    a("v_lshlrev_b32 v4, 2, v4")
    a("v_xor_b32 v3, v3, v4")
    a("v_lshrrev_b32 v5, 4, v1")
    a("v_and_b32 v6, 15, v1")
    a("v_xor_b32 v6, v6, v5")
    a("v_lshlrev_b32 v6, 4, v6")
    a("v_lshl_add_u32 v8, v5, 8, v6")
    for z in range(1, 4):
        a(f"v_xor_b32 v{8+z}, {64*z}, v8")
    a("s_lshl_b32 s38, s37, 15")
    a("s_lshl_b32 s39, s23, 8")
    a("s_add_u32 s38, s38, s39")
    a("s_lshl_b32 s39, s36, 7")
    a("s_add_u32 s38, s38, s39")
    a("s_lshl_b32 s52, s36, 14")
    a("s_lshl_b32 s39, s37, 13")
    a("s_add_u32 s52, s52, s39")
    a("s_lshl_b32 s53, s22, 1")
    a("s_add_u32 s53, s53, s37")
    a("s_lshl_b32 s54, s53, 13")
    a("s_lshl_b32 s39, s36, 12")
    a("s_add_u32 s54, s54, s39")
    a("s_lshl_b32 s55, s37, 13")
    a("s_add_u32 s55, s55, s39")
    a(f"s_add_u32 m0, s55, {XL}")
    a("s_waitcnt lgkmcnt(0)")
    a.srd(24, 4, N * 256)
    for z in range(4):
        a(f"buffer_load_dwordx4 v{8+z}, s[24:27], s54 offen offset:{1024*z} lds")
    a.srd(28, 12, 260 * 512)
    for z in range(8):
        a("s_mov_b32 m0, s52")
        a("s_add_u32 s52, s52, 1024")
        a("buffer_load_dwordx4 v3, s[28:31], s38 offen lds")
        a("s_add_u32 s38, s38, 4096")
    a.srd(40, 20, N * 512, WS_P)
    a.srd(44, 20, NGEMM * 16, WS_PMAX)
    a("v_lshrrev_b32 v12, 5, v1")
    a("v_and_b32 v13, 31, v1")
    a("v_bfe_u32 v14, v1, 2, 2")
    a("v_lshl_add_u32 v14, v12, 3, v14")
    a("v_lshlrev_b32 v14, 7, v14")
    a("v_and_b32 v15, 3, v1")
    a("v_lshl_add_u32 v14, v15, 3, v14")
    a("v_bfe_u32 v15, v1, 4, 1")
    a("v_lshl_add_u32 v14, v15, 5, v14")
    a("v_bfe_u32 v15, v1, 3, 1")
    a("v_lshl_add_u32 v14, v15, 6, v14")
    a("s_lshl_b32 s39, s36, 14")
    a("v_add_u32 v14, s39, v14")
    a("v_xor_b32 v26, 64, v14")
    a("v_and_b32 v15, 15, v1")
    a("v_xor_b32 v15, v15, v12")
    a("v_lshlrev_b32 v15, 4, v15")
    a("v_lshl_add_u32 v15, v13, 8, v15")
    a("s_lshl_b32 s39, s37, 13")
    a(f"s_add_u32 s39, s39, {XL}")
    a("v_add_u32 v16, s39, v15")
    for s in range(1, 8):
        a(f"v_xor_b32 v{16+s}, {32*s}, v16")
    a("v_and_b32 v27, 7, v1")
    a("v_lshlrev_b32 v27, 4, v27")
    a("v_lshl_add_u32 v27, v13, 7, v27")
    a("v_lshl_add_u32 v27, v12, 3, v27")
    a("s_lshl_b32 s39, s3, 12")
    a("s_add_u32 s39, s39, 49152")
    a("v_add_u32 v27, s39, v27")
    a("v_lshl_add_u32 v28, v1, 4, s39")
    a("v_lshrrev_b32 v24, 3, v1")
    a("v_and_b32 v25, 7, v1")
    a("v_xor_b32 v25, v25, v24")
    a("v_lshlrev_b32 v25, 4, v25")
    a("v_lshl_add_u32 v24, v24, 9, v25")
    a("s_lshl_b32 s56, s53, 14")
    a("s_lshl_b32 s39, s23, 8")
    a("s_add_u32 s56, s56, s39")
    a("s_lshl_b32 s39, s36, 7")
    a("s_add_u32 s56, s56, s39")
    a(f"s_mov_b32 s57, {hex(f32bits(-LOG2E))}")
    a.stamp(1)
    a("s_waitcnt vmcnt(0)")
    a.stamp(2)
    a("s_barrier")
    a.stamp(3)
    d = DsTrack(a)
    def wread(k):
        T, s = k >> 3, k & 7
        for i in range(2):
            d(f"ds_read_b64_tr_b16 {vr(WA+(k&7)*4+2*i,2)}, v{(14, 26)[T]} offset:{16*s*128+4*i*128}", f"w{k}")
    def post(T):
        P = [f"v_mul_f32 v{ACC+16*T+r}, s57, v{ACC+16*T+r}" for r in range(16)]
        for g in range(4):
            P.append(f"v_xor_b32 v{29+(g&1)}, {16*(4*T+g)}, v27")
            for p in range(2):
                P.append(f"v_cvt_pk_bf16_f32 v{PK+2*g+p}, v{ACC+16*T+4*g+2*p}, v{ACC+16*T+4*g+2*p+1}")
            P.append(f"ds_write_b64 v{29+(g&1)}, {vr(PK+2*g,2)}")
        return P
    PK = 8
    for s in range(4):
        d(f"ds_read_b128 {vr(XB+4*s,4)}, v{16+s}", f"x{s}")
        wread(s)
    p0 = post(0)
    for k in range(16):
        T, s = k >> 3, k & 7
        d.wait(f"w{k}", f"x{s}")
        a(mfma(ACC + 16*T, WA + (k & 7)*4, XB + 4*s, None if s == 0 else ACC + 16*T))
        if k + 4 < 8:
            d(f"ds_read_b128 {vr(XB+4*(k+4),4)}, v{16+k+4}", f"x{k+4}")
        if k + 4 < 16:
            wread(k + 4)
        if k >= 11:
            take = p0[:7]; p0 = p0[7:]
            for l in take: d(l)
    a.stamp(4)
    a(f"v_max_f32 v25, |v{ACC}|, |v{ACC+1}|")
    for r in range(2, 16, 2):
        a(f"v_max3_f32 v25, |v{ACC+r}|, |v{ACC+r+1}|, v25")
    a("s_nop 1")
    for l in post(1): a(l)
    for q in range(4):
        a(f"ds_read_b128 {vr(XB+4*q,4)}, v28 offset:{1024*q}")
    for r in range(16, 32, 2):
        a(f"v_max3_f32 v25, |v{ACC+r}|, |v{ACC+r+1}|, v25")
    for q in range(4):
        a(f"s_waitcnt lgkmcnt({3-q})")
        a(f"buffer_store_dwordx4 {vr(XB+4*q,4)}, v24, s[40:43], s56 offen {SF['p']}")
        if q < 3:
            a("s_add_u32 s56, s56, 4096")
    dpp_max64(a, 25)
    a("s_lshl_b32 s39, s22, 1")
    a("s_add_u32 s39, s39, s23")
    a("s_lshl_b32 s39, s39, 4")
    a("s_lshl_b32 s36, s3, 2")
    a("s_add_u32 s39, s39, s36")
    a("v_mov_b32 v26, 0")
    a("s_mov_b32 exec_lo, 0")
    a("s_mov_b32 exec_hi, 0x80000000")
    a("buffer_store_dword v25, v26, s[44:47], s39 offen")
```

```python
from common import *

MAXT = 13
BLKSZ = 3072
BLK = 0
BLKW = MAXT * BLKSZ
CNT = BLK + 2 * BLKW
MISC = CNT + 256
IDX = MISC + 256
IDXW = MAXT * 128
LIST = IDX + 2 * IDXW
XW = LIST + 4096
RING0 = 98304
K2_LDS = RING0 + 65536
assert CNT % 256 == 0 and XW % 256 == 0 and XW + 10240 <= RING0
CAP1, CAP2 = 128, 96
PADIDX = N
K2_BLOCK = 512
NBKT = NWIN // 2

IDN, QB, S, T0, T1, DD, MM, NN, HF, HB = 8, 16, 32, 64, 80, 96, 112, 120, 128, 136
PF, AO, SO0, IX, PA, BA, IA, DEG = 140, 156, 164, 168, 176, 180, 181, 182
VBASE, VCNT, VREC = 183, 184, 185
W2R = 188
WBQ = 224
SO1 = 224
K2_VGPR = 256
TT = (T0, T1)
SO = (SO0, SO1)

sTAB, sREC, sP, sX, sWF, sOUT, sMX = 24, 28, 32, 36, 40, 44, 48
sWIN, sWV, sN0, sNA, sNW, sNB_ = 52, 53, 54, 55, 56, 57
sTW, sLO, sCAP, sNB, sNT, sI, sRING = 58, 59, 60, 61, 62, 63, 64
sF1, sF2, sSLOW, sSINIT, sBLK, sIDX = 65, 66, 67, 68, 69, 70
sM0, sM1 = 72, 74
sLIST, sCA, sSA, sW2, sNB2, sWBO = 6, 7, 8, 9, 10, 11
t0, t1, t2, t3 = 76, 77, 78, 79

OPT = dict()


def dma(stage_off):
    out = []
    for q in range(4):
        out.append(f"s_add_u32 m0, s{sRING}, {stage_off + 1024*q}")
        out.append("s_nop 0")
        out.append(f"buffer_load_dwordx4 {vr(IX+2*q,2)}, s[{sP}:{sP+3}], 0 idxen offen lds")
    return out


def idx_reads(tile_off):
    return [f"ds_read_b32 v{IX+2*q}, v{IA} offset:{tile_off*128 + 32*q}" for q in range(4)]


def pf_reads(stage):
    return [f"ds_read_b128 {vr(PF+4*k,4)}, v{PA+k} offset:{stage*4096}" for k in range(4)]


def ao_reads(tile_off):
    return [f"ds_read_b128 {vr(AO+4*u,4)}, v{BA} offset:{tile_off*BLKSZ + 1024*u}" for u in range(2)]


def so_read(tile_off, buf):
    return f"ds_read_b128 {vr(SO[buf],4)}, v{BA} offset:{tile_off*BLKSZ + 2048}"


def zmf(c):
    t = TT[c]
    return [mfma(t, PF + 8*c, IDN, None), mfma(t, PF + 8*c + 4, IDN + 4, t),
            mfma(t, AO, QB + 8*c, t), mfma(t, AO + 4, QB + 8*c + 4, t)]


def ssmf(c, buf, first=False):
    return mfma(S + 16*c, HB, SO[buf], None if first else S + 16*c)


def cvts():
    return [f"v_cvt_pk_bf16_f32 v{HB+p}, v{HF+2*p}, v{HF+2*p+1}" for p in range(4)]


def exps(c):
    return [f"v_exp_f32 v{DD+r}, v{TT[c]+r}" for r in range(16)]


def rcps():
    return [f"v_rcp_f32 v{MM+r}, v{MM+r}" for r in range(8)]


def fms():
    return [f"v_mul_f32 v{HF+r}, v{NN+r}, v{MM+r}" for r in range(8)]


def prun(c, fm=True):
    t = TT[c]
    P = fms() if fm else []
    if OPT.get("p5"):
        P += [f"v_add_f32 v{DD+r}, 1.0, v{DD+r}" for r in range(16)]
        P += [f"v_mul_f32 v{MM+j}, v{DD+2*j}, v{DD+2*j+1}" for j in range(8)]
        P += [f"v_mul_f32 v{NN+j}, v{t+2*j}, v{DD+2*j+1}" for j in range(8)]
        P += [f"v_fma_f32 v{NN+j}, v{t+2*j+1}, v{DD+2*j}, v{NN+j}" for j in range(8)]
        return P
    P += [f"v_add_f32 v{DD+2*j+1}, 1.0, v{DD+2*j+1}" for j in range(8)]
    P += [f"v_fma_f32 v{NN+j}, v{t+2*j+1}, v{DD+2*j}, v{t+2*j+1}" for j in range(8)]
    P += [f"v_fma_f32 v{MM+j}, v{DD+2*j}, v{DD+2*j+1}, v{DD+2*j+1}" for j in range(8)]
    P += [f"v_fmac_f32 v{NN+j}, v{t+2*j}, v{DD+2*j+1}" for j in range(8)]
    return P


def weave(base, inserts):
    out = []
    ins = sorted(inserts, key=lambda x: x[0])
    k = 0
    for i, l in enumerate(base):
        while k < len(ins) and ins[k][0] <= i:
            out += ins[k][1]; k += 1
        out.append(l)
    while k < len(ins):
        out += ins[k][1]; k += 1
    return out


def trun(c, par, stage, role):
    z = zmf(1 - c)
    late = role == "B" and c == 1
    w = ["s_waitcnt lgkmcnt(0)"] if late else []
    if stage == 0:
        base = exps(c)
        pos = [0, 4, 8, 12]
    elif stage == 1:
        base = exps(c) + rcps()
        pos = [8, 12, 16, 20] if late else [0, 5, 10, 15]
    else:
        base = cvts() + exps(c) + rcps()
        pos = [12, 16, 20, 24, 6] if late else [0, 6, 11, 16, 21]
    ins = [(pos[0], w + [z[0]])] + [(pos[k], [z[k]]) for k in (1, 2, 3)]
    if stage >= 2:
        ins.append((pos[4], [ssmf(c, par ^ 1, stage < 4)]))
    return [f"s_setprio {2 if role == 'A' else 1}"] + weave(base, ins) + ["s_setprio 0"]


def w2_loads(fs):
    out = []
    for f in fs:
        if f in (4, 8):
            out.append(f"s_add_u32 s{t3}, s{sW2}, {1024*f}")
        so = sW2 if f < 4 else t3
        out.append(f"buffer_load_dwordx4 {vr(W2R+4*f,4)}, v4, s[{sWF}:{sWF+3}], s{so} offen offset:{(f & 3) * 1024}")
    return out


def blk1(par, role, vm=4, w2=()):
    nst = (par + 1) & 1
    pf, ao = pf_reads(nst), ao_reads(par + 1)
    out = [f"s_waitcnt vmcnt({vm})"] + pf[:2] + ao + pf[2:] + idx_reads(par + 3) + [so_read(par, par)] + w2_loads(w2)
    return out + (["s_waitcnt lgkmcnt(0)"] if role == "A" else [])


def blk2(par):
    nst = (par + 1) & 1
    tr = OPT.get("trace")
    return (dma(nst * 4096) + (["s_memtime s[90:91]"] if tr else [])
            + [f"s_sub_u32 s{sI}, s{sI}, 1", f"s_cmp_eq_u32 s{sI}, 0"]
            + (["s_waitcnt lgkmcnt(0)", f"s_mov_b32 m0, s{sI}", "v_writelane_b32 v186, s90, m0"] if tr else []))


INC = [f"v_add_u32 v{BA}, {2*BLKSZ}, v{BA}", f"v_add_u32 v{IA}, 256, v{IA}"]


def drain(par):
    return (cvts() + rcps()[:2] + [ssmf(0, par)] + rcps()[2:] + ["s_nop 0"] + fms() + cvts() + ["s_nop 1", ssmf(1, par)])


DG, RA, RR, SA, SR, XWA = 228, 236, 237, 238, 239, 240
sRM, sOA, sOB = 12, 14, 15


def epi_prelude():
    t = [PF + k for k in range(12)]
    hi, p0, p1, n, kg, w, nd, i0, i1, i2, sz = t[:11]
    L = [f"v_and_b32 v{hi}, 0xffff0000, v{DEG}", f"v_and_b32 v{n}, 15, v1", f"v_sub_f32 v{p1}, v{DEG}, v{hi}",
         f"v_bfe_u32 v{w}, v1, 2, 1", f"v_and_b32 v{p0}, 0xffff0000, v{p1}", f"v_and_b32 v{nd}, 3, v1",
         f"v_sub_f32 v{p1}, v{p1}, v{p0}", f"v_lshrrev_b32 v{hi}, 16, v{hi}", f"v_or_b32 v{p0}, v{p0}, v{hi}",
         f"v_lshrrev_b32 v{p1}, 16, v{p1}", f"v_add_u32 v{nd}, 16, v{nd}", f"v_lshlrev_b32 v{i0}, 2, v{n}",
         f"v_add_u32 v{i1}, 128, v{i0}", f"v_lshl_add_u32 v{i2}, v{w}, 5, v{nd}", f"v_lshlrev_b32 v{i2}, 2, v{i2}",
         f"v_lshrrev_b32 v{kg}, 4, v1"]
    for tl, ix in enumerate((i0, i1, i2)):
        L += [f"ds_bpermute_b32 v{DG+2*tl}, v{ix}, v{p0}", f"ds_bpermute_b32 v{DG+2*tl+1}, v{ix}, v{p1}"]
    L += [f"v_mov_b32 v{DG+6}, 0", f"v_mov_b32 v{DG+7}, 0",
          f"v_lshlrev_b32 v{RA}, 9, v{kg}", f"v_add_u32 v{RA}, {RING0}, v{RA}", f"v_lshl_add_u32 v{RR}, v{nd}, 4, v{RA}", f"v_lshl_add_u32 v{RR}, v{w}, 15, v{RR}",
          f"v_lshl_add_u32 v{RA}, v{n}, 4, v{RA}", f"v_lshlrev_b32 v{SA}, 3, v{kg}", f"v_mul_u32_u24 v{SR}, s{sNA}, v{w}",
          f"v_add_u32 v{SR}, v{SR}, v{nd}", f"v_lshl_add_u32 v{SR}, v{SR}, 8, v{SA}", f"v_lshl_add_u32 v{SA}, v{n}, 8, v{SA}",
          f"s_sub_u32 s{t0}, s{sNB_}, s{sNA}", f"v_mul_i32_i24 v{sz}, s{t0}, v{w}", f"v_add_u32 v{sz}, s{sNA}, v{sz}",
          f"v_cmp_gt_u32 vcc, v{sz}, v{nd}", f"s_lshl_b32 s{sOA}, s{sN0}, 8", f"s_lshl_b32 s{t0}, s3, 5",
          f"s_add_u32 s{sOA}, s{sOA}, s{t0}", f"s_lshl_b32 s{sOB}, s{sNA}, 8", f"s_add_u32 s{sOB}, s{sOB}, s{sOA}",
          f"s_and_b32 s{sRM}, vcc_lo, 0x00ff00ff", f"s_and_b32 s{sRM+1}, vcc_hi, 0x00ff00ff"]
    return L


def fast_loop(a, role):
    L = "K2" + role
    em = lambda ls: [a(l) for l in ls]
    A = role == "A"
    T = lambda c, par, stage: trun(c, par, stage, role)
    def unit(T_, blk, P):
        em(T_)
        em(blk + P if A else P + blk)
    unit(T(0, 0, 0), blk1(0, role, 4, (5, 6)), prun(0, False))
    unit(T(1, 0, 1), blk2(0), prun(1))
    unit(T(0, 1, 2), blk1(1, role, 6, (7, 8)), prun(0))
    if A:
        em(T(1, 1, 3)); em(blk2(1))
        a(f"s_cbranch_scc1 {L}_EXIT1")
        a.raw(".p2align 6")
        a.label(f"{L}_LOOP")
        em(INC + prun(1))
        unit(T(0, 0, 4), blk1(0, role), prun(0))
        em(T(1, 0, 4)); em(blk2(0))
        a(f"s_cbranch_scc1 {L}_EXIT0")
        em(prun(1))
        unit(T(0, 1, 4), blk1(1, role), prun(0))
        em(T(1, 1, 4)); em(blk2(1))
        a(f"s_cbranch_scc0 {L}_LOOP")
    else:
        unit(T(1, 1, 3), blk2(1), prun(1))
        a(f"s_cbranch_scc1 {L}_EXIT1")
        a.raw(".p2align 6")
        a.label(f"{L}_LOOP")
        unit(T(0, 0, 4), blk1(0, role), INC + prun(0))
        unit(T(1, 0, 4), blk2(0), prun(1))
        a(f"s_cbranch_scc1 {L}_EXIT0")
        unit(T(0, 1, 4), blk1(1, role), prun(0))
        unit(T(1, 1, 4), blk2(1), prun(1))
        a(f"s_cbranch_scc0 {L}_LOOP")
    for par in (1, 0):
        a.label(f"{L}_EXIT{par}")
        if A: em(prun(1))
        em(drain(par))
        a("s_branch K2_EPI")


def gen_k2(force_slow=False, diag=False, nogather=False, **opt):
    OPT.clear(); OPT.update(opt)
    a = Asm()
    a.diag = diag
    smap = OPT.get("smap", dict(start=0, tab=1, rec=2, recl=3, b4=4, loop=5, epi=6, epb=7, end=8, drained=9))
    st = lambda name: a.stamp(smap[name]) if name in smap else None
    hi = lambda: a("s_setprio 3") if OPT.get("prio", True) else None
    lo = lambda: a("s_setprio 0") if OPT.get("prio", True) else None
    a(f"s_cmp_ge_u32 s2, {NBKT}")
    a("s_cbranch_scc1 K2_END")
    st("start")
    a.cyc(88)
    if diag:
        a("s_mov_b32 s89, s2")
    a("s_load_dwordx2 s[22:23], s[0:1], 80")
    a("s_load_dwordx2 s[4:5], s[0:1], 0")
    a("s_load_dwordx2 s[20:21], s[0:1], 64")
    Z = HF
    NZ0, NZ1, NZ2 = OPT.get("nz", (16, 8, 0))
    def clear(k0, k1):
        if k0 < min(k1, 32):
            a("s_lshl_b32 m0, s3, 8")
            a("s_nop 0")
        for k in range(k0, k1):
            if k == 39:
                a(f"s_min_u32 s{t0}, s3, 1")
                a(f"s_lshl_b32 s{t0}, s{t0}, 8")
                a(f"s_add_u32 m0, s{t0}, 0x8000")
                a("s_nop 0")
            elif k == 32 or (k == k0 and k > 32):
                a(f"s_lshl_b32 s{t0}, s3, 8")
                a(f"s_add_u32 m0, s{t0}, 0x8000")
                a("s_nop 0")
            a(f"ds_write_addtid_b32 v{Z} offset:{2048*(k if k < 32 else k - 16)}")
    LA = AO
    LR, L64, Q1 = AO + 4, AO + 5, AO + 6
    CST = MM
    MX = [DD, DD + 4, DD + 8, DD + 12, NN, NN + 4, QB, QB + 4]
    OH = 186
    XA = W2R + 20
    a("v_lshrrev_b32 v2, 6, v0")
    a("v_and_b32 v1, 63, v0")
    a("v_readfirstlane_b32 s3, v2")
    a(f"v_mov_b32 v{Z}, 0")
    clear(0, NZ0)
    a(f"s_and_b32 s{t0}, s2, 7")
    a("s_lshr_b32 s2, s2, 3")
    a(f"s_lshl_b32 s{t0}, s{t0}, 5")
    a(f"s_add_u32 s2, s2, s{t0}")
    a(f"s_lshr_b32 s{sWIN}, s3, 2")
    a("v_bfe_u32 v3, v0, 1, 7")
    a("v_lshlrev_b32 v7, 11, v3")
    a(f"s_lshl_b32 s{t3}, s2, 3")
    a(f"s_lshl_b32 s{t1}, s{sWIN}, 2")
    a(f"s_add_u32 s{t3}, s{t3}, s{t1}")
    a(f"s_mov_b32 s{sTAB+2}, {hex(NCHUNK * NWIN * 4)}")
    a(f"s_mov_b32 s{sTAB+3}, 0x00020000")
    a(f"s_and_b32 s{sWV}, s3, 3")
    a(f"s_lshl_b32 s{t0}, s2, 17")
    a(f"s_add_u32 s{t0}, s{t0}, {BM-1}")
    a(f"s_add_u32 s{t1}, s{t0}, 0x10000")
    a(f"s_add_u32 s{t2}, s{t0}, 0x20000")
    a(f"s_mul_hi_u32 s{sN0}, s{t0}, {hex(START_MAGIC)}")
    a(f"s_mul_hi_u32 s{t1}, s{t1}, {hex(START_MAGIC)}")
    a(f"s_mul_hi_u32 s{t2}, s{t2}, {hex(START_MAGIC)}")
    a(f"s_lshr_b32 s{sN0}, s{sN0}, {START_SH}")
    a(f"s_lshr_b32 s{t1}, s{t1}, {START_SH}")
    a(f"s_lshr_b32 s{t2}, s{t2}, {START_SH}")
    a(f"s_min_u32 s{t2}, s{t2}, {N}")
    a(f"s_sub_u32 s{sNA}, s{t1}, s{sN0}")
    a(f"s_sub_u32 s{sNB_}, s{t2}, s{t1}")
    a(f"s_cmp_eq_u32 s{sWIN}, 0")
    a(f"s_cselect_b32 s{sNW}, s{sN0}, s{t1}")
    a(f"s_lshl_b32 s{sWBO}, s3, 13")
    a(f"s_add_u32 s{sRING}, s{sWBO}, {RING0}")
    a("s_waitcnt lgkmcnt(0)")
    a(f"s_add_u32 s{sTAB}, s22, {hex(WS_TAB)}")
    a(f"s_addc_u32 s{sTAB+1}, s23, 0")
    a(f"buffer_load_dword v{VCNT}, v7, s[{sTAB}:{sTAB+3}], s{t3} offen")
    clear(NZ0, NZ0 + NZ1)
    a("v_lshrrev_b32 v5, 4, v1")
    a("v_and_b32 v6, 15, v1")
    a("v_xor_b32 v6, v6, v5")
    a(f"s_lshl_b32 s{t1}, s{sWV}, 2")
    a(f"v_xor_b32 v6, s{t1}, v6")
    a("v_lshlrev_b32 v6, 4, v6")
    a("v_lshl_add_u32 v6, v5, 8, v6")
    a("v_lshlrev_b32 v4, 4, v1")
    a(f"s_lshl_b32 s{t1}, s{sN0}, 8")
    a(f"s_lshl_b32 s{t2}, s3, 10")
    a(f"s_add_u32 s{t1}, s{t1}, s{t2}")
    a(f"s_add_u32 m0, s{t2}, {XW}")
    a.srd(sX, 4, N * 256)
    a(f"buffer_load_dwordx4 v6, s[{sX}:{sX+3}], s{t1} offen lds")
    a("s_cmp_ge_u32 s3, 2")
    a("s_cbranch_scc1 K2_X2")
    a(f"s_add_u32 m0, s{t2}, {XW + 8192}")
    a(f"s_add_u32 s{t1}, s{t1}, 8192")
    a(f"buffer_load_dwordx4 v6, s[{sX}:{sX+3}], s{t1} offen lds")
    a.label("K2_X2")
    a(f"s_mov_b32 m0, s{sRING}")
    a.srd(sWF, 22, NFRAG * 1024, WS_WB)
    for z in range(4):
        a(f"buffer_load_dwordx4 v4, s[{sWF}:{sWF+3}], s{sWBO} offen offset:{1024*z} lds")
    a.srd(sREC, 22, E * 16, WS_REC)
    a(f"s_mov_b32 s{sLO}, 0")
    a(f"s_mov_b32 s{sCAP}, {CAP1}")
    a(f"s_mov_b32 s{sF1}, 1")
    a(f"s_mov_b32 s{sF2}, 1")
    a(f"s_lshl_b32 s{sLIST}, s3, 9")
    a(f"s_add_u32 s{sLIST}, s{sLIST}, {LIST}")
    a("v_and_b32 v7, 1, v0")
    a(f"s_movk_i32 s{t0}, {CH}")
    a(f"v_mad_u32_u24 v{VREC}, v3, s{t0}, v7")
    a(f"v_lshlrev_b32 v{VREC}, 4, v{VREC}")
    a(f"v_xor_b32 v{Q1}, 1, v7")
    a(f"v_lshlrev_b32 v{Q1}, 16, v{Q1}")
    a(f"v_lshl_add_u32 v{LR}, v1, 2, s{sLIST}")
    a(f"v_add_u32 v{L64}, 64, v1")
    a("v_and_b32 v2, 31, v1")
    a("v_lshrrev_b32 v5, 5, v1")
    a(f"s_mul_i32 s{t0}, s{sWIN}, s{sNA}")
    a(f"v_min_u32 v{XA}, 19, v2")
    a(f"v_add_u32 v{XA}, s{t0}, v{XA}")
    a(f"v_and_b32 v7, 15, v{XA}")
    a("v_xor_b32 v7, v7, v5")
    a("v_lshlrev_b32 v7, 4, v7")
    a(f"v_lshl_add_u32 v{XA}, v{XA}, 8, v7")
    a(f"v_add_u32 v{XA}, {XW}, v{XA}")
    for s in range(1, 8):
        a(f"v_xor_b32 v{XA+s}, {32*s}, v{XA}")
    a(f"s_lshl_b32 s{t0}, s{sWV}, 14")
    a(f"s_add_u32 s{t0}, s{t0}, {RING0}")
    a(f"v_add_u32 v3, s{t0}, v4")
    a.srd(sP, 22, N, WS_P, stride=512)
    a.srd(sOUT, 20, N * 256)
    a(f"s_mov_b32 s{sSINIT}, 0")
    a(f"s_mul_i32 s{sBLK}, s{sWIN}, {BLKW}")
    a(f"s_mul_i32 s{sIDX}, s{sWIN}, {IDXW}")
    a(f"s_add_u32 s{sIDX}, s{sIDX}, {IDX}")
    a(f"s_lshl_b32 s{t0}, s{sWIN}, 5")
    a(f"s_sub_u32 s{t0}, s{t0}, s{sNW}")
    a(f"s_lshl_b32 s{t0}, s{t0}, 2")
    a(f"s_add_u32 s{sCA}, s{t0}, {CNT}")
    a(f"s_lshl_b32 s{t0}, s{sWIN}, 9")
    a(f"s_sub_u32 s{t0}, s{sBLK}, s{t0}")
    a(f"s_sub_u32 s{sSA}, s{t0}, {4*CNT}")
    a(f"s_mul_i32 s{sW2}, s3, {9*1024}")
    a(f"s_add_u32 s{sW2}, s{sW2}, {WS_W2F - WS_WB}")
    clear(NZ0 + NZ1, NZ0 + NZ1 + NZ2)
    hi()
    a("s_waitcnt vmcnt(5)")
    st("tab")
    a(f"v_add_u32 v7, v{VCNT}, v{Q1}")
    a(f"v_and_b32 v6, 0xffff, v{VCNT}")
    a(f"v_lshrrev_b32 v{VCNT}, 17, v7")
    a(f"v_lshl_add_u32 v{VREC}, v6, 4, v{VREC}")
    a(f"v_add_u32 v{LA+1}, 32, v{VREC}")
    D = lambda src, ctl: a(f"v_add_u32_dpp v{VBASE}, v{src}, v{src} {ctl}")
    D(VCNT, "row_shr:1 row_mask:0xf bank_mask:0xf bound_ctrl:0")
    a(f"v_add_u32 v{LA+2}, 64, v{VREC}")
    a(f"v_add_u32 v{LA+3}, 0x60, v{VREC}")
    D(VBASE, "row_shr:2 row_mask:0xf bank_mask:0xf bound_ctrl:0")
    a(f"v_cmp_lt_u32 vcc, 4, v{VCNT}")
    a("s_nop 0")
    D(VBASE, "row_shr:4 row_mask:0xf bank_mask:0xf bound_ctrl:0")
    a("s_nop 1")
    D(VBASE, "row_shr:8 row_mask:0xf bank_mask:0xf bound_ctrl:0")
    a("s_nop 1")
    D(VBASE, "row_bcast:15 row_mask:0xa bank_mask:0xf")
    a("s_nop 1")
    D(VBASE, "row_bcast:31 row_mask:0xc bank_mask:0xf")
    a("s_cbranch_vccnz K2_GEN0")
    a(f"v_readlane_b32 s{sTW}, v{VBASE}, 63")
    a(f"v_sub_u32 v{VBASE}, v{VBASE}, v{VCNT}")
    a(f"v_lshl_add_u32 v6, v{VBASE}, 2, s{sLIST}")
    a(f"s_cmp_gt_u32 s{sTW}, {CAP1}")
    a("s_cbranch_scc1 K2_GEN")
    a(f"s_mov_b32 s{t0}, s{sTW}")
    for j in range(4):
        a(f"v_cmpx_lt_u32 vcc, {j}, v{VCNT}")
        a(f"ds_write_b32 v6, v{VREC if j == 0 else LA+j} offset:{4*j}")
    a.label("K2_LISTED")
    a("s_mov_b64 exec, -1")
    a(f"ds_read_b32 v{LA}, v{LR}")
    a(f"ds_read_b32 v{LA+1}, v{LR} offset:256")
    a(f"v_cmp_gt_u32 s[{sM0}:{sM0+1}], s{t0}, v1")
    a(f"v_cmp_gt_u32 s[{sM1}:{sM1+1}], s{t0}, v{L64}")
    R = (PF, PF + 4)
    for r in range(2):
        a(f"s_waitcnt lgkmcnt({1-r})")
        a(f"buffer_load_dwordx4 {vr(R[r],4)}, v{LA+r}, s[{sREC}:{sREC+3}], 0 offen")
    lo()
    st("rec")
    a(f"s_cmp_eq_u32 s{sF1}, 0")
    a("s_cbranch_scc1 K2_NF2")
    a(f"s_add_u32 m0, s{sRING}, 4096")
    a(f"s_add_u32 s{t0}, s{sWBO}, 4096")
    for z in range(4):
        a(f"buffer_load_dwordx4 v4, s[{sWF}:{sWF+3}], s{t0} offen offset:{1024*z} lds")
    a.label("K2_NF2")
    clear(NZ0 + NZ1 + NZ2, 40)
    a(f"v_mov_b32 v{Z+4}, {PADIDX}")
    a(f"s_lshl_b32 s{t0}, s3, 8")
    a(f"s_add_u32 m0, s{t0}, 0x8000")
    a(f"s_min_u32 s{t0}, s3, 4")
    a(f"ds_write_addtid_b32 v{Z+4} offset:{IDX - 0x8000}")
    a(f"s_lshl_b32 s{t0}, s{t0}, 8")
    a(f"s_add_u32 m0, s{t0}, 0x8000")
    a("s_nop 0")
    a(f"ds_write_addtid_b32 v{Z+4} offset:{IDX + 2048 - 0x8000}")
    a(f"s_cmp_eq_u32 s{sF1}, 0")
    a("s_cbranch_scc1 K2_NF3")
    a(f"v_and_b32 v{IX}, 7, v1")
    a("v_lshrrev_b32 v7, 4, v1")
    a(f"v_xor_b32 v7, v{IX}, v7")
    a("v_lshlrev_b32 v7, 4, v7")
    a(f"s_lshl_b32 s{t0}, s{sWV}, 7")
    a(f"v_add_u32 v{IX+1}, s{t0}, v7")
    a(f"v_xor_b32 v{IX+3}, 64, v{IX+1}")
    a(f"v_mov_b32 v{IX+5}, v{IX+1}")
    a(f"v_mov_b32 v{IX+7}, v{IX+3}")
    a(f"v_mov_b32 v{DEG}, 0")
    a(f"v_lshrrev_b32 v{OH}, 4, v2")
    a(f"v_lshlrev_b32 v{OH}, 26, v{OH}")
    a("v_bfe_u32 v7, v2, 2, 1")
    a(f"v_lshl_add_u32 v{OH}, v7, 25, v{OH}")
    a("v_and_b32 v7, 3, v2")
    a(f"v_lshl_add_u32 v{OH}, v7, 17, v{OH}")
    a("v_bfe_u32 v7, v2, 3, 1")
    a(f"v_lshl_add_u32 v{OH}, v7, 19, v{OH}")
    a("v_bfe_u32 v6, v1, 1, 3")
    a("v_xor_b32 v6, v6, v5")
    a("v_lshlrev_b32 v6, 4, v6")
    a("v_lshl_add_u32 v6, v2, 7, v6")
    a(f"v_add_u32 v{PA}, s{sRING}, v6")
    for k in range(1, 4):
        a(f"v_xor_b32 v{PA+k}, {32*k}, v{PA}")
    a("v_and_b32 v7, 1, v1")
    a("v_lshlrev_b32 v7, 4, v7")
    a("v_mov_b32 v6, 0x3f80")
    a("v_lshlrev_b32 v7, v7, v6")
    for i in range(2):
        a(f"v_mov_b32 v{IDN+4*i}, 0")
    for i in range(2):
        a(f"s_mov_b32 exec_lo, {hex(3 << (16*i))}")
        a(f"s_mov_b32 exec_hi, {hex(3 << (16*i + 8))}")
        a(f"v_mov_b32 v{IDN+4*i}, v7")
    a("s_mov_b64 exec, -1")
    fl = [f"s_lshl_b32 s{t0}, s{sWV}, 11", f"s_add_u32 s{t0}, s{t0}, {WS_CST - WS_WB}", "s_nop 0"]
    for q in range(1, 4):
        a(fl[q-1])
        for i in range(2):
            a(f"v_mov_b32_dpp v{IDN+4*i+q}, v{IDN+4*i+q-1} row_shr:2 row_mask:0xf bank_mask:0xf bound_ctrl:0")
    st("pb2")
    a("s_waitcnt vmcnt(6) lgkmcnt(0)")
    a("s_barrier")
    st("b2")
    for s in range(4):
        for c in range(2):
            a(f"ds_read_b128 {vr(WBQ+4*(4*c+s),4)}, v3 offset:{(8*c+s)*1024}")
    for c in range(2):
        a(f"buffer_load_dwordx4 {vr(CST+4*c,4)}, v4, s[{sWF}:{sWF+3}], s{t0} offen offset:{1024*c}")
    a("s_cmp_lg_u32 s3, 7")
    a("s_cbranch_scc1 K2_NMX")
    a.srd(sMX, 22, NGEMM * 16, WS_PMAX)
    a(f"s_movk_i32 s{t0}, 0x1000")
    for k in range(5):
        so = "0" if k < 4 else f"s{t0}"
        a(f"buffer_load_dwordx4 {vr(MX[k],4)}, v4, s[{sMX}:{sMX+3}], {so} offen offset:{(k & 3) * 1024}")
    a.srd(sMX, 22, NCHUNK * 20, WS_EMAX)
    for k in range(3):
        a(f"buffer_load_dwordx4 {vr(MX[5+k],4)}, v4, s[{sMX}:{sMX+3}], 0 offen offset:{1024*k}")
    a("s_waitcnt vmcnt(14)")
    a("s_branch K2_J3")
    a.label("K2_NMX")
    a("s_waitcnt vmcnt(6)")
    a.label("K2_J3")
    hi()
    st("recl")
    AC = (PF + 8, PF + 9); RK = (PF + 10, PF + 11); SU = (PF + 12, PF + 13); BP = (PF + 14, PF + 15)
    a("v_mov_b32 v6, 1")
    for r in range(2):
        a(f"v_lshrrev_b32 v{AC[r]}, 14, v{R[r]+2}")
    for r in range(2):
        a(f"v_lshl_add_u32 v{AC[r]}, v{AC[r]}, 2, s{sCA}")
    for r in range(2):
        a(f"s_mov_b64 exec, s[{(sM0, sM1)[r]}:{(sM0, sM1)[r]+1}]")
        a(f"ds_add_rtn_u32 v{RK[r]}, v{AC[r]}, v6")
    a("s_mov_b64 exec, -1")
    a(f"v_mov_b32 v7, {MISC}")
    a(f"v_mov_b32 v{Z+4}, s{sTW}")
    a(f"v_lshlrev_b32 v{Z+5}, 2, v1")
    a("s_mov_b64 exec, 1")
    a(f"ds_max_u32 v7, v{Z+4}")
    a("s_mov_b64 exec, -1")
    a(f"v_add_u32 v6, {CNT}, v{Z+5}")
    a("s_waitcnt lgkmcnt(0)")
    st("pb3")
    a("s_barrier")
    st("b3")
    a(f"ds_read_b32 v{Z+5}, v6")
    a(f"ds_read_b32 v{Z+4}, v7")
    for l in w2_loads(range(0, 2)): a(l)
    for r in range(2):
        a(f"v_and_b32 v{R[r]+2}, 0x3fff, v{R[r]+2}")
        a(f"v_lshl_add_u32 v{SU[r]}, v{AC[r]}, 2, s{sSA}")
    a("s_waitcnt lgkmcnt(1)")
    a(f"v_add_u32 v7, 1, v{Z+5}")
    a("v_and_b32 v7, -2, v7")
    a(f"v_sub_u32 v6, v{OH}, v7")
    a(f"v_cvt_f32_u32 v{Z+5}, v{Z+5}")
    D7 = lambda ctl: a(f"v_add_u32_dpp v7, v7, v7 {ctl}")
    D7("row_shr:1 row_mask:0xf bank_mask:0xf bound_ctrl:0")
    a(f"v_mov_b32 v{Z+6}, {BLKSZ - 512}")
    a(f"v_mov_b32 v{Z+7}, {BLKSZ}")
    D7("row_shr:2 row_mask:0xf bank_mask:0xf bound_ctrl:0")
    a(f"v_add_u32 v{BA}, s{sBLK}, v4")
    a(f"v_lshrrev_b32 v{IA}, 3, v1")
    D7("row_shr:4 row_mask:0xf bank_mask:0xf bound_ctrl:0")
    a(f"v_lshl_add_u32 v{IA}, v{IA}, 2, s{sIDX}")
    a("s_waitcnt lgkmcnt(0)")
    D7("row_shr:8 row_mask:0xf bank_mask:0xf bound_ctrl:0")
    a(f"v_readfirstlane_b32 s{t2}, v{Z+4}")
    a(f"v_mov_b32 v{Z+4}, 0x3f80")
    D7("row_bcast:15 row_mask:0xa bank_mask:0xf")
    a("v_add_u32 v6, v6, v7")
    for r in range(2):
        a(f"ds_bpermute_b32 v{BP[r]}, v{AC[r]}, v6")
    a(f"v_readlane_b32 s{t0}, v7, 31")
    a(f"v_readlane_b32 s{t1}, v7, 63")
    for l in w2_loads(range(2, 5)): a(l)
    a(f"s_mov_b32 s{sF1}, 0")
    a(f"s_cmp_eq_u32 s{sWIN}, 0")
    a(f"s_cselect_b32 s{sNT}, s{t0}, s{t1}")
    a(f"s_add_u32 s{sNT}, s{sNT}, 31")
    a(f"s_lshr_b32 s{sNT}, s{sNT}, 5")
    a(f"s_max_u32 s{t0}, s{t0}, s{t1}")
    a(f"s_cmp_gt_u32 s{t0}, {MAXT*32}")
    a(f"s_cselect_b32 s{t0}, 0x7fffffff, s{t2}")
    a(f"s_cmp_gt_u32 s{t0}, s{sCAP}")
    a("s_cbranch_scc1 K2_OV")
    a.label("K2_NOOV")
    t = [AO + k for k in range(8)]
    for r in range(2):
        a(f"s_waitcnt lgkmcnt({1-r})" if r == 0 else f"s_cmp_eq_u64 s[{sM1}:{sM1+1}], 0")
        if r == 1:
            a("s_cbranch_scc1 K2_SC1")
            a(f"s_waitcnt lgkmcnt({4 if nogather else 5})")
        p = BP[r]
        a(f"v_add_u32 v{p}, v{p}, v{RK[r]}")
        a(f"v_bfe_u32 v{t[0]}, v{p}, 5, 11")
        a(f"v_mad_u32_u16 v{t[1]}, v{p}, 4, s{sIDX}")
        a(f"v_mad_u32_u24 v{t[2]}, v{t[0]}, v{Z+6}, s{sBLK}")
        a(f"v_mad_u32_u24 v{t[3]}, v{t[0]}, v{Z+7}, v{SU[r]}")
        a(f"v_mad_u32_u16 v{t[2]}, v{p}, 16, v{t[2]}")
        a(f"v_and_b32 v{t[4]}, 4, v{p}")
        a(f"v_lshrrev_b32 v{t[5]}, 1, v{p}")
        a(f"v_lshl_add_u32 v{t[3]}, v{t[4]}, 7, v{t[3]}")
        a(f"v_mad_u32_u16 v{t[4]}, v{p}, 1, v{t[2]} op_sel:[1,0,0,0]")
        a(f"v_and_or_b32 v{t[3]}, v{t[5]}, 12, v{t[3]}")
        a(f"v_and_or_b32 v{t[3]}, v{p}, 2, v{t[3]}")
        a(f"s_mov_b64 exec, s[{(sM0, sM1)[r]}:{(sM0, sM1)[r]+1}]")
        if not nogather:
            a(f"ds_write_b32 v{t[1]}, v{R[r]+2}")
        a(f"ds_write_b16 v{t[4]}, v{Z+4}")
        a(f"ds_write_b64 v{t[2]}, {vr(R[r],2)} offset:1544")
        a(f"ds_write_b64 v{t[2]}, {vr(R[r],2)} offset:1032")
        a(f"ds_write_b16 v{t[3]}, v{Z+4} offset:2048")
        a("s_mov_b64 exec, -1")
    a.label("K2_SC1")
    a(f"v_add_f32 v{DEG}, v{DEG}, v{Z+5}")
    a("s_waitcnt vmcnt(5) lgkmcnt(0)")
    st("pb4")
    a("s_barrier")
    st("b4")
    for l in idx_reads(0): a(l)
    a(f"s_cmp_eq_u32 s{sF2}, 0")
    a("s_cbranch_scc1 K2_NF4")
    WB2 = HB
    QE = OPT.get("qe", 2)
    dq = DsTrack(a)
    def qm(s):
        return [mfma(S + 16*c, T0 + 4*s, WBQ + 4*(4*c+s) if s < 4 else WB2 + 4*(4*c+s-4), None if s == 0 else S + 16*c) for c in range(2)]
    for s in range(QE):
        dq(f"ds_read_b128 {vr(T0+4*s,4)}, v{XA+s}", f"x{s}")
    a(f"s_waitcnt lgkmcnt({QE})")
    for l in dma(0): a(l)
    for l in idx_reads(1): dq(l, "w")
    for s in range(4, 8):
        for c in range(2):
            dq(f"ds_read_b128 {vr(WB2+4*(4*c+s-4),4)}, v3 offset:{(8*c+s)*1024}", "w")
    if QE:
        lo()
    for s in range(QE):
        dq.wait(f"x{s}")
        for l in qm(s): a(l)
    for s in range(QE, 8):
        dq(f"ds_read_b128 {vr(T0+4*s,4)}, v{XA+s}", f"x{s}")
    a("s_cmp_lg_u32 s3, 7")
    a("s_cbranch_scc1 K2_NMX2")
    mx = [MX[k] + q for k in range(5) for q in range(4)]
    for k in range(1, 10):
        a(f"v_max3_u32 v{mx[0]}, v{mx[0]}, v{mx[2*k-1]}, v{mx[2*k]}")
    a(f"v_max_u32 v{Z}, v{mx[0]}, v{mx[19]}")
    me = [MX[k] + q for k in range(5, 8) for q in range(4)]
    for k in range(1, 6):
        a(f"v_max3_u32 v{me[0]}, v{me[0]}, v{me[2*k-1]}, v{me[2*k]}")
    a(f"v_max_u32 v{Z+1}, v{me[0]}, v{me[11]}")
    for sh in (1, 2, 4, 8):
        a("s_nop 0")
        for k in range(2):
            a(f"v_max_u32_dpp v{Z+k}, v{Z+k}, v{Z+k} row_shr:{sh} row_mask:0xf bank_mask:0xf bound_ctrl:0")
    for bc, rm in ((15, "0xa"), (31, "0xc")):
        a("s_nop 0")
        for k in range(2):
            a(f"v_max_u32_dpp v{Z+k}, v{Z+k}, v{Z+k} row_bcast:{bc} row_mask:{rm} bank_mask:0xf")
    a(f"v_mov_b32 v7, {MISC + 4}")
    a("s_mov_b32 exec_lo, 0")
    a("s_mov_b32 exec_hi, 0x80000000")
    a(f"ds_write2_b32 v7, v{Z}, v{Z+1} offset0:0 offset1:1")
    a("s_mov_b64 exec, -1")
    a("s_waitcnt lgkmcnt(0)")
    a.label("K2_NMX2")
    a(f"v_mov_b32 v7, {MISC + 4}")
    dq.wait("w")
    a("s_barrier")
    dm = dma(4096)
    if QE < 4:
        for l in dm: a(l)
        lo()
    dq(f"ds_read2_b32 {vr(Z+4,2)}, v7 offset0:0 offset1:1")
    for s in range(QE, 8):
        dq.wait(f"x{s}")
        for c, l in enumerate(qm(s)):
            a(l)
            if QE == 4:
                a(dm[3*(s-4) + 2*c])
    a(f"s_mov_b32 s{sSLOW}, {1 if force_slow else 0}")
    a(f"s_mov_b32 s{sF2}, 0")
    a(f"s_mov_b32 s{sNB}, 1")
    a("s_nop 7")
    for c in range(2):
        q = S + 16*c
        for r in range(12):
            a(f"v_add_f32 v{q+r}, v{q+r}, v{CST+4*c+2}")
        a(f"v_max_f32 v6, |v{q}|, |v{q+1}|")
        for r in range(2, 12, 2):
            a(f"v_max3_f32 v6, |v{q+r}|, |v{q+r+1}|, v6")
        for p in range(8):
            if p < 6:
                a(f"v_cvt_pk_bf16_f32 v{QB+8*c+p}, v{q+2*p}, v{q+2*p+1}")
        if c == 0:
            a("s_waitcnt lgkmcnt(0)")
        a(f"v_fma_f32 v7, v{Z+5}, v{CST+4*c+3}, v{Z+4}")
        a("v_add_f32 v6, v7, v6")
        a("v_cmp_nge_f32 vcc, 0x42700000, v6")
        for p in range(2):
            a(f"v_mov_b32 v{QB+8*c+6+p}, v{CST+4*c+p}")
        a("s_cmp_lg_u64 vcc, 0")
        a(f"s_cselect_b32 s{sSLOW}, 1, s{sSLOW}")
    a(f"s_cmp_lt_u32 s{sNT}, 2")
    a(f"s_cselect_b32 s{t0}, 1, s{sSLOW}")
    a(f"s_cmp_eq_u32 s{sCAP}, {CAP2}")
    a("s_cbranch_scc1 K2_SLOW0")
    a(f"s_mov_b32 s{sI}, s{sNT}")
    a(f"s_cmp_lg_u32 s{t0}, 0")
    a("s_cbranch_scc1 K2_SLOW")
    for l in ao_reads(0) + idx_reads(2): a(l)
    a("s_waitcnt vmcnt(4)")
    st("loop")
    a.cyc(71)
    for l in pf_reads(0): a(l)
    a("s_waitcnt lgkmcnt(0)")
    for l in zmf(0): a(l)
    for l in dma(0): a(l)
    a(f"s_cmp_lg_u32 s{sWIN}, 0")
    a("s_cbranch_scc1 K2_FA")
    a("s_nop 1")
    fast_loop(a, "B")
    a.label("K2_FA")
    a("s_nop 1")
    fast_loop(a, "A")
    a.label("K2_NF3")
    a("s_waitcnt vmcnt(0) lgkmcnt(0)")
    a("s_barrier")
    a("s_branch K2_J3")
    a.label("K2_NF4")
    a("s_waitcnt lgkmcnt(0)")
    for l in dma(0) + idx_reads(1): a(l)
    a("s_waitcnt lgkmcnt(0)")
    for l in dma(4096): a(l)
    a("s_branch K2_SLOW")
    a.label("K2_OV")
    a(f"s_cmp_eq_u32 s{sCAP}, {CAP2}")
    a("s_cbranch_scc1 K2_NOOV")
    a(f"s_mov_b32 s{sCAP}, {CAP2}")
    a(f"s_add_u32 s{t2}, s{t2}, {CAP2-1}")
    a(f"s_mul_hi_u32 s{sNB2}, s{t2}, {hex((2**32 + CAP2 - 1)//CAP2)}")
    a("s_waitcnt lgkmcnt(0)")
    a("s_barrier")
    a.label("K2_BATCH")
    a(f"v_mov_b32 v{Z}, 0")
    clear(0, NZ0 + NZ1 + NZ2)
    a(f"v_lshl_add_u32 v{LR}, v1, 2, s{sLIST}")
    a(f"v_add_u32 v{L64}, 64, v1")
    a("s_branch K2_GEN")
    a.label("K2_GEN0")
    a(f"v_readlane_b32 s{sTW}, v{VBASE}, 63")
    a(f"v_sub_u32 v{VBASE}, v{VBASE}, v{VCNT}")
    a.label("K2_GEN")
    a(f"s_add_u32 s{t0}, s{sLO}, s{sCAP}")
    a(f"s_lshl_b32 s{t2}, s{sLO}, 2")
    a(f"s_sub_u32 s{t2}, s{sLIST}, s{t2}")
    a(f"v_max_u32 v6, s{sLO}, v{VBASE}")
    a(f"v_add_u32 v7, v{VBASE}, v{VCNT}")
    a(f"v_min_u32 v7, s{t0}, v7")
    a(f"v_sub_u32 v{LA}, v6, v{VBASE}")
    a(f"v_lshl_add_u32 v{LA}, v{LA}, 5, v{VREC}")
    a("v_sub_u32 v7, v7, v6")
    a(f"v_lshl_add_u32 v6, v6, 2, s{t2}")
    a.label("K2_EXP")
    for j in range(4):
        a(f"v_cmpx_lt_i32 vcc, {j}, v7")
        a(f"ds_write_b32 v6, v{LA} offset:{4*j}")
        a(f"v_add_u32 v{LA}, 32, v{LA}")
    a("v_cmpx_lt_i32 vcc, 4, v7")
    a("v_add_u32 v6, 16, v6")
    a("v_subrev_u32 v7, 4, v7")
    a(f"s_sub_u32 s{t0}, s{sTW}, s{sLO}")
    a(f"s_max_i32 s{t0}, s{t0}, 0")
    a(f"s_min_u32 s{t0}, s{t0}, s{sCAP}")
    a("s_nop 1")
    a("s_cbranch_execnz K2_EXP")
    a("s_branch K2_LISTED")
    a.label("K2_SLOW0")
    a(f"s_mov_b32 s{sNB}, s{sNB2}")
    a.label("K2_SLOW")
    a(f"s_mov_b32 s{sI}, s{sNT}")
    a(f"s_cmp_lg_u32 s{sSINIT}, 0")
    a("s_cbranch_scc1 K2_SL1")
    for l in w2_loads(range(5, 9)): a(l)
    for r in range(32):
        a(f"v_mov_b32 v{S+r}, 0")
    a(f"s_mov_b32 s{sSINIT}, 1")
    a.label("K2_SL1")
    a(f"s_cmp_eq_u32 s{sNT}, 0")
    a("s_cbranch_scc1 K2_BDONE")
    a(f"s_mov_b32 s{t1}, s{sRING}")
    a.label("K2_SLOOP")
    a("s_waitcnt vmcnt(0)")
    for l in pf_reads(0) + ao_reads(0) + [so_read(0, 0)] + idx_reads(2): a(l)
    a("s_waitcnt lgkmcnt(0)")
    for l in dma(0): a(l)
    for c in range(2):
        for l in zmf(c): a(l)
        a("s_nop 15")
        for l in exps(c): a(l)
        for r in range(16): a(f"v_add_f32 v{DD+r}, 1.0, v{DD+r}")
        for r in range(16): a(f"v_rcp_f32 v{DD+r}, v{DD+r}")
        for j in range(8):
            a(f"v_mul_f32 v{HF+j}, v{TT[c]+2*j}, v{DD+2*j}")
        for j in range(8):
            a(f"v_fma_f32 v{HF+j}, v{TT[c]+2*j+1}, v{DD+2*j+1}, v{HF+j}")
        for l in cvts(): a(l)
        a("s_nop 1")
        a(ssmf(c, 0))
    for k in range(4):
        a(f"v_xor_b32 v{PA+k}, 0x1000, v{PA+k}")
    a(f"s_xor_b32 s{sRING}, s{sRING}, 0x1000")
    a(f"v_add_u32 v{BA}, {BLKSZ}, v{BA}")
    a(f"v_add_u32 v{IA}, 128, v{IA}")
    a(f"s_sub_u32 s{sI}, s{sI}, 1")
    a(f"s_cmp_lg_u32 s{sI}, 0")
    a("s_cbranch_scc1 K2_SLOOP")
    a(f"s_xor_b32 s{t0}, s{t1}, s{sRING}")
    a(f"s_mov_b32 s{sRING}, s{t1}")
    for k in range(4):
        a(f"v_xor_b32 v{PA+k}, s{t0}, v{PA+k}")
    a.label("K2_BDONE")
    a(f"s_add_u32 s{sLO}, s{sLO}, s{sCAP}")
    a(f"s_sub_u32 s{sNB}, s{sNB}, 1")
    a(f"s_cmp_eq_u32 s{sNB}, 0")
    a("s_cbranch_scc1 K2_EPI")
    a("s_waitcnt vmcnt(0) lgkmcnt(0)")
    a("s_barrier")
    a("s_branch K2_BATCH")
    a.label("K2_EPI")
    st("epi")
    a.cyc(81)
    if diag: a("s_sub_u32 s71, s81, s71")
    a(f"s_mov_b32 s{t2}, {hex(f32bits(-LN2))}")
    a(f"v_add_u32 v{XWA}, s{sRING}, v4")
    a("s_waitcnt vmcnt(0)")
    for k in range(4):
        for p in range(4*k, 4*k + 4):
            a(f"v_cvt_pk_bf16_f32 v{DD+p}, v{S+2*p}, v{S+2*p+1}")
        a(f"ds_write_b128 v{XWA}, {vr(DD+4*k,4)} offset:{1024*k}")
    pre = epi_prelude()
    for l in pre: a(l)
    a("s_waitcnt lgkmcnt(0)")
    ACC, BIAS = T0, T1
    for tl in range(3):
        a(mfma16(BIAS + 4*tl, W2R + 32, DG + 2*tl, None))
    a("s_barrier")
    st("epb")
    XB = S
    jobs = [(ct, tl) for ct in range(8) for tl in range(3)]
    def xr(k):
        ct, tl = jobs[k]
        off = (ct >> 1) * 8192 + (ct & 1) * 2048 + (32768 if tl == 1 else 0)
        return f"ds_read_b128 {vr(XB+4*(k&7),4)}, v{RR if tl == 2 else RA} offset:{off}"
    for k in range(8): a(xr(k))
    for k, (ct, tl) in enumerate(jobs):
        a(f"s_waitcnt lgkmcnt({min(7, 23-k)})")
        a(mfma16(ACC + 4*tl, W2R + 4*ct, XB + 4*(k & 7), None if ct == 0 else ACC + 4*tl))
        if k + 8 < 24:
            a(xr(k + 8))
    a("s_nop 3")
    for tl in range(3):
        for r in range(4):
            a(f"v_fma_f32 v{ACC+4*tl+r}, v{ACC+4*tl+r}, s{t2}, v{BIAS+4*tl+r}")
        for p in range(2):
            a(f"v_cvt_pk_bf16_f32 v{DD+2*tl+p}, v{ACC+4*tl+2*p}, v{ACC+4*tl+2*p+1}")
        if tl == 2:
            a(f"s_mov_b64 exec, s[{sRM}:{sRM+1}]")
        a(f"buffer_store_dwordx2 {vr(DD+2*tl,2)}, v{SR if tl == 2 else SA}, s[{sOUT}:{sOUT+3}], s{sOB if tl == 1 else sOA} offen {OPT.get('of', '')}")
    if diag:
        st("end")
        a("s_waitcnt vmcnt(0)")
        st("drained")
        if OPT.get("trace"):
            a("s_mov_b64 exec, -1")
            a("v_writelane_b32 v186, s81, 20")
            a("s_sub_u32 s90, s81, s71")
            a("v_writelane_b32 v186, s90, 21")
            a(f"v_writelane_b32 v186, s{sNT}, 22")
            a.srd(84, 22, 0x80000, WS_STAMP + 0x100000)
            a("s_lshl_b32 s90, s89, 3")
            a("s_add_u32 s90, s90, s3")
            a("s_lshl_b32 s90, s90, 8")
            a("v_lshlrev_b32 v6, 2, v1")
            a("buffer_store_dword v186, v6, s[84:87], s90 offen")
        if "smap" not in OPT: a("s_mov_b32 s100, s71")
        a("s_lshl_b32 s89, s89, 1")
        a(f"s_add_u32 s89, s89, s{sWIN}")
        a.stamp_flush(22, 1, 89, sWV)
    if OPT.get("lite"):
        a("s_waitcnt vmcnt(0)")
        a("s_memrealtime s[90:91]")
        a("s_mov_b64 exec, 1")
        a.srd(84, 22, 0x80000, WS_STAMP + 0x80000)
        a("s_lshl_b32 s88, s2, 3")
        a("s_add_u32 s88, s88, s3")
        a("s_lshl_b32 s88, s88, 2")
        a("v_mov_b32 v0, 0")
        a("s_waitcnt lgkmcnt(0)")
        a("v_mov_b32 v1, s90")
        a("buffer_store_dword v1, v0, s[84:87], s88 offen")
    a.label("K2_END")
    a("s_endpgm")
    return a.text()
```

```python
from common import *

K1_LDS = 65536
K1_VGPR = 128
K1_BLOCK = 320


SF = {"p": "", "r": ""}


def gen_k1(order=("sort", "gemm"), diag=False, pf="", rf="", cpf=16, xc=True, wf=""):
    SF["p"], SF["r"] = pf, rf
    a = Asm()
    a.diag = diag
    NSW = 128 if xc else NCHUNK
    SF["xc"] = xc
    SF["w"] = wf
    total = NSW + NGEMMW
    a(f"s_cmp_ge_u32 s2, {total}")
    a("s_cbranch_scc1 K1_END")
    a.stamp(0)
    a.cyc(88)
    if diag:
        a("s_mov_b32 s89, s2")
        for k in range(1, 10): a(f"s_mov_b32 s{92+k}, 0")
    a("s_load_dwordx16 s[4:19], s[0:1], 0")
    a("s_load_dwordx2 s[20:21], s[0:1], 80")
    a("v_lshrrev_b32 v2, 6, v0")
    a("v_and_b32 v1, 63, v0")
    a("v_readfirstlane_b32 s3, v2")
    if cpf:
        a(f"s_cmp_ge_u32 s2, {cpf}")
        a("s_cbranch_scc1 K1_NOPF")
        a("s_getpc_b64 s[60:61]")
        a.label("K1_PC")
        a("s_mov_b32 s62, K2_END-K1_PC")
        a("s_mov_b32 s63, 0x00020000")
        a("v_lshlrev_b32 v60, 7, v0")
        a("buffer_load_dword v61, v60, s[60:63], 0 offen")
        a.label("K1_NOPF")
    a(f"s_cmp_ge_u32 s2, {NSW}")
    a("s_cbranch_scc1 K1_gemm")
    if xc:
        a("s_and_b32 s22, s2, 7")
        a("s_lshl_b32 s22, s22, 4")
        a("s_lshr_b32 s2, s2, 3")
        a("s_add_u32 s2, s2, s22")
        a(f"s_cmp_ge_u32 s2, {NCHUNK}")
        a("s_cbranch_scc1 K1_END")

    def fin():
        if diag:
            a.stamp(8)
            a("s_waitcnt vmcnt(0)")
            a.stamp(9)
            a("s_cmp_eq_u32 s3, 4")
            a("s_cbranch_scc1 K1_END")
            a.stamp_flush(20, 0, 89, 3)
        a("s_endpgm")
    k1_sort(a, 0)
    a("s_branch K1_sort2")
    a.label("K1_gemm")
    a(f"s_sub_u32 s2, s2, {NSW}")
    k1_gemm(a)
    fin()
    a.label("K1_sort2")
    k1_sort(a, 1)
    fin()
    a.label("K1_prep")
    k1_prep(a)
    a.label("K1_END")
    a("s_endpgm")
    return a.text(), total


def k1_sort_head(a):
    HIST, STRT, EMX, RB = 0, 2048, 4096, 4352
    DST, SRC, EV, BK, RK = 8, 12, 16, 24, 28
    a("v_lshlrev_b32 v3, 4, v0")
    a("v_lshlrev_b32 v4, 5, v0")
    a("v_lshlrev_b32 v5, 3, v0")
    a("v_mov_b32 v6, 0")
    a("v_mov_b32 v7, 0")
    a(f"s_mul_i32 s22, s2, {CH*4}")
    a(f"s_mul_i32 s23, s2, {CH*8}")
    a(f"ds_write_b64 v5, v[6:7] offset:{HIST}")
    a("s_waitcnt lgkmcnt(0)")
    a.srd(24, 10, E * 4)
    a(f"buffer_load_dwordx4 {vr(DST,4)}, v3, s[24:27], s22 offen")
    a.srd(32, 6, E * 8)
    a(f"buffer_load_dwordx4 {vr(EV,4)}, v4, s[32:35], s23 offen")
    a(f"buffer_load_dwordx4 {vr(EV+4,4)}, v4, s[32:35], s23 offen offset:16")
    a.srd(28, 8, E * 4)
    a(f"buffer_load_dwordx4 {vr(SRC,4)}, v3, s[28:31], s22 offen")


def k1_sort(a, part):
    HIST, STRT, EMX, RB = 0, 2048, 4096, 4352
    DST, SRC, EV, BK, RK = 8, 12, 16, 24, 28
    if part == 0:
        return k1_sort_head(a)
    a.srd(40, 20, E * 16, WS_REC)
    a.srd(44, 20, NCHUNK * NWIN * 4, WS_TAB)
    a.srd(48, 20, NCHUNK * 20, WS_EMAX)
    a("v_mov_b32 v32, 1")
    a(f"s_movk_i32 s37, {BM}")
    a("s_mov_b32 s52, 0x7fff7fff")
    a("v_lshlrev_b32 v33, 5, v1")
    a("s_barrier")
    a.stamp(1)
    a("s_waitcnt vmcnt(3)")
    a.stamp(2)
    for j in range(4):
        a(f"v_mul_u32_u24 v{BK+j}, s37, v{DST+j}")
    for j in range(4):
        a(f"v_lshrrev_b32 v{BK+j}, 16, v{BK+j}")
    for j in range(4):
        a(f"v_lshlrev_b32 v{BK+j}, 2, v{BK+j}")
        a(f"ds_add_rtn_u32 v{RK+j}, v{BK+j}, v32 offset:{HIST}")
    a("s_waitcnt lgkmcnt(0)")
    a("s_barrier")
    a.stamp(3)
    a(f"ds_read_b128 v[40:43], v33 offset:{HIST}")
    a(f"ds_read_b128 v[44:47], v33 offset:{HIST+16}")
    a("s_waitcnt lgkmcnt(0)")
    a("v_mov_b32 v48, 0")
    a("v_mov_b32 v49, v40")
    for k in range(2, 8):
        a(f"v_add_u32 v{48+k}, v{48+k-1}, v{40+k-1}")
    a("v_add_u32 v56, v55, v47")
    a("v_mov_b32 v57, v56")
    dpp_scan64(a, 56)
    a("v_sub_u32 v56, v56, v57")
    for k in range(8):
        a(f"v_add_u32 v{48+k}, v{48+k}, v56")
    a(f"ds_write_b128 v33, v[48:51] offset:{STRT}")
    a(f"ds_write_b128 v33, v[52:55] offset:{STRT+16}")
    a("s_waitcnt lgkmcnt(0)")
    for j in range(4):
        a(f"ds_read_b32 v{BK+j}, v{BK+j} offset:{STRT}")
    a("s_cmp_lg_u32 s3, 4")
    a("s_cbranch_scc1 K1S_notab")
    for k in range(8):
        a(f"v_lshl_or_b32 v{40+k}, v{40+k}, 16, v{48+k}")
    a("s_lshl_b32 s53, s2, 11")
    a(f"buffer_store_dwordx4 v[40:43], v33, s[44:47], s53 offen {SF['r']}")
    a(f"buffer_store_dwordx4 v[44:47], v33, s[44:47], s53 offen offset:16 {SF['r']}")
    a("s_waitcnt vmcnt(2)")
    a("s_branch K1S_j")
    a.label("K1S_notab")
    a("s_waitcnt vmcnt(0)")
    a.label("K1S_j")
    a(f"s_mul_i32 s53, s2, {CH*16}")
    for j in range(4):
        a(f"v_lshl_or_b32 v{SRC+j}, v{DST+j}, 14, v{SRC+j}")
    for j in range(4):
        a(f"s_waitcnt lgkmcnt({3 - j + 2*j})")
        a(f"v_add_lshl_u32 v{BK+j}, v{BK+j}, v{RK+j}, 4")
        a(f"ds_write_b64 v{BK+j}, {vr(EV+2*j,2)} offset:{RB}")
        a(f"ds_write_b32 v{BK+j}, v{SRC+j} offset:{RB+8}")
    a("s_waitcnt lgkmcnt(0)")
    a("s_barrier")
    a.stamp(4)
    for j in range(4):
        a(f"ds_read_b128 {vr(40+4*j,4)}, v3 offset:{RB + 5120*j}")
    for j in range(4):
        a(f"s_waitcnt lgkmcnt({3-j})")
        a(f"buffer_store_dwordx4 {vr(40+4*j,4)}, v3, s[40:43], s53 offen {SF['r']}")
        if j < 3:
            a("s_add_u32 s53, s53, 5120")
    for j in range(8):
        a(f"v_and_b32 v{60+j}, s52, v{EV+j}")
    for st in (1, 2, 4):
        for j in range(0, 8, 2*st):
            a(f"v_pk_max_u16 v{60+j}, v{60+j}, v{60+j+st}")
    a("v_lshlrev_b32 v61, 16, v60")
    a("v_and_b32 v60, 0xffff0000, v60")
    a("v_max_u32 v60, v60, v61")
    dpp_max64(a, 60)
    a("s_mov_b32 exec_lo, 0")
    a("s_mov_b32 exec_hi, 0x80000000")
    a("s_mul_i32 s54, s2, 20")
    a("s_lshl_b32 s55, s3, 2")
    a("s_add_u32 s54, s54, s55")
    a("buffer_store_dword v60, v6, s[48:51], s54 offen")


def k1_prep(a):
    a(f"s_cmp_ge_u32 s2, {NFRAG}")
    a("s_cbranch_scc1 K1_END")
    a("v_and_b32 v3, 31, v1")
    a("v_lshlrev_b32 v3, 1, v3")
    a("v_lshrrev_b32 v4, 5, v1")
    a("v_lshlrev_b32 v5, 4, v1")
    a(f"s_mov_b32 s38, {hex(f32bits(-LOG2E))}")
    a("s_lshl_b32 s22, s2, 10")
    a("s_waitcnt lgkmcnt(0)")
    a.srd(40, 20, NFRAG * 1024, WS_WB)
    a.srd(24, 12, 260 * 512)
    a("s_cmp_ge_u32 s2, 136")
    a("s_cbranch_scc1 K1P_cst")
    a("s_cmp_ge_u32 s2, 64")
    a("s_cbranch_scc1 K1P_w2")
    a("v_lshl_add_u32 v3, v4, 12, v3")
    a("s_lshr_b32 s23, s2, 3")
    a("s_and_b32 s36, s2, 7")
    a("s_lshl_b32 s23, s23, 6")
    a("s_lshl_b32 s36, s36, 13")
    a("s_add_u32 s23, s23, s36")
    a("s_add_u32 s23, s23, 0x10000")
    for j in range(8):
        a(f"buffer_load_ushort v{8+j}, v3, s[24:27], s23 offen offset:{512*j}")
    a("s_barrier")
    a("s_waitcnt vmcnt(0)")
    for j in range(8):
        a(f"v_lshlrev_b32 v{8+j}, 16, v{8+j}")
    for j in range(8):
        a(f"v_mul_f32 v{8+j}, s38, v{8+j}")
    for q in range(4):
        a(f"v_cvt_pk_bf16_f32 v{16+q}, v{8+2*q}, v{9+2*q}")
    a(f"buffer_store_dwordx4 v[16:19], v5, s[40:43], s22 offen {SF['w']}")
    a("s_endpgm")
    a.label("K1P_w2")
    a("s_sub_u32 s37, s2, 64")
    a("s_mul_i32 s23, s37, 57")
    a("s_lshr_b32 s23, s23, 9")
    a("s_mul_i32 s36, s23, 9")
    a("s_sub_u32 s36, s37, s36")
    a("s_lshl_b32 s23, s23, 5")
    a("v_and_b32 v3, 15, v1")
    a("v_lshlrev_b32 v3, 1, v3")
    a("s_cmp_eq_u32 s36, 8")
    a("s_cbranch_scc1 K1P_b2")
    a.srd(24, 16, 256 * 256)
    a("v_lshl_add_u32 v3, v4, 12, v3")
    a("v_bfe_u32 v6, v1, 4, 1")
    a("v_lshl_add_u32 v3, v6, 10, v3")
    a("s_lshl_b32 s36, s36, 13")
    a("s_add_u32 s23, s23, s36")
    for j in range(8):
        a(f"buffer_load_ushort v{8+j}, v3, s[24:27], s23 offen offset:{256*(8*(j>>2)+(j&3))}")
    a("s_barrier")
    a("s_waitcnt vmcnt(0)")
    for q in range(4):
        a(f"v_lshl_or_b32 v{16+q}, v{9+2*q}, 16, v{8+2*q}")
    a(f"buffer_store_dwordx4 v[16:19], v5, s[40:43], s22 offen {SF['w']}")
    a("s_endpgm")
    a.label("K1P_b2")
    a.srd(24, 18, 256)
    a("buffer_load_ushort v8, v3, s[24:27], s23 offen")
    for q in range(4):
        a(f"v_mov_b32 v{16+q}, 0")
    a("s_barrier")
    a("s_waitcnt vmcnt(0)")
    a("s_mov_b64 exec, 0xffff")
    a("v_lshl_or_b32 v16, v8, 16, v8")
    a("v_mov_b32 v17, v8")
    a("s_mov_b64 exec, -1")
    a(f"buffer_store_dwordx4 v[16:19], v5, s[40:43], s22 offen {SF['w']}")
    a("s_endpgm")
    a.label("K1P_cst")
    a("s_sub_u32 s37, s2, 136")
    a("s_lshl_b32 s23, s37, 6")
    a("s_add_u32 s36, s23, 0x20000")
    a.srd(28, 14, 512)
    for k in range(4):
        a(f"buffer_load_ushort v{8+k}, v3, s[24:27], s36 offen offset:{512*k}")
    a("buffer_load_ushort v12, v3, s[28:31], s23 offen")
    a("s_barrier")
    a("s_waitcnt vmcnt(0)")
    for k in range(5):
        a(f"v_lshlrev_b32 v{8+k}, 16, v{8+k}")
    for k in range(4):
        a(f"v_mul_f32 v{8+k}, s38, v{8+k}")
    a("v_mul_f32 v18, s38, v12")
    a("v_add_f32 v19, |v8|, |v9|")
    a("v_add_f32 v19, |v10|, v19")
    a("v_add_f32 v19, |v11|, v19")
    for p in range(2):
        a(f"v_cvt_pk_bf16_f32 v{16+p}, v{8+2*p}, v{9+2*p}")
    a("s_mov_b32 exec_hi, 0")
    for p in range(2):
        a(f"v_lshlrev_b32 v6, 16, v{16+p}")
        a(f"v_and_b32 v7, 0xffff0000, v{16+p}")
        a(f"v_sub_f32 v6, v{8+2*p}, v6")
        a(f"v_sub_f32 v7, v{9+2*p}, v7")
        a(f"v_cvt_pk_bf16_f32 v{16+p}, v6, v7")
    a("s_mov_b32 exec_hi, -1")
    a(f"buffer_store_dwordx4 v[16:19], v5, s[40:43], s22 offen {SF['w']}")


def k1_gemm(a):
    WL, XL = 0, 32768
    XB, WA, ACC = 32, 64, 96
    a("s_cmp_eq_u32 s3, 4")
    a("s_cbranch_scc1 K1_prep")
    a("s_lshr_b32 s22, s2, 4")
    a("s_and_b32 s23, s2, 7")
    if SF["xc"]:
        a("s_mul_i32 s23, s23, 20")
    else:
        a("s_lshl_b32 s22, s22, 3")
    a("s_add_u32 s22, s22, s23")
    a(f"s_cmp_ge_u32 s22, {NGEMM // 2}")
    a("s_cbranch_scc1 K1_END")
    a("s_bfe_u32 s23, s2, 0x10003")
    a("s_and_b32 s36, s3, 1")
    a("s_lshr_b32 s37, s3, 1")
    a("v_lshrrev_b32 v3, 3, v1")
    a("v_and_b32 v4, 7, v1")
    a("v_lshlrev_b32 v4, 4, v4")
    a("v_lshl_add_u32 v3, v3, 9, v4")
    a("v_and_b32 v4, 16, v1")
    a("v_lshlrev_b32 v4, 2, v4")
    a("v_xor_b32 v3, v3, v4")
    a("v_lshrrev_b32 v5, 4, v1")
    a("v_and_b32 v6, 15, v1")
    a("v_xor_b32 v6, v6, v5")
    a("v_lshlrev_b32 v6, 4, v6")
    a("v_lshl_add_u32 v8, v5, 8, v6")
    for z in range(1, 4):
        a(f"v_xor_b32 v{8+z}, {64*z}, v8")
    a("s_lshl_b32 s38, s37, 15")
    a("s_lshl_b32 s39, s23, 8")
    a("s_add_u32 s38, s38, s39")
    a("s_lshl_b32 s39, s36, 7")
    a("s_add_u32 s38, s38, s39")
    a("s_lshl_b32 s52, s36, 14")
    a("s_lshl_b32 s39, s37, 13")
    a("s_add_u32 s52, s52, s39")
    a("s_lshl_b32 s53, s22, 1")
    a("s_add_u32 s53, s53, s37")
    a("s_lshl_b32 s54, s53, 13")
    a("s_lshl_b32 s39, s36, 12")
    a("s_add_u32 s54, s54, s39")
    a("s_lshl_b32 s55, s37, 13")
    a("s_add_u32 s55, s55, s39")
    a(f"s_add_u32 m0, s55, {XL}")
    a("s_waitcnt lgkmcnt(0)")
    a.srd(24, 4, N * 256)
    for z in range(4):
        a(f"buffer_load_dwordx4 v{8+z}, s[24:27], s54 offen offset:{1024*z} lds")
    a.srd(28, 12, 260 * 512)
    for z in range(8):
        a("s_mov_b32 m0, s52")
        a("s_add_u32 s52, s52, 1024")
        a("buffer_load_dwordx4 v3, s[28:31], s38 offen lds")
        a("s_add_u32 s38, s38, 4096")
    a.srd(40, 20, N * 512, WS_P)
    a.srd(44, 20, NGEMM * 16, WS_PMAX)
    a("v_lshrrev_b32 v12, 5, v1")
    a("v_and_b32 v13, 31, v1")
    a("v_bfe_u32 v14, v1, 2, 2")
    a("v_lshl_add_u32 v14, v12, 3, v14")
    a("v_lshlrev_b32 v14, 7, v14")
    a("v_and_b32 v15, 3, v1")
    a("v_lshl_add_u32 v14, v15, 3, v14")
    a("v_bfe_u32 v15, v1, 4, 1")
    a("v_lshl_add_u32 v14, v15, 5, v14")
    a("v_bfe_u32 v15, v1, 3, 1")
    a("v_lshl_add_u32 v14, v15, 6, v14")
    a("s_lshl_b32 s39, s36, 14")
    a("v_add_u32 v14, s39, v14")
    a("v_xor_b32 v26, 64, v14")
    a("v_and_b32 v15, 15, v1")
    a("v_xor_b32 v15, v15, v12")
    a("v_lshlrev_b32 v15, 4, v15")
    a("v_lshl_add_u32 v15, v13, 8, v15")
    a("s_lshl_b32 s39, s37, 13")
    a(f"s_add_u32 s39, s39, {XL}")
    a("v_add_u32 v16, s39, v15")
    for s in range(1, 8):
        a(f"v_xor_b32 v{16+s}, {32*s}, v16")
    a("v_and_b32 v27, 7, v1")
    a("v_lshlrev_b32 v27, 4, v27")
    a("v_lshl_add_u32 v27, v13, 7, v27")
    a("v_lshl_add_u32 v27, v12, 3, v27")
    a("s_lshl_b32 s39, s3, 12")
    a("s_add_u32 s39, s39, 49152")
    a("v_add_u32 v27, s39, v27")
    a("v_lshl_add_u32 v28, v1, 4, s39")
    a("v_lshrrev_b32 v24, 3, v1")
    a("v_and_b32 v25, 7, v1")
    a("v_xor_b32 v25, v25, v24")
    a("v_lshlrev_b32 v25, 4, v25")
    a("v_lshl_add_u32 v24, v24, 9, v25")
    a("s_lshl_b32 s56, s53, 14")
    a("s_lshl_b32 s39, s23, 8")
    a("s_add_u32 s56, s56, s39")
    a("s_lshl_b32 s39, s36, 7")
    a("s_add_u32 s56, s56, s39")
    a(f"s_mov_b32 s57, {hex(f32bits(-LOG2E))}")
    a.stamp(1)
    a("s_waitcnt vmcnt(0)")
    a.stamp(2)
    a("s_barrier")
    a.stamp(3)
    d = DsTrack(a)
    def wread(k):
        T, s = k >> 3, k & 7
        for i in range(2):
            d(f"ds_read_b64_tr_b16 {vr(WA+(k&7)*4+2*i,2)}, v{(14, 26)[T]} offset:{16*s*128+4*i*128}", f"w{k}")
    def post(T):
        P = [f"v_mul_f32 v{ACC+16*T+r}, s57, v{ACC+16*T+r}" for r in range(16)]
        for g in range(4):
            P.append(f"v_xor_b32 v{29+(g&1)}, {16*(4*T+g)}, v27")
            for p in range(2):
                P.append(f"v_cvt_pk_bf16_f32 v{PK+2*g+p}, v{ACC+16*T+4*g+2*p}, v{ACC+16*T+4*g+2*p+1}")
            P.append(f"ds_write_b64 v{29+(g&1)}, {vr(PK+2*g,2)}")
        return P
    PK = 8
    for s in range(4):
        d(f"ds_read_b128 {vr(XB+4*s,4)}, v{16+s}", f"x{s}")
        wread(s)
    p0 = post(0)
    for k in range(16):
        T, s = k >> 3, k & 7
        d.wait(f"w{k}", f"x{s}")
        a(mfma(ACC + 16*T, WA + (k & 7)*4, XB + 4*s, None if s == 0 else ACC + 16*T))
        if k + 4 < 8:
            d(f"ds_read_b128 {vr(XB+4*(k+4),4)}, v{16+k+4}", f"x{k+4}")
        if k + 4 < 16:
            wread(k + 4)
        if k >= 11:
            take = p0[:7]; p0 = p0[7:]
            for l in take: d(l)
    a.stamp(4)
    a(f"v_max_f32 v25, |v{ACC}|, |v{ACC+1}|")
    for r in range(2, 16, 2):
        a(f"v_max3_f32 v25, |v{ACC+r}|, |v{ACC+r+1}|, v25")
    a("s_nop 1")
    for l in post(1): a(l)
    for q in range(4):
        a(f"ds_read_b128 {vr(XB+4*q,4)}, v28 offset:{1024*q}")
    for r in range(16, 32, 2):
        a(f"v_max3_f32 v25, |v{ACC+r}|, |v{ACC+r+1}|, v25")
    for q in range(4):
        a(f"s_waitcnt lgkmcnt({3-q})")
        a(f"buffer_store_dwordx4 {vr(XB+4*q,4)}, v24, s[40:43], s56 offen {SF['p']}")
        if q < 3:
            a("s_add_u32 s56, s56, 4096")
    dpp_max64(a, 25)
    a("s_lshl_b32 s39, s22, 1")
    a("s_add_u32 s39, s39, s23")
    a("s_lshl_b32 s39, s39, 4")
    a("s_lshl_b32 s36, s3, 2")
    a("s_add_u32 s39, s39, s36")
    a("v_mov_b32 v26, 0")
    a("s_mov_b32 exec_lo, 0")
    a("s_mov_b32 exec_hi, 0x80000000")
    a("buffer_store_dword v25, v26, s[44:47], s39 offen")
```

```python
from common import *

MAXT = 13
BLKSZ = 2304
O_IX, O_SO = 1024, 1280
BLK = 0
BLKW = MAXT * BLKSZ
CNT = BLK + 2 * BLKW
MISC = CNT + 256
IDX = MISC + 256
IDXW = MAXT * 128
LIST = IDX + 2 * IDXW
XW = LIST + 4096
RING0 = 98304
K2_LDS = RING0 + 65536
assert CNT % 256 == 0 and XW % 256 == 0 and XW + 10240 <= RING0
CAP1, CAP2 = 128, 96
PADIDX = N
K2_BLOCK = 512
NBKT = NWIN // 2

IDN, QB, S, T0, T1, DD, MM, NN, HF, HB = 8, 16, 32, 64, 80, 96, 112, 120, 128, 136
PF, AO, SO0, IX, PA, BA, IA, DEG = 140, 156, 164, 168, 176, 180, 181, 182
VBASE, VCNT, VREC = 183, 184, 185
BI = 5
W2R = 188
WBQ = 224
SO1 = 224
K2_VGPR = 256
TT = (T0, T1)
SO = (SO0, SO1)

sTAB, sREC, sP, sX, sWF, sOUT, sMX = 24, 28, 32, 36, 40, 44, 48
sWIN, sWV, sN0, sNA, sNW, sNB_ = 52, 53, 54, 55, 56, 57
sTW, sLO, sCAP, sNB, sNT, sI, sRING = 58, 59, 60, 61, 62, 63, 64
sF1, sF2, sSLOW, sSINIT, sBLK, sIDX = 65, 66, 67, 68, 69, 70
sM0, sM1 = 72, 74
sLIST, sCA, sSA, sW2, sNB2, sWBO = 6, 7, 8, 9, 10, 11
t0, t1, t2, t3 = 76, 77, 78, 79

OPT = dict()


def dma(stage_off):
    out = []
    for q in range(4):
        out.append(f"s_add_u32 m0, s{sRING}, {stage_off + 1024*q}")
        out.append("s_nop 0")
        out.append(f"buffer_load_dwordx4 {vr(IX+2*q,2)}, s[{sP}:{sP+3}], 0 idxen offen lds")
    return out


def idx_reads(tile_off):
    return [f"ds_read_b32 v{IX+2*q}, v{IA} offset:{tile_off*128 + 32*q}" for q in range(4)]


def pf_reads(stage):
    return [f"ds_read_b128 {vr(PF+4*k,4)}, v{PA+k} offset:{stage*4096}" for k in range(4)]


def ao_reads(tile_off):
    return [f"ds_read_b128 {vr(AO,4)}, v{BA} offset:{tile_off*BLKSZ}",
            f"ds_read_b32 v{AO+4}, v{BI} offset:{tile_off*BLKSZ + O_IX}"]


def so_read(tile_off, buf):
    return f"ds_read_b128 {vr(SO[buf],4)}, v{BA} offset:{tile_off*BLKSZ + O_SO}"


def zmf(c):
    t = TT[c]
    return [mfma(t, PF + 8*c, IDN, None), mfma(t, PF + 8*c + 4, IDN + 4, t),
            f"v_smfmac_f32_32x32x32_bf16 {vr(t,16)}, {vr(AO,4)}, {vr(QB+8*c,8)}, v{AO+4}"]


def ssmf(c, buf, first=False):
    return mfma(S + 16*c, HB, SO[buf], None if first else S + 16*c)


def cvts():
    return [f"v_cvt_pk_bf16_f32 v{HB+p}, v{HF+2*p}, v{HF+2*p+1}" for p in range(4)]


def exps(c):
    return [f"v_exp_f32 v{DD+r}, v{TT[c]+r}" for r in range(16)]


RQ = 244


def rcps():
    if OPT.get("quad", 0):
        return [f"v_rcp_f32 v{RQ+r}, v{RQ+r}" for r in range(4)]
    return [f"v_rcp_f32 v{MM+r}, v{MM+r}" for r in range(8)]


def fms():
    if OPT.get("quad", 0):
        return ([f"v_mul_f32 v{HF+r}, v{MM+(r^1)}, v{RQ+(r>>1)}" for r in range(8)]
                + [f"v_mul_f32 v{HF+r}, v{NN+r}, v{HF+r}" for r in range(8)])
    return [f"v_mul_f32 v{HF+r}, v{NN+r}, v{MM+r}" for r in range(8)]


def prun(c, fm=True):
    t = TT[c]
    P = fms() if fm else []
    if OPT.get("p5"):
        P += [f"v_add_f32 v{DD+r}, 1.0, v{DD+r}" for r in range(16)]
        P += [f"v_mul_f32 v{MM+j}, v{DD+2*j}, v{DD+2*j+1}" for j in range(8)]
        P += [f"v_mul_f32 v{NN+j}, v{t+2*j}, v{DD+2*j+1}" for j in range(8)]
        P += [f"v_fma_f32 v{NN+j}, v{t+2*j+1}, v{DD+2*j}, v{NN+j}" for j in range(8)]
        return P
    P += [f"v_add_f32 v{DD+2*j+1}, 1.0, v{DD+2*j+1}" for j in range(8)]
    P += [f"v_fma_f32 v{NN+j}, v{t+2*j+1}, v{DD+2*j}, v{t+2*j+1}" for j in range(8)]
    P += [f"v_fma_f32 v{MM+j}, v{DD+2*j}, v{DD+2*j+1}, v{DD+2*j+1}" for j in range(8)]
    P += [f"v_fmac_f32 v{NN+j}, v{t+2*j}, v{DD+2*j+1}" for j in range(8)]
    if OPT.get("quad", 0):
        P += [f"v_mul_f32 v{RQ+j}, v{MM+2*j}, v{MM+2*j+1}" for j in range(4)]
    return P


def weave(base, inserts):
    out = []
    ins = sorted(inserts, key=lambda x: x[0])
    k = 0
    for i, l in enumerate(base):
        while k < len(ins) and ins[k][0] <= i:
            out += ins[k][1]; k += 1
        out.append(l)
    while k < len(ins):
        out += ins[k][1]; k += 1
    return out


def trun(c, par, stage, role):
    z = zmf(1 - c)
    late = role == "B" and c == 1
    w = ["s_waitcnt lgkmcnt(0)"] if late else []
    if stage == 0:
        base = exps(c)
        pos = [0, 5, 10]
    elif stage == 1:
        base = exps(c) + rcps()
        pos = [10, 15, 20] if late else [0, 6, 12]
    else:
        base = cvts() + exps(c) + rcps()
        pos = [12, 17, 22, 6] if late else [0, 7, 13, 20]
    ins = [(pos[0], w + [z[0]])] + [(pos[k], [z[k]]) for k in (1, 2)]
    if stage >= 2:
        ins.append((pos[3], [ssmf(c, par ^ 1, stage < 4)]))
    return [f"s_setprio {2 if role == 'A' else 1}"] + weave(base, ins) + ["s_setprio 0"]


def w2_loads(fs):
    out = []
    for f in fs:
        if f in (4, 8):
            out.append(f"s_add_u32 s{t3}, s{sW2}, {1024*f}")
        so = sW2 if f < 4 else t3
        out.append(f"buffer_load_dwordx4 {vr(W2R+4*f,4)}, v4, s[{sWF}:{sWF+3}], s{so} offen offset:{(f & 3) * 1024}")
    return out


def blk1(par, role, vm=4, w2=()):
    nst = (par + 1) & 1
    pf, ao = pf_reads(nst), ao_reads(par + 1)
    out = [f"s_waitcnt vmcnt({vm})"] + pf[:2] + ao + pf[2:] + idx_reads(par + 3) + [so_read(par, par)] + w2_loads(w2)
    return out + (["s_waitcnt lgkmcnt(0)"] if role == "A" else [])


def blk2(par):
    nst = (par + 1) & 1
    tr = OPT.get("trace")
    return (dma(nst * 4096) + (["s_memtime s[90:91]"] if tr else [])
            + [f"s_sub_u32 s{sI}, s{sI}, 1", f"s_cmp_eq_u32 s{sI}, 0"]
            + (["s_waitcnt lgkmcnt(0)", f"s_mov_b32 m0, s{sI}", "v_writelane_b32 v186, s90, m0"] if tr else []))


INC = [f"v_add_u32 v{BA}, {2*BLKSZ}, v{BA}", f"v_add_u32 v{BI}, {2*BLKSZ}, v{BI}", f"v_add_u32 v{IA}, 256, v{IA}"]


def drain(par):
    return (cvts() + rcps()[:2] + [ssmf(0, par)] + rcps()[2:] + ["s_nop 0"] + fms() + cvts() + ["s_nop 1", ssmf(1, par)])


DG, RA, RR, SA, SR, XWA = 228, 236, 237, 238, 239, 240
sRM, sOA, sOB = 12, 14, 15


def epi_prelude():
    t = [PF + k for k in range(12)]
    hi, p0, p1, n, kg, w, nd, i0, i1, i2, sz = t[:11]
    L = [f"v_and_b32 v{hi}, 0xffff0000, v{DEG}", f"v_and_b32 v{n}, 15, v1", f"v_sub_f32 v{p1}, v{DEG}, v{hi}",
         f"v_bfe_u32 v{w}, v1, 2, 1", f"v_and_b32 v{p0}, 0xffff0000, v{p1}", f"v_and_b32 v{nd}, 3, v1",
         f"v_sub_f32 v{p1}, v{p1}, v{p0}", f"v_lshrrev_b32 v{hi}, 16, v{hi}", f"v_or_b32 v{p0}, v{p0}, v{hi}",
         f"v_lshrrev_b32 v{p1}, 16, v{p1}", f"v_add_u32 v{nd}, 16, v{nd}", f"v_lshlrev_b32 v{i0}, 2, v{n}",
         f"v_add_u32 v{i1}, 128, v{i0}", f"v_lshl_add_u32 v{i2}, v{w}, 5, v{nd}", f"v_lshlrev_b32 v{i2}, 2, v{i2}",
         f"v_lshrrev_b32 v{kg}, 4, v1"]
    for tl, ix in enumerate((i0, i1, i2)):
        L += [f"ds_bpermute_b32 v{DG+2*tl}, v{ix}, v{p0}", f"ds_bpermute_b32 v{DG+2*tl+1}, v{ix}, v{p1}"]
    L += [f"v_mov_b32 v{DG+6}, 0", f"v_mov_b32 v{DG+7}, 0",
          f"v_lshlrev_b32 v{RA}, 9, v{kg}", f"v_add_u32 v{RA}, {RING0}, v{RA}", f"v_lshl_add_u32 v{RR}, v{nd}, 4, v{RA}", f"v_lshl_add_u32 v{RR}, v{w}, 15, v{RR}",
          f"v_lshl_add_u32 v{RA}, v{n}, 4, v{RA}", f"v_lshlrev_b32 v{SA}, 3, v{kg}", f"v_mul_u32_u24 v{SR}, s{sNA}, v{w}",
          f"v_add_u32 v{SR}, v{SR}, v{nd}", f"v_lshl_add_u32 v{SR}, v{SR}, 8, v{SA}", f"v_lshl_add_u32 v{SA}, v{n}, 8, v{SA}",
          f"s_sub_u32 s{t0}, s{sNB_}, s{sNA}", f"v_mul_i32_i24 v{sz}, s{t0}, v{w}", f"v_add_u32 v{sz}, s{sNA}, v{sz}",
          f"v_cmp_gt_u32 vcc, v{sz}, v{nd}", f"s_lshl_b32 s{sOA}, s{sN0}, 8", f"s_lshl_b32 s{t0}, s3, 5",
          f"s_add_u32 s{sOA}, s{sOA}, s{t0}", f"s_lshl_b32 s{sOB}, s{sNA}, 8", f"s_add_u32 s{sOB}, s{sOB}, s{sOA}",
          f"s_and_b32 s{sRM}, vcc_lo, 0x00ff00ff", f"s_and_b32 s{sRM+1}, vcc_hi, 0x00ff00ff"]
    return L


def fast_loop(a, role):
    L = "K2" + role
    em = lambda ls: [a(l) for l in ls]
    A = role == "A"
    T = lambda c, par, stage: trun(c, par, stage, role)
    def unit(T_, blk, P):
        em(T_)
        em(blk + P if A else P + blk)
    unit(T(0, 0, 0), blk1(0, role, 4, (5, 6)), prun(0, False))
    unit(T(1, 0, 1), blk2(0), prun(1))
    unit(T(0, 1, 2), blk1(1, role, 6, (7, 8)), prun(0))
    if A:
        em(T(1, 1, 3)); em(blk2(1))
        a(f"s_cbranch_scc1 {L}_EXIT1")
        a.raw(".p2align 6")
        a.label(f"{L}_LOOP")
        em(INC + prun(1))
        unit(T(0, 0, 4), blk1(0, role), prun(0))
        em(T(1, 0, 4)); em(blk2(0))
        a(f"s_cbranch_scc1 {L}_EXIT0")
        em(prun(1))
        unit(T(0, 1, 4), blk1(1, role), prun(0))
        em(T(1, 1, 4)); em(blk2(1))
        a(f"s_cbranch_scc0 {L}_LOOP")
    else:
        unit(T(1, 1, 3), blk2(1), prun(1))
        a(f"s_cbranch_scc1 {L}_EXIT1")
        a.raw(".p2align 6")
        a.label(f"{L}_LOOP")
        unit(T(0, 0, 4), blk1(0, role), INC + prun(0))
        unit(T(1, 0, 4), blk2(0), prun(1))
        a(f"s_cbranch_scc1 {L}_EXIT0")
        unit(T(0, 1, 4), blk1(1, role), prun(0))
        unit(T(1, 1, 4), blk2(1), prun(1))
        a(f"s_cbranch_scc0 {L}_LOOP")
    for par in (1, 0):
        a.label(f"{L}_EXIT{par}")
        if A: em(prun(1))
        em(drain(par))
        a("s_branch K2_EPI")


def gen_k2(force_slow=False, diag=False, nogather=False, **opt):
    OPT.clear(); OPT.update(opt)
    a = Asm()
    a.diag = diag
    smap = OPT.get("smap", dict(start=0, tab=1, rec=2, recl=3, b4=4, loop=5, epi=6, epb=7, end=8, drained=9))
    st = lambda name: a.stamp(smap[name]) if name in smap else None
    hi = lambda: a("s_setprio 3") if OPT.get("prio", True) else None
    lo = lambda: a("s_setprio 0") if OPT.get("prio", True) else None
    a(f"s_cmp_ge_u32 s2, {NBKT}")
    a("s_cbranch_scc1 K2_END")
    st("start")
    a.cyc(88)
    if diag:
        a("s_mov_b32 s89, s2")
    a("s_load_dwordx2 s[22:23], s[0:1], 80")
    a("s_load_dwordx2 s[4:5], s[0:1], 0")
    a("s_load_dwordx2 s[20:21], s[0:1], 64")
    Z = HF
    NZ0, NZ1, NZ2 = OPT.get("nz", (14, 8, 0))
    NLINE = (MISC + 256) // 256
    NZ = (NLINE + 7) // 8
    def clear(k0, k1):
        if k0 < k1:
            a("s_lshl_b32 m0, s3, 8")
            a("s_nop 0")
        for k in range(k0, k1):
            if k == NZ - 1:
                a(f"s_min_u32 s{t0}, s3, {NLINE - 1 - 8*k}")
                a(f"s_lshl_b32 m0, s{t0}, 8")
                a("s_nop 0")
            a(f"ds_write_addtid_b32 v{Z} offset:{2048*k}")
    LA = AO
    LR, L64, Q1 = AO + 4, AO + 5, AO + 6
    CST = MM
    MX = [DD, DD + 4, DD + 8, DD + 12, NN, NN + 4, QB, QB + 4]
    OH, OX = 186, 187
    XA = W2R + 20
    a("v_lshrrev_b32 v2, 6, v0")
    a("v_and_b32 v1, 63, v0")
    a("v_readfirstlane_b32 s3, v2")
    a(f"v_mov_b32 v{Z}, 0")
    clear(0, NZ0)
    a(f"s_and_b32 s{t0}, s2, 7")
    a("s_lshr_b32 s2, s2, 3")
    a(f"s_lshl_b32 s{t0}, s{t0}, 5")
    a(f"s_add_u32 s2, s2, s{t0}")
    a(f"s_lshr_b32 s{sWIN}, s3, 2")
    a("v_bfe_u32 v3, v0, 1, 7")
    a("v_lshlrev_b32 v7, 11, v3")
    a(f"s_lshl_b32 s{t3}, s2, 3")
    a(f"s_lshl_b32 s{t1}, s{sWIN}, 2")
    a(f"s_add_u32 s{t3}, s{t3}, s{t1}")
    a(f"s_mov_b32 s{sTAB+2}, {hex(NCHUNK * NWIN * 4)}")
    a(f"s_mov_b32 s{sTAB+3}, 0x00020000")
    a(f"s_and_b32 s{sWV}, s3, 3")
    a(f"s_lshl_b32 s{t0}, s2, 17")
    a(f"s_add_u32 s{t0}, s{t0}, {BM-1}")
    a(f"s_add_u32 s{t1}, s{t0}, 0x10000")
    a(f"s_add_u32 s{t2}, s{t0}, 0x20000")
    a(f"s_mul_hi_u32 s{sN0}, s{t0}, {hex(START_MAGIC)}")
    a(f"s_mul_hi_u32 s{t1}, s{t1}, {hex(START_MAGIC)}")
    a(f"s_mul_hi_u32 s{t2}, s{t2}, {hex(START_MAGIC)}")
    a(f"s_lshr_b32 s{sN0}, s{sN0}, {START_SH}")
    a(f"s_lshr_b32 s{t1}, s{t1}, {START_SH}")
    a(f"s_lshr_b32 s{t2}, s{t2}, {START_SH}")
    a(f"s_min_u32 s{t2}, s{t2}, {N}")
    a(f"s_sub_u32 s{sNA}, s{t1}, s{sN0}")
    a(f"s_sub_u32 s{sNB_}, s{t2}, s{t1}")
    a(f"s_cmp_eq_u32 s{sWIN}, 0")
    a(f"s_cselect_b32 s{sNW}, s{sN0}, s{t1}")
    a(f"s_lshl_b32 s{sWBO}, s3, 13")
    a(f"s_add_u32 s{sRING}, s{sWBO}, {RING0}")
    a("s_waitcnt lgkmcnt(0)")
    a(f"s_add_u32 s{sTAB}, s22, {hex(WS_TAB)}")
    a(f"s_addc_u32 s{sTAB+1}, s23, 0")
    a(f"buffer_load_dword v{VCNT}, v7, s[{sTAB}:{sTAB+3}], s{t3} offen")
    clear(NZ0, NZ0 + NZ1)
    a("v_lshrrev_b32 v5, 4, v1")
    a("v_and_b32 v6, 15, v1")
    a("v_xor_b32 v6, v6, v5")
    a(f"s_lshl_b32 s{t1}, s{sWV}, 2")
    a(f"v_xor_b32 v6, s{t1}, v6")
    a("v_lshlrev_b32 v6, 4, v6")
    a("v_lshl_add_u32 v6, v5, 8, v6")
    a("v_lshlrev_b32 v4, 4, v1")
    a(f"s_lshl_b32 s{t1}, s{sN0}, 8")
    a(f"s_lshl_b32 s{t2}, s3, 10")
    a(f"s_add_u32 s{t1}, s{t1}, s{t2}")
    a(f"s_add_u32 m0, s{t2}, {XW}")
    a.srd(sX, 4, N * 256)
    a(f"buffer_load_dwordx4 v6, s[{sX}:{sX+3}], s{t1} offen lds")
    a("s_cmp_ge_u32 s3, 2")
    a("s_cbranch_scc1 K2_X2")
    a(f"s_add_u32 m0, s{t2}, {XW + 8192}")
    a(f"s_add_u32 s{t1}, s{t1}, 8192")
    a(f"buffer_load_dwordx4 v6, s[{sX}:{sX+3}], s{t1} offen lds")
    a.label("K2_X2")
    a(f"s_mov_b32 m0, s{sRING}")
    a.srd(sWF, 22, NFRAG * 1024, WS_WB)
    for z in range(4):
        a(f"buffer_load_dwordx4 v4, s[{sWF}:{sWF+3}], s{sWBO} offen offset:{1024*z} lds")
    a.srd(sREC, 22, E * 16, WS_REC)
    a(f"s_mov_b32 s{sLO}, 0")
    a(f"s_mov_b32 s{sCAP}, {CAP1}")
    a(f"s_mov_b32 s{sF1}, 1")
    a(f"s_mov_b32 s{sF2}, 1")
    a(f"s_lshl_b32 s{sLIST}, s3, 9")
    a(f"s_add_u32 s{sLIST}, s{sLIST}, {LIST}")
    a("v_and_b32 v7, 1, v0")
    a(f"s_movk_i32 s{t0}, {CH}")
    a(f"v_mad_u32_u24 v{VREC}, v3, s{t0}, v7")
    a(f"v_lshlrev_b32 v{VREC}, 4, v{VREC}")
    a(f"v_xor_b32 v{Q1}, 1, v7")
    a(f"v_lshlrev_b32 v{Q1}, 16, v{Q1}")
    a(f"v_lshl_add_u32 v{LR}, v1, 2, s{sLIST}")
    a(f"v_add_u32 v{L64}, 64, v1")
    a("v_and_b32 v2, 31, v1")
    a("v_lshrrev_b32 v5, 5, v1")
    a(f"s_mul_i32 s{t0}, s{sWIN}, s{sNA}")
    a(f"v_lshrrev_b32 v{XA}, 2, v2")
    a(f"v_sub_u32 v{XA}, v2, v{XA}")
    a(f"v_add_u32 v{XA}, -1, v{XA}")
    a(f"v_min_u32 v{XA}, 19, v{XA}")
    a(f"v_add_u32 v{XA}, s{t0}, v{XA}")
    a(f"v_and_b32 v7, 15, v{XA}")
    a("v_xor_b32 v7, v7, v5")
    a("v_lshlrev_b32 v7, 4, v7")
    a(f"v_lshl_add_u32 v{XA}, v{XA}, 8, v7")
    a(f"v_add_u32 v{XA}, {XW}, v{XA}")
    for s in range(1, 8):
        a(f"v_xor_b32 v{XA+s}, {32*s}, v{XA}")
    a(f"s_lshl_b32 s{t0}, s{sWV}, 14")
    a(f"s_add_u32 s{t0}, s{t0}, {RING0}")
    a(f"v_add_u32 v3, s{t0}, v4")
    a.srd(sP, 22, N, WS_P, stride=512)
    a.srd(sOUT, 20, N * 256)
    a(f"s_mov_b32 s{sSINIT}, 0")
    a(f"s_mul_i32 s{sBLK}, s{sWIN}, {BLKW}")
    a(f"s_mul_i32 s{sIDX}, s{sWIN}, {IDXW}")
    a(f"s_add_u32 s{sIDX}, s{sIDX}, {IDX}")
    a(f"s_lshl_b32 s{t0}, s{sWIN}, 5")
    a(f"s_sub_u32 s{t0}, s{t0}, s{sNW}")
    a(f"s_lshl_b32 s{t0}, s{t0}, 2")
    a(f"s_add_u32 s{sCA}, s{t0}, {CNT}")
    a(f"s_lshl_b32 s{t0}, s{sWIN}, 9")
    a(f"s_sub_u32 s{t0}, s{sBLK}, s{t0}")
    a(f"s_sub_u32 s{sSA}, s{t0}, {4*CNT}")
    a(f"s_mul_i32 s{sW2}, s3, {9*1024}")
    a(f"s_add_u32 s{sW2}, s{sW2}, {WS_W2F - WS_WB}")
    clear(NZ0 + NZ1, NZ0 + NZ1 + NZ2)
    hi()
    a("s_waitcnt vmcnt(5)")
    st("tab")
    a(f"v_add_u32 v7, v{VCNT}, v{Q1}")
    a(f"v_and_b32 v6, 0xffff, v{VCNT}")
    a(f"v_lshrrev_b32 v{VCNT}, 17, v7")
    a(f"v_lshl_add_u32 v{VREC}, v6, 4, v{VREC}")
    a(f"v_add_u32 v{LA+1}, 32, v{VREC}")
    D = lambda src, ctl: a(f"v_add_u32_dpp v{VBASE}, v{src}, v{src} {ctl}")
    D(VCNT, "row_shr:1 row_mask:0xf bank_mask:0xf bound_ctrl:0")
    a(f"v_add_u32 v{LA+2}, 64, v{VREC}")
    a(f"v_add_u32 v{LA+3}, 0x60, v{VREC}")
    D(VBASE, "row_shr:2 row_mask:0xf bank_mask:0xf bound_ctrl:0")
    a(f"v_cmp_lt_u32 vcc, 4, v{VCNT}")
    a("s_nop 0")
    D(VBASE, "row_shr:4 row_mask:0xf bank_mask:0xf bound_ctrl:0")
    a("s_nop 1")
    D(VBASE, "row_shr:8 row_mask:0xf bank_mask:0xf bound_ctrl:0")
    a("s_nop 1")
    D(VBASE, "row_bcast:15 row_mask:0xa bank_mask:0xf")
    a("s_nop 1")
    D(VBASE, "row_bcast:31 row_mask:0xc bank_mask:0xf")
    a("s_cbranch_vccnz K2_GEN0")
    a(f"v_readlane_b32 s{sTW}, v{VBASE}, 63")
    a(f"v_sub_u32 v{VBASE}, v{VBASE}, v{VCNT}")
    a(f"v_lshl_add_u32 v6, v{VBASE}, 2, s{sLIST}")
    a(f"s_cmp_gt_u32 s{sTW}, {CAP1}")
    a("s_cbranch_scc1 K2_GEN")
    a(f"s_mov_b32 s{t0}, s{sTW}")
    for j in range(4):
        a(f"v_cmpx_lt_u32 vcc, {j}, v{VCNT}")
        a(f"ds_write_b32 v6, v{VREC if j == 0 else LA+j} offset:{4*j}")
    a.label("K2_LISTED")
    a("s_mov_b64 exec, -1")
    a(f"ds_read_b32 v{LA}, v{LR}")
    a(f"ds_read_b32 v{LA+1}, v{LR} offset:256")
    a(f"v_cmp_gt_u32 s[{sM0}:{sM0+1}], s{t0}, v1")
    a(f"v_cmp_gt_u32 s[{sM1}:{sM1+1}], s{t0}, v{L64}")
    R = (PF, PF + 4)
    for r in range(2):
        a(f"s_waitcnt lgkmcnt({1-r})")
        a(f"buffer_load_dwordx4 {vr(R[r],4)}, v{LA+r}, s[{sREC}:{sREC+3}], 0 offen")
    lo()
    st("rec")
    a(f"s_cmp_eq_u32 s{sF1}, 0")
    a("s_cbranch_scc1 K2_NF2")
    a(f"s_add_u32 m0, s{sRING}, 4096")
    a(f"s_add_u32 s{t0}, s{sWBO}, 4096")
    for z in range(4):
        a(f"buffer_load_dwordx4 v4, s[{sWF}:{sWF+3}], s{t0} offen offset:{1024*z} lds")
    a.label("K2_NF2")
    clear(NZ0 + NZ1 + NZ2, NZ)
    a(f"v_mov_b32 v{Z+4}, {PADIDX}")
    a("s_lshl_b32 m0, s3, 8")
    a(f"s_min_u32 s{t0}, s3, 4")
    a(f"ds_write_addtid_b32 v{Z+4} offset:{IDX}")
    a(f"s_lshl_b32 m0, s{t0}, 8")
    a("s_nop 0")
    a(f"ds_write_addtid_b32 v{Z+4} offset:{IDX + 2048}")
    a(f"s_cmp_eq_u32 s{sF1}, 0")
    a("s_cbranch_scc1 K2_NF3")
    a(f"v_and_b32 v{IX}, 7, v1")
    a("v_lshrrev_b32 v7, 4, v1")
    a(f"v_xor_b32 v7, v{IX}, v7")
    a("v_lshlrev_b32 v7, 4, v7")
    a(f"s_lshl_b32 s{t0}, s{sWV}, 7")
    a(f"v_add_u32 v{IX+1}, s{t0}, v7")
    a(f"v_xor_b32 v{IX+3}, 64, v{IX+1}")
    a(f"v_mov_b32 v{IX+5}, v{IX+1}")
    a(f"v_mov_b32 v{IX+7}, v{IX+3}")
    a(f"v_mov_b32 v{DEG}, 0")
    a("v_mul_u32_u24 v6, 43, v2")
    a("v_lshrrev_b32 v6, 7, v6")
    a("v_mad_i32_i24 v7, v6, -3, v2")
    a("v_add_u32 v7, 1, v7")
    a(f"v_bfe_u32 v{OH}, v6, 1, 1")
    a(f"v_and_b32 v{OX}, 1, v6")
    a(f"v_lshl_add_u32 v{OH}, v{OX}, 1, v{OH}")
    a(f"v_lshl_add_u32 v{OX}, v{OH}, 2, 2")
    a(f"v_lshlrev_b32 v7, v{OX}, v7")
    a("v_lshrrev_b32 v6, 2, v6")
    a(f"v_lshl_add_u32 v{OH}, v6, 9, v{OX}")
    a(f"v_lshlrev_b32 v{OH}, 16, v{OH}")
    a(f"v_lshl_add_u32 v{OX}, v6, 23, v7")
    a("v_bfe_u32 v6, v1, 1, 3")
    a("v_xor_b32 v6, v6, v5")
    a("v_lshlrev_b32 v6, 4, v6")
    a("v_lshl_add_u32 v6, v2, 7, v6")
    a(f"v_add_u32 v{PA}, s{sRING}, v6")
    for k in range(1, 4):
        a(f"v_xor_b32 v{PA+k}, {32*k}, v{PA}")
    a("v_and_b32 v7, 1, v1")
    a("v_lshlrev_b32 v7, 4, v7")
    a("v_mov_b32 v6, 0x3f80")
    a("v_lshlrev_b32 v7, v7, v6")
    for i in range(2):
        a(f"v_mov_b32 v{IDN+4*i}, 0")
    for i in range(2):
        a(f"s_mov_b32 exec_lo, {hex(3 << (16*i))}")
        a(f"s_mov_b32 exec_hi, {hex(3 << (16*i + 8))}")
        a(f"v_mov_b32 v{IDN+4*i}, v7")
    a("s_mov_b64 exec, -1")
    fl = [f"s_lshl_b32 s{t0}, s{sWV}, 11", f"s_add_u32 s{t0}, s{t0}, {WS_CST - WS_WB}", "s_nop 0"]
    for q in range(1, 4):
        a(fl[q-1])
        for i in range(2):
            a(f"v_mov_b32_dpp v{IDN+4*i+q}, v{IDN+4*i+q-1} row_shr:2 row_mask:0xf bank_mask:0xf bound_ctrl:0")
    st("pb2")
    a("s_waitcnt vmcnt(6) lgkmcnt(0)")
    a("s_barrier")
    st("b2")
    for s in range(4):
        for c in range(2):
            a(f"ds_read_b128 {vr(WBQ+4*(4*c+s),4)}, v3 offset:{(8*c+s)*1024}")
    for c in range(2):
        a(f"buffer_load_dwordx4 {vr(CST+4*c,4)}, v4, s[{sWF}:{sWF+3}], s{t0} offen offset:{1024*c}")
    a("s_cmp_lg_u32 s3, 7")
    a("s_cbranch_scc1 K2_NMX")
    a.srd(sMX, 22, NGEMM * 16, WS_PMAX)
    a(f"s_movk_i32 s{t0}, 0x1000")
    for k in range(5):
        so = "0" if k < 4 else f"s{t0}"
        a(f"buffer_load_dwordx4 {vr(MX[k],4)}, v4, s[{sMX}:{sMX+3}], {so} offen offset:{(k & 3) * 1024}")
    a.srd(sMX, 22, NCHUNK * 20, WS_EMAX)
    for k in range(3):
        a(f"buffer_load_dwordx4 {vr(MX[5+k],4)}, v4, s[{sMX}:{sMX+3}], 0 offen offset:{1024*k}")
    a("s_waitcnt vmcnt(14)")
    a("s_branch K2_J3")
    a.label("K2_NMX")
    a("s_waitcnt vmcnt(6)")
    a.label("K2_J3")
    hi()
    st("recl")
    AC = (PF + 8, PF + 9); RK = (PF + 10, PF + 11); SU = (PF + 12, PF + 13); BP = (PF + 14, PF + 15)
    a("v_mov_b32 v6, 1")
    for r in range(2):
        a(f"v_lshrrev_b32 v{AC[r]}, 14, v{R[r]+2}")
    for r in range(2):
        a(f"v_lshl_add_u32 v{AC[r]}, v{AC[r]}, 2, s{sCA}")
    for r in range(2):
        a(f"s_mov_b64 exec, s[{(sM0, sM1)[r]}:{(sM0, sM1)[r]+1}]")
        a(f"ds_add_rtn_u32 v{RK[r]}, v{AC[r]}, v6")
    a("s_mov_b64 exec, -1")
    a(f"v_mov_b32 v7, {MISC}")
    a(f"v_mov_b32 v{Z+4}, s{sTW}")
    a(f"v_lshlrev_b32 v{Z+5}, 2, v1")
    a("s_mov_b64 exec, 1")
    a(f"ds_max_u32 v7, v{Z+4}")
    a("s_mov_b64 exec, -1")
    a(f"v_add_u32 v6, {CNT}, v{Z+5}")
    BX = (SO0, SO0 + 1); EW = (HB, AO)
    a("s_waitcnt lgkmcnt(0)")
    st("pb3")
    a("s_barrier")
    st("b3")
    a(f"ds_read_b32 v{Z+5}, v6")
    a(f"ds_read_b32 v{Z+4}, v7")
    for l in w2_loads(range(0, 2)): a(l)
    for r in range(2):
        a(f"v_and_b32 v{R[r]+2}, 0x3fff, v{R[r]+2}")
    a("s_waitcnt lgkmcnt(1)")
    a(f"v_add_u32 v7, 1, v{Z+5}")
    a("v_and_b32 v7, -2, v7")
    a(f"v_sub_u32 v6, v{OH}, v7")
    a(f"v_cvt_f32_u32 v{Z+5}, v{Z+5}")
    D7 = lambda ctl: a(f"v_add_u32_dpp v7, v7, v7 {ctl}")
    D7("row_shr:1 row_mask:0xf bank_mask:0xf bound_ctrl:0")
    a(f"v_mov_b32 v{Z+6}, {BLKSZ - 512}")
    a(f"v_mov_b32 v{Z+7}, {BLKSZ}")
    a(f"v_mov_b32 v{Z+3}, {BLKSZ - 128}")
    a(f"v_lshl_add_u32 v{BI}, v1, 2, s{sBLK}")
    D7("row_shr:2 row_mask:0xf bank_mask:0xf bound_ctrl:0")
    a(f"v_add_u32 v{BA}, s{sBLK}, v4")
    a(f"v_lshrrev_b32 v{IA}, 3, v1")
    D7("row_shr:4 row_mask:0xf bank_mask:0xf bound_ctrl:0")
    a(f"v_lshl_add_u32 v{IA}, v{IA}, 2, s{sIDX}")
    a("s_waitcnt lgkmcnt(0)")
    D7("row_shr:8 row_mask:0xf bank_mask:0xf bound_ctrl:0")
    a(f"v_readfirstlane_b32 s{t2}, v{Z+4}")
    a(f"v_mov_b32 v{Z+4}, 0x3f80")
    D7("row_bcast:15 row_mask:0xa bank_mask:0xf")
    a("v_add_u32 v6, v6, v7")
    for r in range(2):
        a(f"ds_bpermute_b32 v{BP[r]}, v{AC[r]}, v6")
    for r in range(2):
        a(f"ds_bpermute_b32 v{BX[r]}, v{AC[r]}, v{OX}")
    a(f"v_readlane_b32 s{t0}, v7, 31")
    a(f"v_readlane_b32 s{t1}, v7, 63")
    for l in w2_loads(range(2, 5)): a(l)
    a(f"s_mov_b32 s{sF1}, 0")
    a(f"s_cmp_eq_u32 s{sWIN}, 0")
    a(f"s_cselect_b32 s{sNT}, s{t0}, s{t1}")
    a(f"s_add_u32 s{sNT}, s{sNT}, 31")
    a(f"s_lshr_b32 s{sNT}, s{sNT}, 5")
    a(f"s_max_u32 s{t0}, s{t0}, s{t1}")
    a(f"s_cmp_gt_u32 s{t0}, {MAXT*32}")
    a(f"s_cselect_b32 s{t0}, 0x7fffffff, s{t2}")
    a(f"s_cmp_gt_u32 s{t0}, s{sCAP}")
    a("s_cbranch_scc1 K2_OV")
    a.label("K2_NOOV")
    t = [T1 + k for k in range(8)]
    for r in range(2):
        a(f"s_waitcnt lgkmcnt({3-r})")
        a(f"v_add_u32 v{BP[r]}, v{BP[r]}, v{RK[r]}")
        a(f"v_mad_u32_u16 v{t[r]}, v{BP[r]}, 4, s{sIDX}")
    for r in range(2):
        a(f"s_mov_b64 exec, s[{(sM0, sM1)[r]}:{(sM0, sM1)[r]+1}]")
        if not nogather:
            a(f"ds_write_b32 v{t[r]}, v{R[r]+2}")
    a("s_mov_b64 exec, -1")
    a(f"v_add_f32 v{DEG}, v{DEG}, v{Z+5}")

    def scatter():
        for r in range(2):
            a(f"v_lshl_add_u32 v{SU[r]}, v{AC[r]}, 2, s{sSA}")
            for k in range(2):
                a(f"v_and_b32 v{EW[r]+2*k}, 0xffff, v{R[r]+k}")
                a(f"v_lshrrev_b32 v{EW[r]+2*k+1}, 16, v{R[r]+k}")
        for r in range(2):
            if r == 1:
                a(f"s_cmp_eq_u64 s[{sM1}:{sM1+1}], 0")
                a(f"s_cbranch_scc1 K2_SC{scatter.n}")
            p = BP[r]
            a(f"v_bfe_u32 v{t[0]}, v{p}, 5, 11")
            a(f"v_mad_u32_u24 v{t[2]}, v{t[0]}, v{Z+6}, s{sBLK}")
            a(f"v_mad_u32_u24 v{t[3]}, v{t[0]}, v{Z+7}, v{SU[r]}")
            a(f"v_mad_u32_u16 v{t[2]}, v{p}, 16, v{t[2]}")
            a(f"v_mad_u32_u24 v{t[6]}, v{t[0]}, v{Z+3}, s{sBLK}")
            a(f"v_and_b32 v{t[4]}, 4, v{p}")
            a(f"v_lshrrev_b32 v{t[5]}, 1, v{p}")
            a(f"v_lshl_add_u32 v{t[3]}, v{t[4]}, 7, v{t[3]}")
            a(f"v_mad_u32_u16 v{t[4]}, v{p}, 1, v{t[2]} op_sel:[1,0,0,0]")
            a(f"v_and_or_b32 v{t[3]}, v{t[5]}, 12, v{t[3]}")
            a(f"v_mad_u32_u16 v{t[6]}, v{p}, 4, v{t[6]}")
            a(f"v_and_or_b32 v{t[3]}, v{p}, 2, v{t[3]}")
            a(f"v_mad_u32_u16 v{t[6]}, v{BX[r]}, 1, v{t[6]} op_sel:[1,0,0,0]")
            a(f"s_mov_b64 exec, s[{(sM0, sM1)[r]}:{(sM0, sM1)[r]+1}]")
            a(f"ds_write2_b64 v{t[2]}, {vr(EW[r],2)}, {vr(EW[r],2)} offset0:0 offset1:1")
            a(f"ds_write2_b64 v{t[2]}, {vr(EW[r]+2,2)}, {vr(EW[r]+2,2)} offset0:64 offset1:65")
            a(f"ds_write_b16 v{t[4]}, v{Z+4}")
            a(f"ds_write_b16 v{t[6]}, v{BX[r]} offset:{O_IX}")
            a(f"ds_write_b16 v{t[3]}, v{Z+4} offset:{O_SO}")
            a("s_mov_b64 exec, -1")
        a.label(f"K2_SC{scatter.n}")
        scatter.n += 1
    scatter.n = 1
    a("s_waitcnt vmcnt(5) lgkmcnt(0)")
    st("pb4")
    a("s_barrier")
    st("b4")
    for l in idx_reads(0): a(l)
    a(f"s_cmp_eq_u32 s{sF2}, 0")
    a("s_cbranch_scc1 K2_NF4")
    WB2 = HB
    QE = OPT.get("qe", 2)
    dq = DsTrack(a)
    def qm(s):
        return [mfma(S + 16*c, T0 + 4*s, WBQ + 4*(4*c+s) if s < 4 else WB2 + 4*(4*c+s-4), None if s == 0 else S + 16*c) for c in range(2)]
    a("s_waitcnt lgkmcnt(0)")
    for l in dma(0): a(l)
    scatter()
    for s in range(QE):
        dq(f"ds_read_b128 {vr(T0+4*s,4)}, v{XA+s}", f"x{s}")
    for l in idx_reads(1): dq(l, "w")
    for s in range(4, 8):
        for c in range(2):
            dq(f"ds_read_b128 {vr(WB2+4*(4*c+s-4),4)}, v3 offset:{(8*c+s)*1024}", "w")
    if QE:
        lo()
    for s in range(QE):
        dq.wait(f"x{s}")
        for l in qm(s): a(l)
    for s in range(QE, 8):
        dq(f"ds_read_b128 {vr(T0+4*s,4)}, v{XA+s}", f"x{s}")
    a("s_cmp_lg_u32 s3, 7")
    a("s_cbranch_scc1 K2_NMX2")
    mx = [MX[k] + q for k in range(5) for q in range(4)]
    for k in range(1, 10):
        a(f"v_max3_u32 v{mx[0]}, v{mx[0]}, v{mx[2*k-1]}, v{mx[2*k]}")
    a(f"v_max_u32 v{Z}, v{mx[0]}, v{mx[19]}")
    me = [MX[k] + q for k in range(5, 8) for q in range(4)]
    for k in range(1, 6):
        a(f"v_max3_u32 v{me[0]}, v{me[0]}, v{me[2*k-1]}, v{me[2*k]}")
    a(f"v_max_u32 v{Z+1}, v{me[0]}, v{me[11]}")
    for sh in (1, 2, 4, 8):
        a("s_nop 0")
        for k in range(2):
            a(f"v_max_u32_dpp v{Z+k}, v{Z+k}, v{Z+k} row_shr:{sh} row_mask:0xf bank_mask:0xf bound_ctrl:0")
    for bc, rm in ((15, "0xa"), (31, "0xc")):
        a("s_nop 0")
        for k in range(2):
            a(f"v_max_u32_dpp v{Z+k}, v{Z+k}, v{Z+k} row_bcast:{bc} row_mask:{rm} bank_mask:0xf")
    a(f"v_mov_b32 v7, {MISC + 4}")
    a("s_mov_b32 exec_lo, 0")
    a("s_mov_b32 exec_hi, 0x80000000")
    a(f"ds_write2_b32 v7, v{Z}, v{Z+1} offset0:0 offset1:1")
    a("s_mov_b64 exec, -1")
    a("s_waitcnt lgkmcnt(0)")
    a.label("K2_NMX2")
    a(f"v_mov_b32 v7, {MISC + 4}")
    dq.wait("w")
    a("s_barrier")
    dm = dma(4096)
    if QE < 4:
        for l in dm: a(l)
        lo()
    dq(f"ds_read2_b32 {vr(Z+4,2)}, v7 offset0:0 offset1:1")
    for s in range(QE, 8):
        dq.wait(f"x{s}")
        for c, l in enumerate(qm(s)):
            a(l)
            if QE == 4:
                a(dm[3*(s-4) + 2*c])
    a(f"s_mov_b32 s{sSLOW}, {1 if force_slow else 0}")
    a(f"s_mov_b32 s{sF2}, 0")
    a(f"s_mov_b32 s{sNB}, 1")
    a("s_nop 7")
    for c in range(2):
        q = S + 16*c
        nodes = [r for r in range(16) if r & 3]
        for r in nodes:
            a(f"v_add_f32 v{q+r}, v{q+r}, v{CST+4*c+2}")
        for g in range(4):
            a(f"v_lshlrev_b32 v{q+4*g}, 16, v{CST+4*c+(g>>1)}" if g & 1 == 0 else f"v_and_b32 v{q+4*g}, 0xffff0000, v{CST+4*c+(g>>1)}")
        a(f"v_max_f32 v6, |v{q+nodes[0]}|, |v{q+nodes[1]}|")
        for k in range(2, 12, 2):
            a(f"v_max3_f32 v6, |v{q+nodes[k]}|, |v{q+nodes[k+1]}|, v6")
        for p in range(8):
            a(f"v_cvt_pk_bf16_f32 v{QB+8*c+p}, v{q+2*p}, v{q+2*p+1}")
        if c == 0:
            a("s_waitcnt lgkmcnt(0)")
        a(f"v_fma_f32 v7, v{Z+5}, v{CST+4*c+3}, v{Z+4}")
        a("v_add_f32 v6, v7, v6")
        a(f"v_cmp_nge_f32 vcc, {hex(f32bits(30.0 if OPT.get('quad', 0) else 60.0))}, v6")
        a("s_cmp_lg_u64 vcc, 0")
        a(f"s_cselect_b32 s{sSLOW}, 1, s{sSLOW}")
    a(f"s_cmp_lt_u32 s{sNT}, 2")
    a(f"s_cselect_b32 s{t0}, 1, s{sSLOW}")
    a(f"s_cmp_eq_u32 s{sCAP}, {CAP2}")
    a("s_cbranch_scc1 K2_SLOW0")
    a(f"s_mov_b32 s{sI}, s{sNT}")
    a(f"s_cmp_lg_u32 s{t0}, 0")
    a("s_cbranch_scc1 K2_SLOW")
    for l in ao_reads(0) + idx_reads(2): a(l)
    a("s_waitcnt vmcnt(4)")
    st("loop")
    a.cyc(71)
    for l in pf_reads(0): a(l)
    a("s_waitcnt lgkmcnt(0)")
    for l in zmf(0): a(l)
    for l in dma(0): a(l)
    a(f"s_cmp_lg_u32 s{sWIN}, 0")
    a("s_cbranch_scc1 K2_FA")
    a("s_nop 1")
    fast_loop(a, "B")
    a.label("K2_FA")
    a("s_nop 1")
    fast_loop(a, "A")
    a.label("K2_NF3")
    a("s_waitcnt vmcnt(0) lgkmcnt(0)")
    a("s_barrier")
    a("s_branch K2_J3")
    a.label("K2_NF4")
    a("s_waitcnt lgkmcnt(0)")
    for l in dma(0) + idx_reads(1): a(l)
    scatter()
    a("s_waitcnt lgkmcnt(0)")
    a("s_barrier")
    for l in dma(4096): a(l)
    a("s_branch K2_SLOW")
    a.label("K2_OV")
    a(f"s_cmp_eq_u32 s{sCAP}, {CAP2}")
    a("s_cbranch_scc1 K2_NOOV")
    a(f"s_mov_b32 s{sCAP}, {CAP2}")
    a(f"s_add_u32 s{t2}, s{t2}, {CAP2-1}")
    a(f"s_mul_hi_u32 s{sNB2}, s{t2}, {hex((2**32 + CAP2 - 1)//CAP2)}")
    a("s_waitcnt lgkmcnt(0)")
    a("s_barrier")
    a.label("K2_BATCH")
    a(f"v_mov_b32 v{Z}, 0")
    clear(0, NZ0 + NZ1 + NZ2)
    a(f"v_lshl_add_u32 v{LR}, v1, 2, s{sLIST}")
    a(f"v_add_u32 v{L64}, 64, v1")
    a("s_branch K2_GEN")
    a.label("K2_GEN0")
    a(f"v_readlane_b32 s{sTW}, v{VBASE}, 63")
    a(f"v_sub_u32 v{VBASE}, v{VBASE}, v{VCNT}")
    a.label("K2_GEN")
    a(f"s_add_u32 s{t0}, s{sLO}, s{sCAP}")
    a(f"s_lshl_b32 s{t2}, s{sLO}, 2")
    a(f"s_sub_u32 s{t2}, s{sLIST}, s{t2}")
    a(f"v_max_u32 v6, s{sLO}, v{VBASE}")
    a(f"v_add_u32 v7, v{VBASE}, v{VCNT}")
    a(f"v_min_u32 v7, s{t0}, v7")
    a(f"v_sub_u32 v{LA}, v6, v{VBASE}")
    a(f"v_lshl_add_u32 v{LA}, v{LA}, 5, v{VREC}")
    a("v_sub_u32 v7, v7, v6")
    a(f"v_lshl_add_u32 v6, v6, 2, s{t2}")
    a.label("K2_EXP")
    for j in range(4):
        a(f"v_cmpx_lt_i32 vcc, {j}, v7")
        a(f"ds_write_b32 v6, v{LA} offset:{4*j}")
        a(f"v_add_u32 v{LA}, 32, v{LA}")
    a("v_cmpx_lt_i32 vcc, 4, v7")
    a("v_add_u32 v6, 16, v6")
    a("v_subrev_u32 v7, 4, v7")
    a(f"s_sub_u32 s{t0}, s{sTW}, s{sLO}")
    a(f"s_max_i32 s{t0}, s{t0}, 0")
    a(f"s_min_u32 s{t0}, s{t0}, s{sCAP}")
    a("s_nop 1")
    a("s_cbranch_execnz K2_EXP")
    a("s_branch K2_LISTED")
    a.label("K2_SLOW0")
    a(f"s_mov_b32 s{sNB}, s{sNB2}")
    a.label("K2_SLOW")
    a(f"s_mov_b32 s{sI}, s{sNT}")
    a(f"s_cmp_lg_u32 s{sSINIT}, 0")
    a("s_cbranch_scc1 K2_SL1")
    for l in w2_loads(range(5, 9)): a(l)
    for r in range(32):
        a(f"v_mov_b32 v{S+r}, 0")
    a(f"s_mov_b32 s{sSINIT}, 1")
    a.label("K2_SL1")
    a(f"s_cmp_eq_u32 s{sNT}, 0")
    a("s_cbranch_scc1 K2_BDONE")
    a(f"s_mov_b32 s{t1}, s{sRING}")
    a.label("K2_SLOOP")
    a("s_waitcnt vmcnt(0)")
    for l in pf_reads(0) + ao_reads(0) + [so_read(0, 0)] + idx_reads(2): a(l)
    a("s_waitcnt lgkmcnt(0)")
    for l in dma(0): a(l)
    for c in range(2):
        for l in zmf(c): a(l)
        a("s_nop 15")
        for l in exps(c): a(l)
        for r in range(16): a(f"v_add_f32 v{DD+r}, 1.0, v{DD+r}")
        for r in range(16): a(f"v_rcp_f32 v{DD+r}, v{DD+r}")
        for j in range(8):
            a(f"v_mul_f32 v{HF+j}, v{TT[c]+2*j}, v{DD+2*j}")
        for j in range(8):
            a(f"v_fma_f32 v{HF+j}, v{TT[c]+2*j+1}, v{DD+2*j+1}, v{HF+j}")
        for l in cvts(): a(l)
        a("s_nop 1")
        a(ssmf(c, 0))
    for k in range(4):
        a(f"v_xor_b32 v{PA+k}, 0x1000, v{PA+k}")
    a(f"s_xor_b32 s{sRING}, s{sRING}, 0x1000")
    a(f"v_add_u32 v{BA}, {BLKSZ}, v{BA}")
    a(f"v_add_u32 v{BI}, {BLKSZ}, v{BI}")
    a(f"v_add_u32 v{IA}, 128, v{IA}")
    a(f"s_sub_u32 s{sI}, s{sI}, 1")
    a(f"s_cmp_lg_u32 s{sI}, 0")
    a("s_cbranch_scc1 K2_SLOOP")
    a(f"s_xor_b32 s{t0}, s{t1}, s{sRING}")
    a(f"s_mov_b32 s{sRING}, s{t1}")
    for k in range(4):
        a(f"v_xor_b32 v{PA+k}, s{t0}, v{PA+k}")
    a.label("K2_BDONE")
    a(f"s_add_u32 s{sLO}, s{sLO}, s{sCAP}")
    a(f"s_sub_u32 s{sNB}, s{sNB}, 1")
    a(f"s_cmp_eq_u32 s{sNB}, 0")
    a("s_cbranch_scc1 K2_EPI")
    a("s_waitcnt vmcnt(0) lgkmcnt(0)")
    a("s_barrier")
    a("s_branch K2_BATCH")
    a.label("K2_EPI")
    st("epi")
    a.cyc(81)
    if diag: a("s_sub_u32 s71, s81, s71")
    a(f"s_mov_b32 s{t2}, {hex(f32bits(-LN2))}")
    a(f"v_add_u32 v{XWA}, s{sRING}, v4")
    a("s_waitcnt vmcnt(0)")
    for k in range(4):
        for p in range(4*k, 4*k + 4):
            a(f"v_cvt_pk_bf16_f32 v{DD+p}, v{S+2*p}, v{S+2*p+1}")
        a(f"ds_write_b128 v{XWA}, {vr(DD+4*k,4)} offset:{1024*k}")
    pre = epi_prelude()
    for l in pre: a(l)
    a("s_waitcnt lgkmcnt(0)")
    ACC, BIAS = T0, T1
    for tl in range(3):
        a(mfma16(BIAS + 4*tl, W2R + 32, DG + 2*tl, None))
    a("s_barrier")
    st("epb")
    XB = S
    jobs = [(ct, tl) for ct in range(8) for tl in range(3)]
    def xr(k):
        ct, tl = jobs[k]
        off = (ct >> 1) * 8192 + (ct & 1) * 2048 + (32768 if tl == 1 else 0)
        return f"ds_read_b128 {vr(XB+4*(k&7),4)}, v{RR if tl == 2 else RA} offset:{off}"
    for k in range(8): a(xr(k))
    for k, (ct, tl) in enumerate(jobs):
        a(f"s_waitcnt lgkmcnt({min(7, 23-k)})")
        a(mfma16(ACC + 4*tl, W2R + 4*ct, XB + 4*(k & 7), None if ct == 0 else ACC + 4*tl))
        if k + 8 < 24:
            a(xr(k + 8))
    a("s_nop 3")
    for tl in range(3):
        for r in range(4):
            a(f"v_fma_f32 v{ACC+4*tl+r}, v{ACC+4*tl+r}, s{t2}, v{BIAS+4*tl+r}")
        for p in range(2):
            a(f"v_cvt_pk_bf16_f32 v{DD+2*tl+p}, v{ACC+4*tl+2*p}, v{ACC+4*tl+2*p+1}")
        if tl == 2:
            a(f"s_mov_b64 exec, s[{sRM}:{sRM+1}]")
        a(f"buffer_store_dwordx2 {vr(DD+2*tl,2)}, v{SR if tl == 2 else SA}, s[{sOUT}:{sOUT+3}], s{sOB if tl == 1 else sOA} offen {OPT.get('of', '')}")
    if diag:
        st("end")
        a("s_waitcnt vmcnt(0)")
        st("drained")
        if OPT.get("trace"):
            a("s_mov_b64 exec, -1")
            a("v_writelane_b32 v186, s81, 20")
            a("s_sub_u32 s90, s81, s71")
            a("v_writelane_b32 v186, s90, 21")
            a(f"v_writelane_b32 v186, s{sNT}, 22")
            a.srd(84, 22, 0x80000, WS_STAMP + 0x100000)
            a("s_lshl_b32 s90, s89, 3")
            a("s_add_u32 s90, s90, s3")
            a("s_lshl_b32 s90, s90, 8")
            a("v_lshlrev_b32 v6, 2, v1")
            a("buffer_store_dword v186, v6, s[84:87], s90 offen")
        if "smap" not in OPT: a("s_mov_b32 s100, s71")
        a("s_lshl_b32 s89, s89, 1")
        a(f"s_add_u32 s89, s89, s{sWIN}")
        a.stamp_flush(22, 1, 89, sWV)
    if OPT.get("lite"):
        a("s_waitcnt vmcnt(0)")
        a("s_memrealtime s[90:91]")
        a("s_mov_b64 exec, 1")
        a.srd(84, 22, 0x80000, WS_STAMP + 0x80000)
        a("s_lshl_b32 s88, s2, 3")
        a("s_add_u32 s88, s88, s3")
        a("s_lshl_b32 s88, s88, 2")
        a("v_mov_b32 v0, 0")
        a("s_waitcnt lgkmcnt(0)")
        a("v_mov_b32 v1, s90")
        a("buffer_store_dword v1, v0, s[84:87], s88 offen")
    a.label("K2_END")
    a("s_endpgm")
    return a.text()
```

```python
from common import *

K1_LDS = 65536
K1_VGPR = 128
K1_BLOCK = 320


SF = {"p": "", "r": ""}


def gen_k1(order=("sort", "gemm"), diag=False, pf="", rf="", cpf=16, xc=True, wf="", wfirst=False, slast=False, sprio=False, elate=1):
    SF["p"], SF["r"] = pf, rf
    a = Asm()
    a.diag = diag
    NSW = 128 if xc else NCHUNK
    SF["xc"] = xc
    SF["w"] = wf
    SF["wfirst"] = wfirst
    SF["elate"] = elate
    total = NSW + NGEMMW
    a(f"s_cmp_ge_u32 s2, {total}")
    a("s_cbranch_scc1 K1_END")
    a.stamp(0)
    a.cyc(88)
    if diag:
        a("s_mov_b32 s89, s2")
        for k in range(1, 10): a(f"s_mov_b32 s{92+k}, 0")
    a("s_load_dwordx16 s[4:19], s[0:1], 0")
    a("s_load_dwordx2 s[20:21], s[0:1], 80")
    a("v_lshrrev_b32 v2, 6, v0")
    a("v_and_b32 v1, 63, v0")
    a("v_readfirstlane_b32 s3, v2")
    if cpf:
        a(f"s_cmp_ge_u32 s2, {cpf}")
        a("s_cbranch_scc1 K1_NOPF")
        a("s_getpc_b64 s[60:61]")
        a.label("K1_PC")
        a("s_mov_b32 s62, K2_END-K1_PC")
        a("s_mov_b32 s63, 0x00020000")
        a("v_lshlrev_b32 v60, 7, v0")
        a("buffer_load_dword v61, v60, s[60:63], 0 offen")
        a.label("K1_NOPF")
    if slast:
        a(f"s_cmp_lt_u32 s2, {NGEMMW}")
        a("s_cbranch_scc1 K1_gemm")
        a(f"s_sub_u32 s2, s2, {NGEMMW}")
    else:
        a(f"s_cmp_ge_u32 s2, {NSW}")
        a("s_cbranch_scc1 K1_gemm")
    if sprio:
        a("s_setprio 2")
    if xc:
        a("s_and_b32 s22, s2, 7")
        a("s_lshl_b32 s22, s22, 4")
        a("s_lshr_b32 s2, s2, 3")
        a("s_add_u32 s2, s2, s22")
        a(f"s_cmp_ge_u32 s2, {NCHUNK}")
        a("s_cbranch_scc1 K1_END")

    def fin():
        if diag:
            a.stamp(8)
            a("s_waitcnt vmcnt(0)")
            a.stamp(9)
            a("s_cmp_eq_u32 s3, 4")
            a("s_cbranch_scc1 K1_END")
            a.stamp_flush(20, 0, 89, 3)
        a("s_endpgm")
    k1_sort(a, 0)
    a("s_branch K1_sort2")
    a.label("K1_gemm")
    if not slast:
        a(f"s_sub_u32 s2, s2, {NSW}")
    k1_gemm(a)
    fin()
    a.label("K1_sort2")
    k1_sort(a, 1)
    fin()
    a.label("K1_prep")
    k1_prep(a)
    a.label("K1_END")
    a("s_endpgm")
    return a.text(), total


def k1_sort_head(a):
    HIST, STRT, RB = 16384, 18432, 0
    DST, SRC, EV, BK, RK = 8, 12, 16, 24, 28
    a("v_lshlrev_b32 v3, 4, v0")
    a("v_lshlrev_b32 v4, 5, v0")
    a("v_lshlrev_b32 v5, 2, v0")
    a("v_mov_b32 v6, 0")
    a(f"s_mul_i32 s22, s2, {CH*4}")
    a(f"s_mul_i32 s23, s2, {CH*8}")
    a(f"ds_write_b32 v5, v6 offset:{HIST}")
    a("s_waitcnt lgkmcnt(0)")
    a.srd(24, 10, E * 4)
    a(f"buffer_load_dwordx4 {vr(DST,4)}, v3, s[24:27], s22 offen")
    a.srd(32, 6, E * 8)
    a.srd(28, 8, E * 4)
    if not SF["elate"]:
        k1_sort_rest(a)


def k1_sort_rest(a):
    DST, SRC, EV, BK, RK = 8, 12, 16, 24, 28
    a(f"buffer_load_dwordx4 {vr(EV,4)}, v4, s[32:35], s23 offen")
    a(f"buffer_load_dwordx4 {vr(EV+4,4)}, v4, s[32:35], s23 offen offset:16")
    a(f"buffer_load_dwordx4 {vr(SRC,4)}, v3, s[28:31], s22 offen")


def k1_sort(a, part):
    HIST, STRT, RB = 16384, 18432, 0
    DST, SRC, EV, BK, RK = 8, 12, 16, 24, 28
    if part == 0:
        return k1_sort_head(a)
    a.srd(40, 20, E * RECB, WS_REC)
    a.srd(44, 20, NBKT * 512, WS_TAB)
    a.srd(48, 20, NCHUNK * 20, WS_EMAX)
    a("v_mov_b32 v32, 1")
    a(f"s_movk_i32 s37, {BM}")
    a("s_mov_b32 s52, 0x7fff7fff")
    a("v_lshlrev_b32 v33, 4, v1")
    a("s_barrier")
    a.stamp(1)
    a(f"s_waitcnt vmcnt({0 if SF['elate'] else 3})")
    if SF["elate"] == 1:
        k1_sort_rest(a)
    a.stamp(2)
    for j in range(4):
        a(f"v_mul_u32_u24 v{BK+j}, s37, v{DST+j}")
    for j in range(4):
        a(f"v_lshrrev_b32 v{BK+j}, 17, v{BK+j}")
    for j in range(4):
        a(f"v_lshlrev_b32 v{BK+j}, 2, v{BK+j}")
        a(f"ds_add_rtn_u32 v{RK+j}, v{BK+j}, v32 offset:{HIST}")
    if SF["elate"] == 2:
        k1_sort_rest(a)
    a("s_waitcnt lgkmcnt(0)")
    a("s_barrier")
    a.stamp(3)
    a(f"ds_read_b128 v[40:43], v33 offset:{HIST}")
    a("s_waitcnt lgkmcnt(0)")
    a("v_add_u32 v50, v40, v41")
    a("v_add_u32 v51, v50, v42")
    a("v_add_u32 v57, v51, v43")
    a("s_nop 1")
    a("v_add_u32_dpp v56, v57, v57 row_shr:1 row_mask:0xf bank_mask:0xf bound_ctrl:0")
    for sh in (2, 4, 8):
        a("s_nop 1")
        a(f"v_add_u32_dpp v56, v56, v56 row_shr:{sh} row_mask:0xf bank_mask:0xf bound_ctrl:0")
    a("s_nop 1")
    a("v_add_u32_dpp v56, v56, v56 row_bcast:15 row_mask:0xa bank_mask:0xf")
    a("s_nop 1")
    a("v_add_u32_dpp v56, v56, v56 row_bcast:31 row_mask:0xc bank_mask:0xf")
    a("v_sub_u32 v48, v56, v57")
    a("v_add_u32 v49, v48, v40")
    a("v_add_u32 v50, v48, v50")
    a("v_add_u32 v51, v48, v51")
    a(f"ds_write_b128 v33, v[48:51] offset:{STRT}")
    for j in range(4):
        a(f"ds_read_b32 v{BK+j}, v{BK+j} offset:{STRT}")
    a("s_waitcnt vmcnt(0)")
    a(f"s_mul_i32 s53, s2, {CH*RECB}")
    for j in range(4):
        a(f"v_lshl_or_b32 v{SRC+j}, v{DST+j}, 14, v{SRC+j}")
    for j in range(4):
        a(f"s_waitcnt lgkmcnt({3 - j + 2*j})")
        a(f"v_add_u32 v{BK+j}, v{BK+j}, v{RK+j}")
        a(f"v_mul_u32_u24 v{BK+j}, {RECB}, v{BK+j}")
        a(f"ds_write2_b32 v{BK+j}, v{EV+2*j}, v{EV+2*j+1} offset0:0 offset1:1")
        a(f"ds_write_b32 v{BK+j}, v{SRC+j} offset:8")
    a("s_waitcnt lgkmcnt(0)")
    a("s_barrier")
    a.stamp(4)
    for j in range(3):
        a(f"ds_read_b128 {vr(68+4*j,4)}, v3 offset:{RB + 5120*j}")
    for j in range(3):
        a(f"s_waitcnt lgkmcnt({2-j})")
        a(f"buffer_store_dwordx4 {vr(68+4*j,4)}, v3, s[40:43], s53 offen {SF['r']}")
        if j < 2:
            a("s_add_u32 s53, s53, 5120")
    a("v_lshlrev_b32 v33, 11, v1")
    a("s_lshl_b32 s53, s2, 2")
    for k in range(4):
        a(f"s_cmp_lg_u32 s3, {k}")
        a(f"s_cbranch_scc1 K1S_t{k}")
        a(f"v_lshl_or_b32 v{40+k}, v{40+k}, 16, v{48+k}")
        a(f"buffer_store_dword v{40+k}, v33, s[44:47], s53 offen offset:{512*k}")
        a.label(f"K1S_t{k}")
    for j in range(8):
        a(f"v_and_b32 v{60+j}, s52, v{EV+j}")
    for st in (1, 2, 4):
        for j in range(0, 8, 2*st):
            a(f"v_pk_max_u16 v{60+j}, v{60+j}, v{60+j+st}")
    a("v_lshlrev_b32 v61, 16, v60")
    a("v_and_b32 v60, 0xffff0000, v60")
    a("v_max_u32 v60, v60, v61")
    dpp_max64(a, 60)
    a("s_mov_b32 exec_lo, 0")
    a("s_mov_b32 exec_hi, 0x80000000")
    a("s_mul_i32 s54, s2, 20")
    a("s_lshl_b32 s55, s3, 2")
    a("s_add_u32 s54, s54, s55")
    a("buffer_store_dword v60, v6, s[48:51], s54 offen")


def k1_prep(a):
    a(f"s_cmp_ge_u32 s2, {NFRAG}")
    a("s_cbranch_scc1 K1_END")
    a("v_and_b32 v3, 31, v1")
    a("v_lshlrev_b32 v3, 1, v3")
    a("v_lshrrev_b32 v4, 5, v1")
    a("v_lshlrev_b32 v5, 4, v1")
    a(f"s_mov_b32 s38, {hex(f32bits(-LOG2E))}")
    a("s_lshl_b32 s22, s2, 10")
    a("s_waitcnt lgkmcnt(0)")
    a.srd(40, 20, NFRAG * 1024, WS_WB)
    a.srd(24, 12, 260 * 512)
    a("s_cmp_ge_u32 s2, 136")
    a("s_cbranch_scc1 K1P_cst")
    a("s_cmp_ge_u32 s2, 64")
    a("s_cbranch_scc1 K1P_w2")
    a("v_lshl_add_u32 v3, v4, 12, v3")
    a("s_lshr_b32 s23, s2, 3")
    a("s_and_b32 s36, s2, 7")
    a("s_lshl_b32 s23, s23, 6")
    a("s_lshl_b32 s36, s36, 13")
    a("s_add_u32 s23, s23, s36")
    a("s_add_u32 s23, s23, 0x10000")
    for j in range(8):
        a(f"buffer_load_ushort v{8+j}, v3, s[24:27], s23 offen offset:{512*j}")
    a("s_barrier")
    a("s_waitcnt vmcnt(0)")
    for j in range(8):
        a(f"v_lshlrev_b32 v{8+j}, 16, v{8+j}")
    for j in range(8):
        a(f"v_mul_f32 v{8+j}, s38, v{8+j}")
    for q in range(4):
        a(f"v_cvt_pk_bf16_f32 v{16+q}, v{8+2*q}, v{9+2*q}")
    a(f"buffer_store_dwordx4 v[16:19], v5, s[40:43], s22 offen {SF['w']}")
    a("s_endpgm")
    a.label("K1P_w2")
    a("s_sub_u32 s37, s2, 64")
    a("s_mul_i32 s23, s37, 57")
    a("s_lshr_b32 s23, s23, 9")
    a("s_mul_i32 s36, s23, 9")
    a("s_sub_u32 s36, s37, s36")
    a("s_lshl_b32 s23, s23, 5")
    a("v_and_b32 v3, 15, v1")
    a("v_lshlrev_b32 v3, 1, v3")
    a("s_cmp_eq_u32 s36, 8")
    a("s_cbranch_scc1 K1P_b2")
    a.srd(24, 16, 256 * 256)
    a("v_lshl_add_u32 v3, v4, 12, v3")
    a("v_bfe_u32 v6, v1, 4, 1")
    a("v_lshl_add_u32 v3, v6, 10, v3")
    a("s_lshl_b32 s36, s36, 13")
    a("s_add_u32 s23, s23, s36")
    for j in range(8):
        a(f"buffer_load_ushort v{8+j}, v3, s[24:27], s23 offen offset:{256*(8*(j>>2)+(j&3))}")
    a("s_barrier")
    a("s_waitcnt vmcnt(0)")
    for q in range(4):
        a(f"v_lshl_or_b32 v{16+q}, v{9+2*q}, 16, v{8+2*q}")
    a(f"buffer_store_dwordx4 v[16:19], v5, s[40:43], s22 offen {SF['w']}")
    a("s_endpgm")
    a.label("K1P_b2")
    a.srd(24, 18, 256)
    a("buffer_load_ushort v8, v3, s[24:27], s23 offen")
    for q in range(4):
        a(f"v_mov_b32 v{16+q}, 0")
    a("s_barrier")
    a("s_waitcnt vmcnt(0)")
    a("s_mov_b64 exec, 0xffff")
    a("v_lshl_or_b32 v16, v8, 16, v8")
    a("v_mov_b32 v17, v8")
    a("s_mov_b64 exec, -1")
    a(f"buffer_store_dwordx4 v[16:19], v5, s[40:43], s22 offen {SF['w']}")
    a("s_endpgm")
    a.label("K1P_cst")
    a("s_sub_u32 s37, s2, 136")
    a("s_lshl_b32 s23, s37, 6")
    a("s_add_u32 s36, s23, 0x20000")
    for k in range(4):
        a(f"buffer_load_ushort v{8+k}, v3, s[24:27], s36 offen offset:{512*k}")
    a("v_mov_b32 v18, 0")
    a("s_barrier")
    a("s_waitcnt vmcnt(0)")
    for k in range(4):
        a(f"v_lshlrev_b32 v{8+k}, 16, v{8+k}")
    for k in range(4):
        a(f"v_mul_f32 v{8+k}, s38, v{8+k}")
    a("v_add_f32 v19, |v8|, |v9|")
    a("v_add_f32 v19, |v10|, v19")
    a("v_add_f32 v19, |v11|, v19")
    for p in range(2):
        a(f"v_cvt_pk_bf16_f32 v{16+p}, v{8+2*p}, v{9+2*p}")
    a(f"buffer_store_dwordx4 v[16:19], v5, s[40:43], s22 offen {SF['w']}")


def k1_gemm(a):
    WL, XL = 0, 32768
    XB, WA, ACC = 32, 64, 96
    a("s_cmp_eq_u32 s3, 4")
    a("s_cbranch_scc1 K1_prep")
    a("s_lshr_b32 s22, s2, 4")
    a("s_and_b32 s23, s2, 7")
    if SF["xc"]:
        a("s_mul_i32 s23, s23, 20")
    else:
        a("s_lshl_b32 s22, s22, 3")
    a("s_add_u32 s22, s22, s23")
    a(f"s_cmp_ge_u32 s22, {NGEMM // 2}")
    a("s_cbranch_scc1 K1_END")
    a("s_bfe_u32 s23, s2, 0x10003")
    a("s_and_b32 s36, s3, 1")
    a("s_lshr_b32 s37, s3, 1")
    a("v_lshrrev_b32 v3, 3, v1")
    a("v_and_b32 v4, 7, v1")
    a("v_lshlrev_b32 v4, 4, v4")
    a("v_lshl_add_u32 v3, v3, 9, v4")
    a("v_and_b32 v4, 16, v1")
    a("v_lshlrev_b32 v4, 2, v4")
    a("v_xor_b32 v3, v3, v4")
    a("v_lshrrev_b32 v5, 4, v1")
    a("v_and_b32 v6, 15, v1")
    a("v_xor_b32 v6, v6, v5")
    a("v_lshlrev_b32 v6, 4, v6")
    a("v_lshl_add_u32 v8, v5, 8, v6")
    for z in range(1, 4):
        a(f"v_xor_b32 v{8+z}, {64*z}, v8")
    a("s_lshl_b32 s38, s37, 15")
    a("s_lshl_b32 s39, s23, 8")
    a("s_add_u32 s38, s38, s39")
    a("s_lshl_b32 s39, s36, 7")
    a("s_add_u32 s38, s38, s39")
    a("s_lshl_b32 s52, s36, 14")
    a("s_lshl_b32 s39, s37, 13")
    a("s_add_u32 s52, s52, s39")
    a("s_lshl_b32 s53, s22, 1")
    a("s_add_u32 s53, s53, s37")
    a("s_lshl_b32 s54, s53, 13")
    a("s_lshl_b32 s39, s36, 12")
    a("s_add_u32 s54, s54, s39")
    a("s_lshl_b32 s55, s37, 13")
    a("s_add_u32 s55, s55, s39")
    def xdma():
        a(f"s_add_u32 m0, s55, {XL}")
        a.srd(24, 4, N * 256)
        for z in range(4):
            a(f"buffer_load_dwordx4 v{8+z}, s[24:27], s54 offen offset:{1024*z} lds")
    a("v_lshrrev_b32 v12, 5, v1")
    a("s_lshl_b32 s58, s23, 8")
    a("s_lshl_b32 s39, s36, 7")
    a("s_add_u32 s58, s58, s39")
    a("s_waitcnt lgkmcnt(0)")
    if not SF["wfirst"]:
        xdma()
    a.srd(28, 12, 260 * 512)
    for z in range(8):
        a("s_mov_b32 m0, s52")
        a("s_add_u32 s52, s52, 1024")
        a("buffer_load_dwordx4 v3, s[28:31], s38 offen lds")
        a("s_add_u32 s38, s38, 4096")
    if SF["wfirst"]:
        xdma()
    a.srd(40, 20, N * 512, WS_P)
    a.srd(44, 20, NGEMM * 16, WS_PMAX)
    a("v_and_b32 v13, 31, v1")
    a("v_bfe_u32 v14, v1, 2, 2")
    a("v_lshl_add_u32 v14, v12, 3, v14")
    a("v_lshlrev_b32 v14, 7, v14")
    a("v_and_b32 v15, 3, v1")
    a("v_lshl_add_u32 v14, v15, 3, v14")
    a("v_bfe_u32 v15, v1, 4, 1")
    a("v_lshl_add_u32 v14, v15, 5, v14")
    a("v_bfe_u32 v15, v1, 3, 1")
    a("v_lshl_add_u32 v14, v15, 6, v14")
    a("s_lshl_b32 s39, s36, 14")
    a("v_add_u32 v14, s39, v14")
    a("v_xor_b32 v26, 64, v14")
    a("v_and_b32 v15, 15, v1")
    a("v_xor_b32 v15, v15, v12")
    a("v_lshlrev_b32 v15, 4, v15")
    a("v_lshl_add_u32 v15, v13, 8, v15")
    a("s_lshl_b32 s39, s37, 13")
    a(f"s_add_u32 s39, s39, {XL}")
    a("v_add_u32 v16, s39, v15")
    for s in range(1, 8):
        a(f"v_xor_b32 v{16+s}, {32*s}, v16")
    a("v_and_b32 v27, 7, v1")
    a("v_lshlrev_b32 v27, 4, v27")
    a("v_lshl_add_u32 v27, v13, 7, v27")
    a("v_lshl_add_u32 v27, v12, 3, v27")
    a("s_lshl_b32 s39, s3, 12")
    a("s_add_u32 s39, s39, 49152")
    a("v_add_u32 v27, s39, v27")
    a("v_lshl_add_u32 v28, v1, 4, s39")
    a("v_lshrrev_b32 v24, 3, v1")
    a("v_and_b32 v25, 7, v1")
    a("v_xor_b32 v25, v25, v24")
    a("v_lshlrev_b32 v25, 4, v25")
    a("v_lshl_add_u32 v24, v24, 9, v25")
    a("s_lshl_b32 s56, s53, 14")
    a("s_lshl_b32 s39, s23, 8")
    a("s_add_u32 s56, s56, s39")
    a("s_lshl_b32 s39, s36, 7")
    a("s_add_u32 s56, s56, s39")
    a(f"s_mov_b32 s57, {hex(f32bits(-LOG2E))}")
    a("s_add_u32 s62, s14, s58")
    a("s_addc_u32 s63, s15, 0")
    a("s_load_dwordx16 s[64:79], s[62:63], 0")
    a("s_load_dwordx16 s[4:19], s[62:63], 64")
    a("v_mov_b32 v31, 0xffff0000")
    a("s_waitcnt lgkmcnt(0)")
    for h in range(2):
        a("s_mov_b32 exec_lo, " + ("-1" if h == 0 else "0"))
        a("s_mov_b32 exec_hi, " + ("0" if h == 0 else "-1"))
        for T in range(2):
            for g in range(4):
                for p in range(2):
                    sr_ = (64, 4)[T] + 4*g + 2*h + p
                    a(f"v_lshlrev_b32_e64 v{ACC+16*T+4*g+2*p}, 16, s{sr_}")
                    a(f"v_and_b32 v{ACC+16*T+4*g+2*p+1}, s{sr_}, v31")
    a("s_mov_b64 exec, -1")
    a.stamp(1)
    a("s_waitcnt vmcnt(0)")
    a.stamp(2)
    a("s_barrier")
    a.stamp(3)
    d = DsTrack(a)
    def wread(k):
        T, s = k >> 3, k & 7
        for i in range(2):
            d(f"ds_read_b64_tr_b16 {vr(WA+(k&7)*4+2*i,2)}, v{(14, 26)[T]} offset:{16*s*128+4*i*128}", f"w{k}")
    def post(T):
        P = [f"v_mul_f32 v{ACC+16*T+r}, s57, v{ACC+16*T+r}" for r in range(16)]
        for g in range(4):
            P.append(f"v_xor_b32 v{29+(g&1)}, {16*(4*T+g)}, v27")
            for p in range(2):
                P.append(f"v_cvt_pk_bf16_f32 v{PK+2*g+p}, v{ACC+16*T+4*g+2*p}, v{ACC+16*T+4*g+2*p+1}")
            P.append(f"ds_write_b64 v{29+(g&1)}, {vr(PK+2*g,2)}")
        return P
    PK = 8
    for s in range(4):
        d(f"ds_read_b128 {vr(XB+4*s,4)}, v{16+s}", f"x{s}")
        wread(s)
    p0 = post(0)
    for k in range(16):
        T, s = k >> 3, k & 7
        d.wait(f"w{k}", f"x{s}")
        a(mfma(ACC + 16*T, WA + (k & 7)*4, XB + 4*s, ACC + 16*T))
        if k + 4 < 8:
            d(f"ds_read_b128 {vr(XB+4*(k+4),4)}, v{16+k+4}", f"x{k+4}")
        if k + 4 < 16:
            wread(k + 4)
        if k >= 11:
            take = p0[:7]; p0 = p0[7:]
            for l in take: d(l)
    a.stamp(4)
    a(f"v_max_f32 v25, |v{ACC}|, |v{ACC+1}|")
    for r in range(2, 16, 2):
        a(f"v_max3_f32 v25, |v{ACC+r}|, |v{ACC+r+1}|, v25")
    a("s_nop 1")
    for l in post(1): a(l)
    for q in range(4):
        a(f"ds_read_b128 {vr(XB+4*q,4)}, v28 offset:{1024*q}")
    for r in range(16, 32, 2):
        a(f"v_max3_f32 v25, |v{ACC+r}|, |v{ACC+r+1}|, v25")
    for q in range(4):
        a(f"s_waitcnt lgkmcnt({3-q})")
        a(f"buffer_store_dwordx4 {vr(XB+4*q,4)}, v24, s[40:43], s56 offen {SF['p']}")
        if q < 3:
            a("s_add_u32 s56, s56, 4096")
    dpp_max64(a, 25)
    a("s_lshl_b32 s39, s22, 1")
    a("s_add_u32 s39, s39, s23")
    a("s_lshl_b32 s39, s39, 4")
    a("s_lshl_b32 s36, s3, 2")
    a("s_add_u32 s39, s39, s36")
    a("v_mov_b32 v26, 0")
    a("s_mov_b32 exec_lo, 0")
    a("s_mov_b32 exec_hi, 0x80000000")
    a("buffer_store_dword v25, v26, s[44:47], s39 offen")
```

```python
from common import *

MAXT = 13
BLKSZ = 2176
O_IX, O_SO = 1024, 1152
BLK = 0
BLKW = MAXT * BLKSZ
CNT = BLK + 2 * BLKW
MISC = CNT + 256
IDX = MISC + 256
IDXW = MAXT * 128
LIST = IDX + 2 * IDXW
XW = LIST + 4096
WBS = XW + 10240
RING0 = 98304
K2_LDS = RING0 + 65536
assert CNT % 256 == 0 and XW % 256 == 0 and WBS + 16384 <= RING0
CAP1, CAP2 = 128, 48
PADIDX = N
K2_BLOCK = 512

IDN, QB, S, T0, T1, DD, MM, NN, HF, HB = 8, 16, 32, 64, 80, 96, 112, 120, 128, 136
PF, AO, SO0, IX, PA, BA, IA, DEG = 140, 156, 164, 168, 176, 180, 181, 182
VBASE, VCNT, VREC = 183, 184, 185
BI = 5
W2R = 188
WBQ = 224
SO1 = 224
K2_VGPR = 256
TT = (T0, T1)
SO = (SO0, SO1)

sTAB, sREC, sP, sX, sWF, sOUT, sMX = 24, 28, 32, 36, 40, 44, 48
sWIN, sWV, sN0, sNA, sNW, sNB_ = 52, 53, 54, 55, 56, 57
sTW, sLO, sCAP, sNB, sNT, sI, sRING = 58, 59, 60, 61, 62, 63, 64
sF1, sF2, sSLOW, sSINIT, sBLK, sIDX = 65, 66, 67, 68, 69, 70
sM0, sM1 = 72, 74
sLIST, sCA, sSA, sW2, sNB2, sWBO = 6, 7, 8, 9, 10, 11
t0, t1, t2, t3 = 76, 77, 78, 79

OPT = dict()


def dma(stage_off):
    out = []
    for q in range(4):
        out.append(f"s_add_u32 m0, s{sRING}, {stage_off + 1024*q}")
        out.append("s_nop 0")
        out.append(f"buffer_load_dwordx4 {vr(IX+2*q,2)}, s[{sP}:{sP+3}], 0 idxen offen lds")
    return out


def idx_reads(tile_off):
    return [f"ds_read_b32 v{IX+2*q}, v{IA} offset:{tile_off*128 + 32*q}" for q in range(4)]


def pf_reads(stage):
    return [f"ds_read_b128 {vr(PF+4*k,4)}, v{PA+k} offset:{stage*4096}" for k in range(4)]


def ao_reads(tile_off):
    return [f"ds_read_b128 {vr(AO,4)}, v{BA} offset:{tile_off*BLKSZ}",
            f"ds_read_u16 v{AO+4}, v{BI} offset:{tile_off*BLKSZ + O_IX}"]


def so_read(tile_off, buf):
    return f"ds_read_b128 {vr(SO[buf],4)}, v{BA} offset:{tile_off*BLKSZ + O_SO}"


def zmf(c):
    t = TT[c]
    return [mfma(t, PF + 8*c, IDN, None), mfma(t, PF + 8*c + 4, IDN + 4, t),
            f"v_smfmac_f32_32x32x32_bf16 {vr(t,16)}, {vr(AO,4)}, {vr(QB+8*c,8)}, v{AO+4}"]


def ssmf(c, buf, first=False):
    return mfma(S + 16*c, HB, SO[buf], None if first else S + 16*c)


def cvts():
    return [f"v_cvt_pk_bf16_f32 v{HB+p}, v{HF+2*p}, v{HF+2*p+1}" for p in range(4)]


def exps(c):
    return [f"v_exp_f32 v{DD+r}, v{TT[c]+r}" for r in range(16)]


RQ = 244


def rcps():
    if OPT.get("quad", 0):
        return [f"v_rcp_f32 v{RQ+r}, v{RQ+r}" for r in range(4)]
    return [f"v_rcp_f32 v{MM+r}, v{MM+r}" for r in range(8)]


def fms():
    if OPT.get("quad", 0):
        return ([f"v_mul_f32 v{HF+r}, v{MM+(r^1)}, v{RQ+(r>>1)}" for r in range(8)]
                + [f"v_mul_f32 v{HF+r}, v{NN+r}, v{HF+r}" for r in range(8)])
    return [f"v_mul_f32 v{HF+r}, v{NN+r}, v{MM+r}" for r in range(8)]


def prun(c, fm=True):
    t = TT[c]
    P = fms() if fm else []
    if OPT.get("p5"):
        P += [f"v_add_f32 v{DD+r}, 1.0, v{DD+r}" for r in range(16)]
        P += [f"v_mul_f32 v{MM+j}, v{DD+2*j}, v{DD+2*j+1}" for j in range(8)]
        P += [f"v_mul_f32 v{NN+j}, v{t+2*j}, v{DD+2*j+1}" for j in range(8)]
        P += [f"v_fma_f32 v{NN+j}, v{t+2*j+1}, v{DD+2*j}, v{NN+j}" for j in range(8)]
        return P
    P += [f"v_add_f32 v{DD+2*j+1}, 1.0, v{DD+2*j+1}" for j in range(8)]
    P += [f"v_fma_f32 v{NN+j}, v{t+2*j+1}, v{DD+2*j}, v{t+2*j+1}" for j in range(8)]
    P += [f"v_fma_f32 v{MM+j}, v{DD+2*j}, v{DD+2*j+1}, v{DD+2*j+1}" for j in range(8)]
    P += [f"v_fmac_f32 v{NN+j}, v{t+2*j}, v{DD+2*j+1}" for j in range(8)]
    if OPT.get("quad", 0):
        P += [f"v_mul_f32 v{RQ+j}, v{MM+2*j}, v{MM+2*j+1}" for j in range(4)]
    return P


def weave(base, inserts):
    out = []
    ins = sorted(inserts, key=lambda x: x[0])
    k = 0
    for i, l in enumerate(base):
        while k < len(ins) and ins[k][0] <= i:
            out += ins[k][1]; k += 1
        out.append(l)
    while k < len(ins):
        out += ins[k][1]; k += 1
    return out


def trun(c, par, stage, role):
    z = zmf(1 - c)
    late = role == "B" and c == 1
    w = ["s_waitcnt lgkmcnt(0)"] if late else []
    if stage == 0:
        base = exps(c)
        pos = [0, 5, 10]
    elif stage == 1:
        base = exps(c) + rcps()
        pos = [10, 15, 20] if late else [0, 6, 12]
    else:
        base = cvts() + exps(c) + rcps()
        pos = [12, 17, 22, 6] if late else [0, 7, 13, 20]
    ins = [(pos[0], w + [z[0]])] + [(pos[k], [z[k]]) for k in (1, 2)]
    if stage >= 2:
        ins.append((pos[3], [ssmf(c, par ^ 1, stage < 4)]))
    return [f"s_setprio {2 if role == 'A' else 1}"] + weave(base, ins) + ["s_setprio 0"]


def w2_loads(fs):
    out = []
    for f in fs:
        if f in (4, 8):
            out.append(f"s_add_u32 s{t3}, s{sW2}, {1024*f}")
        so = sW2 if f < 4 else t3
        out.append(f"buffer_load_dwordx4 {vr(W2R+4*f,4)}, v4, s[{sWF}:{sWF+3}], s{so} offen offset:{(f & 3) * 1024}")
    return out


def blk1(par, role, vm=4, w2=()):
    nst = (par + 1) & 1
    pf, ao = pf_reads(nst), ao_reads(par + 1)
    out = [f"s_waitcnt vmcnt({vm})"] + pf[:2] + ao + pf[2:] + idx_reads(par + 3) + [so_read(par, par)] + w2_loads(w2)
    return out + (["s_waitcnt lgkmcnt(0)"] if role == "A" else [])


def blk2(par, role="B"):
    nst = (par + 1) & 1
    tr = OPT.get("trace")
    lim = f"s{sSW}" if role == "A" and OPT.get("sw", 1) else "0"
    return (dma(nst * 4096) + (["s_memtime s[90:91]"] if tr else [])
            + [f"s_sub_u32 s{sI}, s{sI}, 1", f"s_cmp_le_u32 s{sI}, {lim}"]
            + (["s_waitcnt lgkmcnt(0)", f"s_mov_b32 m0, s{sI}", "v_writelane_b32 v186, s90, m0"] if tr else []))


INC = [f"v_add_u32 v{BA}, {2*BLKSZ}, v{BA}", f"v_add_u32 v{BI}, {2*BLKSZ}, v{BI}", f"v_add_u32 v{IA}, 256, v{IA}"]


def drain(par):
    return (cvts() + rcps()[:2] + [ssmf(0, par)] + rcps()[2:] + ["s_nop 0"] + fms() + cvts() + ["s_nop 1", ssmf(1, par)])


DG, RA, RR, SA, SR, XWA = 228, 236, 237, 238, 239, 240
sRM, sOA, sOB, sSW, sS = 12, 14, 15, 16, 17


def epi_prelude():
    t = [PF + k for k in range(12)]
    hi, p0, p1, n, kg, i0, i1, i2 = t[:8]
    head = [f"v_lshrrev_b32 v{kg}, 4, v1", f"v_and_b32 v{n}, 15, v1", f"s_sub_u32 s{t0}, s{sS}, 16",
            f"v_lshl_add_u32 v{RA}, v{kg}, 8, v4", f"v_cmp_le_u32 vcc, s{t0}, v{n}", f"v_add_u32 v{RA}, {RING0}, v{RA}",
            f"v_add_u32 v{RR}, 256, v{RA}", "s_mov_b64 exec, vcc", f"v_add_u32 v{RR}, 0x8000, v{RA}", "s_mov_b64 exec, -1"]
    L = [f"v_and_b32 v{hi}, 0xffff0000, v{DEG}", f"v_lshlrev_b32 v{i0}, 2, v{n}", f"v_sub_f32 v{p1}, v{DEG}, v{hi}",
         f"v_add_u32 v{i1}, 64, v{i0}", f"v_and_b32 v{p0}, 0xffff0000, v{p1}", f"v_add_u32 v{i2}, 128, v{i0}",
         f"v_sub_f32 v{p1}, v{p1}, v{p0}", f"v_lshrrev_b32 v{hi}, 16, v{hi}", f"v_or_b32 v{p0}, v{p0}, v{hi}",
         f"v_lshrrev_b32 v{p1}, 16, v{p1}", f"v_mov_b32 v{DG+6}, 0", f"v_mov_b32 v{DG+7}, 0", f"v_lshlrev_b32 v{SA}, 3, v{kg}"]
    for tl, ix in enumerate((i0, i1, i2)):
        L += [f"ds_bpermute_b32 v{DG+2*tl}, v{ix}, v{p0}", f"ds_bpermute_b32 v{DG+2*tl+1}, v{ix}, v{p1}"]
    L += [f"v_lshl_add_u32 v{SA}, v{n}, 8, v{SA}", f"s_sub_u32 s{t0}, s{sNB_}, 32",
          f"v_cmp_gt_u32 s[{sRM}:{sRM+1}], s{t0}, v{n}", f"s_lshl_b32 s{sOA}, s{sN0}, 8", f"s_lshl_b32 s{t0}, s3, 5",
          f"s_add_u32 s{sOA}, s{sOA}, s{t0}", f"s_add_u32 s{sOB}, s{sOA}, 4096", f"s_add_u32 s{t1}, s{sOA}, 8192"]
    return head, L


def fast_loop(a, role):
    L = "K2" + role
    em = lambda ls: [a(l) for l in ls]
    A = role == "A"
    T = lambda c, par, stage: trun(c, par, stage, role)
    def unit(T_, blk, P):
        em(T_)
        em(blk + P if A else P + blk)
    unit(T(0, 0, 0), blk1(0, role, 4, (5, 6)), prun(0, False))
    unit(T(1, 0, 1), blk2(0), prun(1))
    unit(T(0, 1, 2), blk1(1, role, 6, (7, 8)), prun(0))
    if A:
        em(T(1, 1, 3)); em(blk2(1, role))
        a(f"s_cbranch_scc1 {L}_EXIT1")
        a.raw(".p2align 6")
        a.label(f"{L}_LOOP")
        em(INC + prun(1))
        unit(T(0, 0, 4), blk1(0, role), prun(0))
        em(T(1, 0, 4)); em(blk2(0, role))
        a(f"s_cbranch_scc1 {L}_EXIT0")
        em(prun(1))
        unit(T(0, 1, 4), blk1(1, role), prun(0))
        em(T(1, 1, 4)); em(blk2(1, role))
        a(f"s_cbranch_scc0 {L}_LOOP")
    else:
        unit(T(1, 1, 3), blk2(1), prun(1))
        a(f"s_cbranch_scc1 {L}_EXIT1")
        a.raw(".p2align 6")
        a.label(f"{L}_LOOP")
        unit(T(0, 0, 4), blk1(0, role), INC + prun(0))
        unit(T(1, 0, 4), blk2(0), prun(1))
        a(f"s_cbranch_scc1 {L}_EXIT0")
        a.label(f"{L}_MID")
        unit(T(0, 1, 4), blk1(1, role), prun(0))
        unit(T(1, 1, 4), blk2(1), prun(1))
        a(f"s_cbranch_scc0 {L}_LOOP")
    for par in (1, 0):
        a.label(f"{L}_EXIT{par}")
        if A:
            em(prun(1))
            if OPT.get("sw", 1):
                a(f"s_cmp_lg_u32 s{sI}, 0")
                a(f"s_cbranch_scc1 K2B_{'LOOP' if par else 'MID'}")
        em(drain(par))
        a("s_branch K2_EPI")


def gen_k2(force_slow=False, diag=False, nogather=False, **opt):
    OPT.clear(); OPT.update(opt)
    a = Asm()
    a.diag = diag
    smap = OPT.get("smap", dict(start=0, tab=1, rec=2, recl=3, b4=4, loop=5, epi=6, epb=7, end=8, drained=9))
    st = lambda name: a.stamp(smap[name]) if name in smap else None
    hi = lambda: a("s_setprio 3") if OPT.get("prio", True) else None
    lo = lambda: a("s_setprio 0") if OPT.get("prio", True) else None
    a(f"s_cmp_ge_u32 s2, {NBKT}")
    a("s_cbranch_scc1 K2_END")
    st("start")
    a.cyc(88)
    if diag:
        a("s_mov_b32 s89, s2")
    a("s_load_dwordx2 s[22:23], s[0:1], 80")
    a("s_load_dwordx2 s[4:5], s[0:1], 0")
    a("s_load_dwordx2 s[20:21], s[0:1], 64")
    Z = HF
    NZ0, NZ1, NZ2 = OPT.get("nz", (14, 14, 0))
    NLINE = (MISC + 256) // 256
    NZ = (NLINE + 7) // 8
    def clear(k0, k1):
        if k0 < k1:
            a("s_lshl_b32 m0, s3, 8")
            a("s_nop 0")
        for k in range(k0, k1):
            if k == NZ - 1:
                a(f"s_min_u32 s{t0}, s3, {NLINE - 1 - 8*k}")
                a(f"s_lshl_b32 m0, s{t0}, 8")
                a("s_nop 0")
            a(f"ds_write_addtid_b32 v{Z} offset:{2048*k}")
    LA = AO
    LR, L64, Q1 = AO + 4, AO + 5, AO + 6
    CST = MM
    MX = [QB, QB + 4, QB + 8, QB + 12, NN, NN + 4, W2R + 28, W2R + 32]
    OH, OX, BIL = 186, 187, AO + 7
    XA = W2R + 20
    a("v_lshrrev_b32 v2, 6, v0")
    a("v_and_b32 v1, 63, v0")
    a("v_readfirstlane_b32 s3, v2")
    a(f"v_mov_b32 v{Z}, 0")
    clear(0, NZ0)
    a(f"s_and_b32 s{t0}, s2, 7")
    a("s_lshr_b32 s2, s2, 3")
    a(f"s_lshl_b32 s{t0}, s{t0}, 5")
    a(f"s_add_u32 s2, s2, s{t0}")
    a(f"s_lshr_b32 s{sWIN}, s3, 2")
    a("v_lshrrev_b32 v3, 2, v0")
    a("v_lshlrev_b32 v7, 2, v3")
    a(f"v_mov_b32 v{VCNT}, 0")
    a(f"v_cmp_gt_u32 vcc, {NCHUNK}, v3")
    a(f"s_lshl_b32 s{t3}, s2, 9")
    a(f"s_mov_b32 s{sTAB+2}, {hex(NBKT * 512)}")
    a(f"s_mov_b32 s{sTAB+3}, 0x00020000")
    a(f"s_and_b32 s{sWV}, s3, 3")
    a(f"s_lshl_b32 s{t0}, s2, 17")
    a(f"s_add_u32 s{t0}, s{t0}, {BM-1}")
    a(f"s_add_u32 s{t2}, s{t0}, 0x20000")
    a(f"s_mul_hi_u32 s{sN0}, s{t0}, {hex(START_MAGIC)}")
    a(f"s_mul_hi_u32 s{t2}, s{t2}, {hex(START_MAGIC)}")
    a(f"s_lshr_b32 s{sN0}, s{sN0}, {START_SH}")
    a(f"s_lshr_b32 s{t2}, s{t2}, {START_SH}")
    a(f"s_min_u32 s{t2}, s{t2}, {N}")
    a(f"s_sub_u32 s{sNB_}, s{t2}, s{sN0}")
    a(f"s_lshl_b32 s{sWBO}, s3, 13")
    a(f"s_add_u32 s{sRING}, s{sWBO}, {RING0}")
    a("s_mov_b64 exec, vcc")
    a("s_waitcnt lgkmcnt(0)")
    a(f"s_add_u32 s{sTAB}, s22, {hex(WS_TAB)}")
    a(f"s_addc_u32 s{sTAB+1}, s23, 0")
    a(f"buffer_load_dword v{VCNT}, v7, s[{sTAB}:{sTAB+3}], s{t3} offen")
    a("s_mov_b64 exec, -1")
    clear(NZ0, NZ0 + NZ1)
    a("v_lshrrev_b32 v5, 4, v1")
    a("v_and_b32 v6, 15, v1")
    a("v_xor_b32 v6, v6, v5")
    a(f"s_lshl_b32 s{t1}, s{sWV}, 2")
    a(f"v_xor_b32 v6, s{t1}, v6")
    a("v_lshlrev_b32 v6, 4, v6")
    a("v_lshl_add_u32 v6, v5, 8, v6")
    a("v_lshlrev_b32 v4, 4, v1")
    a(f"s_lshl_b32 s{t1}, s{sN0}, 8")
    a(f"s_lshl_b32 s{t2}, s3, 10")
    a(f"s_add_u32 s{t1}, s{t1}, s{t2}")
    a(f"s_add_u32 m0, s{t2}, {XW}")
    a.srd(sX, 4, N * 256)
    a(f"buffer_load_dwordx4 v6, s[{sX}:{sX+3}], s{t1} offen lds")
    a("s_cmp_ge_u32 s3, 2")
    a("s_cbranch_scc1 K2_X2")
    a(f"s_add_u32 m0, s{t2}, {XW + 8192}")
    a(f"s_add_u32 s{t1}, s{t1}, 8192")
    a(f"buffer_load_dwordx4 v6, s[{sX}:{sX+3}], s{t1} offen lds")
    a.label("K2_X2")
    a(f"s_mov_b32 m0, s{sRING}")
    a.srd(sWF, 22, NFRAG * 1024, WS_WB)
    for z in range(4):
        a(f"buffer_load_dwordx4 v4, s[{sWF}:{sWF+3}], s{sWBO} offen offset:{1024*z} lds")
    a.srd(sREC, 22, E * RECB, WS_REC)
    a(f"s_mov_b32 s{sLO}, 0")
    a(f"s_mov_b32 s{sCAP}, {CAP1}")
    a(f"s_mov_b32 s{sF1}, 1")
    a(f"s_mov_b32 s{sF2}, 1")
    a(f"s_lshl_b32 s{sLIST}, s3, 9")
    a(f"s_add_u32 s{sLIST}, s{sLIST}, {LIST}")
    a("v_and_b32 v7, 3, v0")
    a(f"s_movk_i32 s{t0}, {CH}")
    a(f"v_mad_u32_u24 v{VREC}, v3, s{t0}, v7")
    a(f"v_mul_u32_u24 v{VREC}, {RECB}, v{VREC}")
    a(f"v_xor_b32 v{Q1}, 3, v7")
    a(f"v_lshlrev_b32 v{Q1}, 16, v{Q1}")
    a(f"v_lshl_add_u32 v{LR}, v1, 2, s{sLIST}")
    a(f"v_add_u32 v{L64}, 64, v1")
    a("v_and_b32 v2, 31, v1")
    a("v_lshrrev_b32 v5, 5, v1")
    a(f"s_lshl_b32 s{t0}, s{sWIN}, 4")
    a(f"v_add_u32 v{XA}, 12, v2")
    a(f"v_lshrrev_b32 v{XA}, 5, v{XA}")
    a(f"v_mad_i32_i24 v{XA}, v{XA}, -4, v2")
    a(f"v_add_u32 v{XA}, -4, v{XA}")
    a(f"v_min_u32 v{XA}, 23, v{XA}")
    a(f"v_add_u32 v{XA}, s{t0}, v{XA}")
    a(f"v_and_b32 v7, 15, v{XA}")
    a("v_xor_b32 v7, v7, v5")
    a("v_lshlrev_b32 v7, 4, v7")
    a(f"v_lshl_add_u32 v{XA}, v{XA}, 8, v7")
    a(f"v_add_u32 v{XA}, {XW}, v{XA}")
    for s in range(1, 8):
        a(f"v_xor_b32 v{XA+s}, {32*s}, v{XA}")
    a(f"s_lshl_b32 s{t0}, s{sWV}, 14")
    a(f"s_add_u32 s{t0}, s{t0}, {RING0}")
    a(f"v_add_u32 v3, s{t0}, v4")
    a.srd(sP, 22, N, WS_P, stride=512)
    a.srd(sOUT, 20, N * 256)
    a(f"s_mov_b32 s{sSINIT}, 0")
    a(f"s_mul_i32 s{sBLK}, s{sWIN}, {BLKW}")
    a(f"s_mul_i32 s{sIDX}, s{sWIN}, {IDXW}")
    a(f"s_add_u32 s{sIDX}, s{sIDX}, {IDX}")
    a(f"s_lshl_b32 s{t0}, s{sN0}, 2")
    a(f"s_sub_u32 s{sCA}, {CNT}, s{t0}")
    a(f"s_mov_b32 s{sSA}, {hex((-4*CNT) & 0xffffffff)}")
    a(f"s_mov_b32 s{sNW}, {IDX}")
    a(f"s_mul_i32 s{sW2}, s3, {9*1024}")
    a(f"s_add_u32 s{sW2}, s{sW2}, {WS_W2F - WS_WB}")
    clear(NZ0 + NZ1, NZ0 + NZ1 + NZ2)
    hi()
    a("s_waitcnt vmcnt(5)")
    st("tab")
    a(f"v_add_u32 v7, v{VCNT}, v{Q1}")
    a(f"v_and_b32 v6, 0xffff, v{VCNT}")
    a(f"v_lshrrev_b32 v{VCNT}, 18, v7")
    a(f"v_mad_u32_u24 v{VREC}, v6, {RECB}, v{VREC}")
    a(f"v_add_u32 v{LA+1}, {4*RECB}, v{VREC}")
    D = lambda src, ctl: a(f"v_add_u32_dpp v{VBASE}, v{src}, v{src} {ctl}")
    D(VCNT, "row_shr:1 row_mask:0xf bank_mask:0xf bound_ctrl:0")
    a(f"v_add_u32 v{LA+2}, {8*RECB}, v{VREC}")
    a(f"v_add_u32 v{LA+3}, {12*RECB}, v{VREC}")
    D(VBASE, "row_shr:2 row_mask:0xf bank_mask:0xf bound_ctrl:0")
    a(f"v_cmp_lt_u32 vcc, 4, v{VCNT}")
    a("s_nop 0")
    D(VBASE, "row_shr:4 row_mask:0xf bank_mask:0xf bound_ctrl:0")
    a("s_nop 1")
    D(VBASE, "row_shr:8 row_mask:0xf bank_mask:0xf bound_ctrl:0")
    a("s_nop 1")
    D(VBASE, "row_bcast:15 row_mask:0xa bank_mask:0xf")
    a("s_nop 1")
    D(VBASE, "row_bcast:31 row_mask:0xc bank_mask:0xf")
    a("s_cbranch_vccnz K2_GEN0")
    a(f"v_readlane_b32 s{sTW}, v{VBASE}, 63")
    a(f"v_sub_u32 v{VBASE}, v{VBASE}, v{VCNT}")
    a(f"v_lshl_add_u32 v6, v{VBASE}, 2, s{sLIST}")
    a(f"s_cmp_gt_u32 s{sTW}, {CAP1}")
    a("s_cbranch_scc1 K2_GEN")
    a(f"s_mov_b32 s{t0}, s{sTW}")
    for j in range(4):
        a(f"v_cmpx_lt_u32 vcc, {j}, v{VCNT}")
        a(f"ds_write_b32 v6, v{VREC if j == 0 else LA+j} offset:{4*j}")
    a.label("K2_LISTED")
    a("s_mov_b64 exec, -1")
    a(f"ds_read_b32 v{LA}, v{LR}")
    a(f"ds_read_b32 v{LA+1}, v{LR} offset:256")
    a(f"v_cmp_gt_u32 s[{sM0}:{sM0+1}], s{t0}, v1")
    a(f"v_cmp_gt_u32 s[{sM1}:{sM1+1}], s{t0}, v{L64}")
    R = (PF, PF + 4)
    for r in range(2):
        a(f"s_waitcnt lgkmcnt({1-r})")
        a(f"buffer_load_dwordx3 {vr(R[r],3)}, v{LA+r}, s[{sREC}:{sREC+3}], 0 offen")
    lo()
    st("rec")
    a(f"s_cmp_eq_u32 s{sF1}, 0")
    a("s_cbranch_scc1 K2_NF2")
    a(f"s_lshl_b32 s{t1}, s3, 11")
    a(f"s_add_u32 m0, s{t1}, {WBS}")
    a(f"s_add_u32 s{t0}, s{sWBO}, 4096")
    for z in range(2):
        a(f"buffer_load_dwordx4 v4, s[{sWF}:{sWF+3}], s{t0} offen offset:{1024*z} lds")
    L67 = OPT.get("l67", 1)
    if L67:
        a(f"s_add_u32 m0, s{sRING}, 2048")
        a("s_nop 0")
        for z in range(2, 4):
            a(f"buffer_load_dwordx4 v4, s[{sWF}:{sWF+3}], s{t0} offen offset:{1024*z} lds")
    a.label("K2_NF2")
    clear(NZ0 + NZ1 + NZ2, NZ)
    a(f"v_mov_b32 v{Z+4}, {PADIDX}")
    a("s_lshl_b32 m0, s3, 8")
    a(f"s_min_u32 s{t0}, s3, 4")
    a(f"ds_write_addtid_b32 v{Z+4} offset:{IDX}")
    a(f"s_lshl_b32 m0, s{t0}, 8")
    a("s_nop 0")
    a(f"ds_write_addtid_b32 v{Z+4} offset:{IDX + 2048}")
    a(f"s_cmp_eq_u32 s{sF1}, 0")
    a("s_cbranch_scc1 K2_NF3")
    a(f"v_and_b32 v{IX}, 7, v1")
    a("v_lshrrev_b32 v7, 4, v1")
    a(f"v_xor_b32 v7, v{IX}, v7")
    a("v_lshlrev_b32 v7, 4, v7")
    a(f"s_lshl_b32 s{t0}, s{sWV}, 7")
    a(f"v_add_u32 v{IX+1}, s{t0}, v7")
    a(f"v_xor_b32 v{IX+3}, 64, v{IX+1}")
    a(f"v_mov_b32 v{IX+5}, v{IX+1}")
    a(f"v_mov_b32 v{IX+7}, v{IX+3}")
    a(f"v_mov_b32 v{DEG}, 0")
    a(f"s_lshl_b32 s{t0}, s{sWV}, 11")
    a(f"s_add_u32 s{t0}, s{t0}, {WS_CST - WS_WB}")
    st("pb2")
    a(f"s_waitcnt vmcnt({6 if L67 else 4}) lgkmcnt(0)")
    a("s_barrier")
    st("b2")
    for s in range(4):
        for c in range(2):
            a(f"ds_read_b128 {vr(WBQ+4*(4*c+s),4)}, v3 offset:{(8*c+s)*1024}")
    for c in range(2):
        a(f"buffer_load_dwordx4 {vr(CST+4*c,4)}, v4, s[{sWF}:{sWF+3}], s{t0} offen offset:{1024*c}")
    if not L67:
        a(f"s_lshl_b32 s{t0}, s{sWV}, 14")
    for c in range(0 if L67 else 2):
        a(f"s_add_u32 s{t0}, s{t0}, {4096 if c == 0 else 8192}")
        for s in (6, 7):
            a(f"buffer_load_dwordx4 {vr(DD+8*c+4*(s-6),4)}, v4, s[{sWF}:{sWF+3}], s{t0} offen offset:{1024*(s-4)}")
    a("s_cmp_lg_u32 s3, 7")
    a("s_cbranch_scc1 K2_NMX")
    a.srd(sMX, 22, NGEMM * 16, WS_PMAX)
    a(f"s_movk_i32 s{t0}, 0x1000")
    for k in range(5):
        so = "0" if k < 4 else f"s{t0}"
        a(f"buffer_load_dwordx4 {vr(MX[k],4)}, v4, s[{sMX}:{sMX+3}], {so} offen offset:{(k & 3) * 1024}")
    a.srd(sMX, 22, NCHUNK * 20, WS_EMAX)
    for k in range(3):
        a(f"buffer_load_dwordx4 {vr(MX[5+k],4)}, v4, s[{sMX}:{sMX+3}], 0 offen offset:{1024*k}")
    a(f"s_waitcnt vmcnt({14 if L67 else 16})")
    a("s_branch K2_J3")
    a.label("K2_NMX")
    a(f"s_waitcnt vmcnt({6 if L67 else 8})")
    a.label("K2_J3")
    hi()
    st("recl")
    AC = (PF + 8, PF + 9); RK = (PF + 10, PF + 11); SU = (PF + 12, PF + 13); BP = (PF + 14, PF + 15)
    a("v_mov_b32 v6, 1")
    for r in range(2):
        a(f"v_lshrrev_b32 v{AC[r]}, 14, v{R[r]+2}")
    for r in range(2):
        a(f"v_lshl_add_u32 v{AC[r]}, v{AC[r]}, 2, s{sCA}")
    for r in range(2):
        a(f"s_mov_b64 exec, s[{(sM0, sM1)[r]}:{(sM0, sM1)[r]+1}]")
        a(f"ds_add_rtn_u32 v{RK[r]}, v{AC[r]}, v6")
    a("s_mov_b64 exec, -1")
    a(f"v_mov_b32 v7, {MISC}")
    a(f"v_mov_b32 v{Z+4}, s{sTW}")
    a(f"v_lshlrev_b32 v{Z+5}, 2, v1")
    a("s_mov_b64 exec, 1")
    a(f"ds_max_u32 v7, v{Z+4}")
    a("s_mov_b64 exec, -1")
    a(f"v_add_u32 v6, {CNT}, v{Z+5}")
    BX = (SO0, SO0 + 1); EW = (HB, AO)
    a("s_waitcnt lgkmcnt(0)")
    st("pb3")
    a("s_barrier")
    st("b3")
    a(f"ds_read_b32 v{Z+5}, v6")
    a(f"ds_read_b32 v{Z+4}, v7")
    for l in w2_loads(range(0, 2)): a(l)
    for r in range(2):
        a(f"v_and_b32 v{R[r]+2}, 0x3fff, v{R[r]+2}")
    a("s_waitcnt lgkmcnt(1)")
    a(f"v_add_u32 v7, 1, v{Z+5}")
    a("v_and_b32 v7, -2, v7")
    a("v_mov_b32 v6, v7")
    a(f"v_cvt_f32_u32 v{Z+5}, v{Z+5}")
    D7 = lambda ctl: a(f"v_add_u32_dpp v7, v7, v7 {ctl}")
    D7("row_shr:1 row_mask:0xf bank_mask:0xf bound_ctrl:0")
    a(f"v_mov_b32 v{Z+6}, {BLKSZ - 512}")
    a(f"v_mov_b32 v{Z+7}, {BLKSZ}")
    D7("row_shr:2 row_mask:0xf bank_mask:0xf bound_ctrl:0")
    a(f"v_add_u32 v{BA}, s{sBLK}, v4")
    a(f"v_lshrrev_b32 v{IA}, 3, v1")
    D7("row_shr:4 row_mask:0xf bank_mask:0xf bound_ctrl:0")
    a(f"v_lshl_add_u32 v{IA}, v{IA}, 2, s{sIDX}")
    a("s_waitcnt lgkmcnt(0)")
    D7("row_shr:8 row_mask:0xf bank_mask:0xf bound_ctrl:0")
    a(f"v_readfirstlane_b32 s{t2}, v{Z+4}")
    a(f"v_mov_b32 v{Z+4}, 0x3f80")
    D7("row_bcast:15 row_mask:0xa bank_mask:0xf")
    a(f"v_mov_b32 v{Z+3}, {BLKSZ - 128}")
    a("s_nop 0")
    D7("row_bcast:31 row_mask:0xc bank_mask:0xf")
    a(f"s_cmp_eq_u32 s{sCAP}, {CAP2}")
    a(f"v_readlane_b32 s{t1}, v7, 63")
    a("v_sub_u32 v6, v7, v6")
    a("s_cbranch_scc1 K2_FIX")
    a(f"s_add_u32 s{t0}, s{t1}, 63")
    a(f"s_lshr_b32 s{t0}, s{t0}, 6")
    a(f"s_lshl_b32 s{t0}, s{t0}, 5")
    a.label("K2_CUT")
    a(f"s_sub_u32 s{sS}, s{t1}, s{t0}")
    a(f"v_cmp_ge_u32 vcc, s{t0}, v7")
    a(f"v_cmp_le_i32 s[{sRM}:{sRM+1}], s{sS}, v7")
    a(f"s_and_b32 s{sS}, vcc_lo, 0xff8000")
    a(f"s_and_b32 s{sS}, s{sS}, s{sRM}")
    a("s_cbranch_scc0 K2_CUT2")
    a(f"s_flbit_i32_b32 s{sS}, s{sS}")
    a(f"s_sub_u32 s{sS}, 31, s{sS}")
    a.label("K2_CUTD")
    a(f"v_readlane_b32 s{t0}, v7, s{sS}")
    a(f"s_add_u32 s{sS}, s{sS}, 1")
    a(f"s_lshl_b64 exec, -1, s{sS}")
    a(f"s_sub_u32 s{sRM}, {MAXT*32}, s{t0}")
    a(f"v_add_u32 v6, s{sRM}, v6")
    a("s_mov_b64 exec, -1")
    for r in range(2):
        a(f"ds_bpermute_b32 v{BP[r]}, v{AC[r]}, v6")
    a(f"s_sub_u32 s{t1}, s{t1}, s{t0}")
    for l in w2_loads(range(2, 5)): a(l)
    a(f"s_mov_b32 s{sF1}, 0")
    a(f"s_cmp_eq_u32 s{sWIN}, 0")
    a(f"s_cselect_b32 s{sNT}, s{t0}, s{t1}")
    a(f"s_add_u32 s{sNT}, s{sNT}, 31")
    a(f"s_lshr_b32 s{sNT}, s{sNT}, 5")
    a(f"s_add_u32 s{sSW}, s{t0}, 31")
    a(f"s_lshr_b32 s{sSW}, s{sSW}, 5")
    a(f"s_sub_u32 s{sSW}, s{sNT}, s{sSW}")
    a(f"s_max_i32 s{sSW}, s{sSW}, 0")
    a(f"s_max_u32 s{t0}, s{t0}, s{t1}")
    a(f"s_cmp_gt_u32 s{t0}, {MAXT*32}")
    a(f"s_cselect_b32 s{t0}, 0x7fffffff, s{t2}")
    a(f"s_cmp_gt_u32 s{t0}, s{sCAP}")
    a("s_cbranch_scc1 K2_OV")
    a.label("K2_NOOV")
    t = [T1 + k for k in range(8)]
    BO = (SO0 + 2, SO0 + 3)
    a(f"s_lshl_b32 s{t0}, s{sS}, 2")
    a(f"s_add_u32 s{t0}, s{t0}, {CNT}")
    for r in range(2):
        a(f"s_waitcnt lgkmcnt({1-r})")
        a(f"v_add_u32 v{BP[r]}, v{BP[r]}, v{RK[r]}")
        a(f"v_lshl_add_u32 v{t[r]}, v{BP[r]}, 2, s{sNW}")
    for r in range(2):
        a(f"s_mov_b64 exec, s[{(sM0, sM1)[r]}:{(sM0, sM1)[r]+1}]")
        if not nogather:
            a(f"ds_write_b32 v{t[r]}, v{R[r]+2}")
    a("s_mov_b64 exec, -1")
    a(f"v_add_f32 v{DEG}, v{DEG}, v{Z+5}")
    def lookups():
        for r in range(2):
            a(f"v_cmpx_le_u32 vcc, s{t0}, v{AC[r]}")
            a(f"v_add_u32 v{AC[r]}, -64, v{AC[r]}")
            a("s_mov_b64 exec, -1")
        for r in range(2):
            a(f"ds_bpermute_b32 v{BO[r]}, v{AC[r]}, v{OH}")
            a(f"ds_bpermute_b32 v{BX[r]}, v{AC[r]}, v{OX}")

    def scatter(extra=()):
        extra = list(extra)
        cnt = [0]
        def e(l):
            a(l)
            cnt[0] += 1
            if extra and l.startswith('v_') and cnt[0] % 4 == 0:
                a(extra.pop(0))
        for r in range(2):
            e(f"v_lshl_add_u32 v{SU[r]}, v{AC[r]}, 2, s{sSA}")
        a("s_waitcnt lgkmcnt(0)")
        for r in range(2):
            p = BP[r]
            e(f"v_lshrrev_b32 v{t[0]}, 5, v{p}")
            e(f"v_mul_u32_u24 v{t[2]}, v{t[0]}, v{Z+6}")
            e(f"v_mad_u32_u24 v{t[3]}, v{t[0]}, v{Z+7}, v{SU[r]}")
            e(f"v_lshl_add_u32 v{t[2]}, v{p}, 4, v{t[2]}")
            e(f"v_mul_u32_u24 v{t[6]}, v{t[0]}, v{Z+3}")
            e(f"v_and_b32 v{t[4]}, 4, v{p}")
            e(f"v_lshrrev_b32 v{t[5]}, 1, v{p}")
            e(f"v_lshl_add_u32 v{t[3]}, v{t[4]}, 7, v{t[3]}")
            e(f"v_add_u32 v{t[4]}, v{BO[r]}, v{t[2]}")
            e(f"v_and_or_b32 v{t[3]}, v{t[5]}, 12, v{t[3]}")
            e(f"v_lshl_add_u32 v{t[6]}, v{p}, 2, v{t[6]}")
            e(f"v_and_or_b32 v{t[3]}, v{p}, 2, v{t[3]}")
            a(f"s_mov_b64 exec, s[{(sM0, sM1)[r]}:{(sM0, sM1)[r]+1}]")
            a(f"ds_write2_b32 v{t[2]}, v{R[r]}, v{R[r]+1} offset0:0 offset1:128")
            a(f"ds_write_b16 v{t[4]}, v{Z+4}")
            a(f"ds_write_b32 v{t[6]}, v{BX[r]} offset:{O_IX}")
            a(f"ds_write_b16 v{t[3]}, v{Z+4} offset:{O_SO}")
            a("s_mov_b64 exec, -1")
        while extra: a(extra.pop(0))
    scatter.n = 1
    a("s_waitcnt vmcnt(5) lgkmcnt(0)")
    st("pb4")
    a("s_barrier")
    st("b4")
    for l in idx_reads(0): a(l)
    a(f"s_cmp_eq_u32 s{sF2}, 0")
    a("s_cbranch_scc1 K2_NF4")
    WB2 = HB
    QE = OPT.get("qe", 2)
    dq = DsTrack(a)
    def qm(s):
        return [mfma(S + 16*c, T0 + 4*s, WBQ + 4*(4*c+s) if s < 4 else WB2 + 4*(2*c+s-4) if s < 6 else DD + 8*c + 4*(s-6), None if s == 0 else S + 16*c) for c in range(2)]
    WV = OPT.get("wv", 0)
    QE = OPT.get("qe", 2)
    D1 = OPT.get("d1", 1)
    for s in range(WV):
        a(f"ds_read_b128 {vr(T0+4*s,4)}, v{XA+s}")
    a(f"s_waitcnt lgkmcnt({WV})")
    for l in dma(0): a(l)
    HH = 5
    a("v_add_u32 v6, 20, v2")
    a("v_lshrrev_b32 v6, 5, v6")
    a("v_lshrrev_b32 v7, 2, v2")
    a("v_add3_u32 v6, v6, v7, 1")
    a(f"v_bfe_u32 v{OH}, v6, 1, 1")
    a(f"v_and_b32 v{OX}, 1, v6")
    a(f"v_lshl_add_u32 v{OH}, v{OX}, 1, v{OH}")
    a(f"v_lshlrev_b32 v{OH}, 2, v{OH}")
    a("v_lshrrev_b32 v6, 2, v6")
    a(f"v_lshl_add_u32 v{OX}, v6, 4, v{OH}")
    a("v_and_b32 v7, 3, v2")
    a(f"v_lshlrev_b32 v{OX}, v{OX}, v7")
    a(f"v_or_b32 v{OX}, 0x40004, v{OX}")
    a(f"v_lshl_add_u32 v{OH}, v6, 9, v{OH}")
    a(f"v_lshlrev_b32 v{BIL}, 2, v2")
    a(f"v_lshl_add_u32 v{BIL}, v{HH}, 1, v{BIL}")
    lookups()
    a("v_bfe_u32 v6, v1, 1, 3")
    a(f"v_xor_b32 v6, v6, v{HH}")
    a("v_lshlrev_b32 v6, 4, v6")
    a("v_lshl_add_u32 v6, v2, 7, v6")
    a(f"v_add_u32 v{PA}, s{sRING}, v6")
    for k in range(1, 4):
        a(f"v_xor_b32 v{PA+k}, {32*k}, v{PA}")
    a("v_and_b32 v7, 1, v1")
    a("v_lshlrev_b32 v7, 4, v7")
    a("v_mov_b32 v6, 0x3f80")
    a("v_lshlrev_b32 v7, v7, v6")
    for i in range(2):
        a(f"v_mov_b32 v{IDN+4*i}, 0")
    for i in range(2):
        a(f"s_mov_b32 exec_lo, {hex(3 << (16*i))}")
        a(f"s_mov_b32 exec_hi, {hex(3 << (16*i + 8))}")
        a(f"v_mov_b32 v{IDN+4*i}, v7")
    a("s_mov_b64 exec, -1")
    fl = [f"s_lshl_b32 s{t0}, s{sWV}, 12", f"s_add_u32 s{t0}, s{t0}, {WBS}", f"v_add_u32 v2, s{t0}, v4"]
    for q in range(1, 4):
        a(fl[q-1])
        for i in range(2):
            a(f"v_mov_b32_dpp v{IDN+4*i+q}, v{IDN+4*i+q-1} row_shr:2 row_mask:0xf bank_mask:0xf bound_ctrl:0")
    a(f"v_add_u32 v{BI}, s{sBLK}, v{BIL}")
    st("dma0")
    if WV:
        a("s_waitcnt lgkmcnt(0)")
    scatter([l for s in range(WV) for l in qm(s)])
    st("scat")
    for s in range(WV, QE):
        dq(f"ds_read_b128 {vr(T0+4*s,4)}, v{XA+s}", f"x{s}")
    for l in idx_reads(1): dq(l, "w")
    for s in range(4, 8 if L67 else 6):
        for c in range(2):
            if s < 6:
                dq(f"ds_read_b128 {vr(WB2+4*(2*c+s-4),4)}, v2 offset:{(2*c+s-4)*1024}", "w")
            else:
                dq(f"ds_read_b128 {vr(DD+8*c+4*(s-6),4)}, v3 offset:{8192*c+4096+(s-6)*1024}", "w")
    lo()
    for s in range(WV, QE):
        dq.wait(f"x{s}")
        for l in qm(s): a(l)
    for s in range(max(WV, QE), 8):
        dq(f"ds_read_b128 {vr(T0+4*s,4)}, v{XA+s}", f"x{s}")
    a("s_cmp_lg_u32 s3, 7")
    a("s_cbranch_scc1 K2_NMX2")
    mx = [MX[k] + q for k in range(5) for q in range(4)]
    for k in range(1, 10):
        a(f"v_max3_u32 v{mx[0]}, v{mx[0]}, v{mx[2*k-1]}, v{mx[2*k]}")
    a(f"v_max_u32 v{Z}, v{mx[0]}, v{mx[19]}")
    me = [MX[k] + q for k in range(5, 8) for q in range(4)]
    for k in range(1, 6):
        a(f"v_max3_u32 v{me[0]}, v{me[0]}, v{me[2*k-1]}, v{me[2*k]}")
    a(f"v_max_u32 v{Z+1}, v{me[0]}, v{me[11]}")
    for sh in (1, 2, 4, 8):
        a("s_nop 0")
        for k in range(2):
            a(f"v_max_u32_dpp v{Z+k}, v{Z+k}, v{Z+k} row_shr:{sh} row_mask:0xf bank_mask:0xf bound_ctrl:0")
    for bc, rm in ((15, "0xa"), (31, "0xc")):
        a("s_nop 0")
        for k in range(2):
            a(f"v_max_u32_dpp v{Z+k}, v{Z+k}, v{Z+k} row_bcast:{bc} row_mask:{rm} bank_mask:0xf")
    a(f"v_mov_b32 v7, {MISC + 4}")
    a("s_mov_b32 exec_lo, 0")
    a("s_mov_b32 exec_hi, 0x80000000")
    a(f"ds_write2_b32 v7, v{Z}, v{Z+1} offset0:0 offset1:1")
    a("s_mov_b64 exec, -1")
    a("s_waitcnt lgkmcnt(0)")
    a.label("K2_NMX2")
    a(f"v_mov_b32 v7, {MISC + 4}")
    dm = dma(4096)
    early = QE < 8
    if early:
        dq.wait("w")
        st("pb5")
        a("s_barrier")
        st("b5")
        if D1 == 1:
            for l in dm: a(l)
        st("dma1")
        dq(f"ds_read2_b32 {vr(Z+4,2)}, v7 offset0:0 offset1:1")
    for s in range(max(WV, QE), 8):
        dq.wait(f"x{s}")
        for c, l in enumerate(qm(s)):
            a(l)
            if D1 == 2 and s >= 4:
                a(dm[3*(s-4) + 2*c])
    st("q8")
    a(f"s_mov_b32 s{sSLOW}, {1 if force_slow else 0}")
    a(f"s_mov_b32 s{sF2}, 0")
    a(f"s_mov_b32 s{sNB}, 1")
    a("s_nop 7")
    for c in range(2):
        q = S + 16*c
        a(f"v_max_f32 v6, |v{q}|, |v{q+1}|")
        for r in range(2, 16, 2):
            a(f"v_max3_f32 v6, |v{q+r}|, |v{q+r+1}|, v6")
        for p in range(8):
            a(f"v_cvt_pk_bf16_f32 v{QB+8*c+p}, v{q+2*p}, v{q+2*p+1}")
        a("s_mov_b32 exec_hi, 0")
        for p in range(2):
            a(f"v_mov_b32 v{QB+8*c+4*p}, v{CST+4*c+p}")
        a("s_mov_b32 exec_hi, -1")
        if c == 0:
            a("s_waitcnt lgkmcnt(0)")
        a(f"v_fma_f32 v7, v{Z+5}, v{CST+4*c+3}, v{Z+4}")
        a("v_add_f32 v6, v7, v6")
        a(f"v_cmp_nge_f32 vcc, {hex(f32bits(30.0 if OPT.get('quad', 0) else 60.0))}, v6")
        a("s_cmp_lg_u64 vcc, 0")
        a(f"s_cselect_b32 s{sSLOW}, 1, s{sSLOW}")
        if c == 0 and OPT.get("pfe", 0):
            for l in ao_reads(0) + idx_reads(2): a(l)
            a("s_waitcnt vmcnt(4)")
            for l in pf_reads(0): a(l)
    a(f"s_cmp_lt_u32 s{sNT}, 2")
    a(f"s_cselect_b32 s{t0}, 1, s{sSLOW}")
    a(f"s_cmp_eq_u32 s{sCAP}, {CAP2}")
    a("s_cbranch_scc1 K2_SLOW0")
    a(f"s_mov_b32 s{sI}, s{sNT}")
    a(f"s_cmp_lg_u32 s{t0}, 0")
    a("s_cbranch_scc1 K2_SLOW")
    st("post")
    if not OPT.get("pfe", 0):
        for l in ao_reads(0) + idx_reads(2): a(l)
        a("s_waitcnt vmcnt(4)")
    st("loop")
    a.cyc(71)
    if not OPT.get("pfe", 0):
        for l in pf_reads(0): a(l)
    a("s_waitcnt lgkmcnt(0)")
    for l in zmf(0): a(l)
    for l in dma(0): a(l)
    a(f"s_cmp_lg_u32 s{sWIN}, 0")
    a("s_cbranch_scc1 K2_FA")
    a("s_nop 1")
    fast_loop(a, "B")
    a.label("K2_FA")
    a("s_nop 1")
    fast_loop(a, "A")
    a.label("K2_CUT2")
    a(f"s_add_u32 s{t0}, s{t0}, 32")
    a(f"s_lshl_b32 s{sS}, s{t0}, 1")
    a(f"s_sub_u32 s{sS}, s{sS}, 128")
    a(f"s_cmp_lt_i32 s{sS}, s{t1}")
    a("s_cbranch_scc1 K2_CUT")
    a.label("K2_FIX")
    a(f"s_mov_b32 s{sS}, 19")
    a("s_branch K2_CUTD")
    a.label("K2_NF3")
    a("s_waitcnt vmcnt(0) lgkmcnt(0)")
    a("s_barrier")
    a("s_branch K2_J3")
    a.label("K2_NF4")
    a("s_waitcnt lgkmcnt(0)")
    for l in dma(0) + idx_reads(1): a(l)
    lookups()
    a(f"v_add_u32 v{BI}, s{sBLK}, v{BIL}")
    scatter()
    a("s_waitcnt lgkmcnt(0)")
    a("s_barrier")
    for l in dma(4096): a(l)
    a("s_branch K2_SLOW")
    a.label("K2_OV")
    a(f"s_cmp_eq_u32 s{sCAP}, {CAP2}")
    a("s_cbranch_scc1 K2_NOOV")
    a(f"s_mov_b32 s{sCAP}, {CAP2}")
    a(f"s_add_u32 s{t2}, s{t2}, {CAP2-1}")
    a(f"s_mul_hi_u32 s{sNB2}, s{t2}, {hex((2**32 + CAP2 - 1)//CAP2)}")
    a("s_waitcnt lgkmcnt(0)")
    a("s_barrier")
    a.label("K2_BATCH")
    a(f"v_mov_b32 v{Z}, 0")
    clear(0, NZ0 + NZ1 + NZ2)
    a(f"v_lshl_add_u32 v{LR}, v1, 2, s{sLIST}")
    a(f"v_add_u32 v{L64}, 64, v1")
    a("s_branch K2_GEN")
    a.label("K2_GEN0")
    a(f"v_readlane_b32 s{sTW}, v{VBASE}, 63")
    a(f"v_sub_u32 v{VBASE}, v{VBASE}, v{VCNT}")
    a.label("K2_GEN")
    a(f"s_add_u32 s{t0}, s{sLO}, s{sCAP}")
    a(f"s_lshl_b32 s{t2}, s{sLO}, 2")
    a(f"s_sub_u32 s{t2}, s{sLIST}, s{t2}")
    a(f"v_max_u32 v6, s{sLO}, v{VBASE}")
    a(f"v_add_u32 v7, v{VBASE}, v{VCNT}")
    a(f"v_min_u32 v7, s{t0}, v7")
    a(f"v_sub_u32 v{LA}, v6, v{VBASE}")
    a(f"v_mad_u32_u24 v{LA}, v{LA}, {4*RECB}, v{VREC}")
    a("v_sub_u32 v7, v7, v6")
    a(f"v_lshl_add_u32 v6, v6, 2, s{t2}")
    a.label("K2_EXP")
    for j in range(4):
        a(f"v_cmpx_lt_i32 vcc, {j}, v7")
        a(f"ds_write_b32 v6, v{LA} offset:{4*j}")
        a(f"v_add_u32 v{LA}, {4*RECB}, v{LA}")
    a("v_cmpx_lt_i32 vcc, 4, v7")
    a("v_add_u32 v6, 16, v6")
    a("v_subrev_u32 v7, 4, v7")
    a(f"s_sub_u32 s{t0}, s{sTW}, s{sLO}")
    a(f"s_max_i32 s{t0}, s{t0}, 0")
    a(f"s_min_u32 s{t0}, s{t0}, s{sCAP}")
    a("s_nop 1")
    a("s_cbranch_execnz K2_EXP")
    a("s_branch K2_LISTED")
    a.label("K2_SLOW0")
    a(f"s_mov_b32 s{sNB}, s{sNB2}")
    a.label("K2_SLOW")
    a(f"s_mov_b32 s{sI}, s{sNT}")
    a(f"s_cmp_lg_u32 s{sSINIT}, 0")
    a("s_cbranch_scc1 K2_SL1")
    for l in w2_loads(range(5, 9)): a(l)
    for r in range(32):
        a(f"v_mov_b32 v{S+r}, 0")
    a(f"s_mov_b32 s{sSINIT}, 1")
    a.label("K2_SL1")
    a(f"s_cmp_eq_u32 s{sNT}, 0")
    a("s_cbranch_scc1 K2_BDONE")
    a(f"s_mov_b32 s{t1}, s{sRING}")
    a.label("K2_SLOOP")
    a("s_waitcnt vmcnt(0)")
    for l in pf_reads(0) + ao_reads(0) + [so_read(0, 0)] + idx_reads(2): a(l)
    a("s_waitcnt lgkmcnt(0)")
    for l in dma(0): a(l)
    for c in range(2):
        for l in zmf(c): a(l)
        a("s_nop 15")
        for l in exps(c): a(l)
        for r in range(16): a(f"v_add_f32 v{DD+r}, 1.0, v{DD+r}")
        for r in range(16): a(f"v_rcp_f32 v{DD+r}, v{DD+r}")
        for j in range(8):
            a(f"v_mul_f32 v{HF+j}, v{TT[c]+2*j}, v{DD+2*j}")
        for j in range(8):
            a(f"v_fma_f32 v{HF+j}, v{TT[c]+2*j+1}, v{DD+2*j+1}, v{HF+j}")
        for l in cvts(): a(l)
        a("s_nop 1")
        a(ssmf(c, 0))
    for k in range(4):
        a(f"v_xor_b32 v{PA+k}, 0x1000, v{PA+k}")
    a(f"s_xor_b32 s{sRING}, s{sRING}, 0x1000")
    a(f"v_add_u32 v{BA}, {BLKSZ}, v{BA}")
    a(f"v_add_u32 v{BI}, {BLKSZ}, v{BI}")
    a(f"v_add_u32 v{IA}, 128, v{IA}")
    a(f"s_sub_u32 s{sI}, s{sI}, 1")
    a(f"s_cmp_lg_u32 s{sI}, 0")
    a("s_cbranch_scc1 K2_SLOOP")
    a(f"s_xor_b32 s{t0}, s{t1}, s{sRING}")
    a(f"s_mov_b32 s{sRING}, s{t1}")
    for k in range(4):
        a(f"v_xor_b32 v{PA+k}, s{t0}, v{PA+k}")
    a.label("K2_BDONE")
    a(f"s_add_u32 s{sLO}, s{sLO}, s{sCAP}")
    a(f"s_sub_u32 s{sNB}, s{sNB}, 1")
    a(f"s_cmp_eq_u32 s{sNB}, 0")
    a("s_cbranch_scc1 K2_EPI")
    a("s_waitcnt vmcnt(0) lgkmcnt(0)")
    a("s_barrier")
    a("s_branch K2_BATCH")
    a.label("K2_EPI")
    st("epi")
    a.cyc(81)
    if diag: a("s_sub_u32 s71, s81, s71")
    a(f"s_mov_b32 s{t2}, {hex(f32bits(-LN2))}")
    a(f"v_add_u32 v{XWA}, s{sRING}, v4")
    a("s_waitcnt vmcnt(0)")
    for k in range(4):
        for p in range(4*k, 4*k + 4):
            a(f"v_cvt_pk_bf16_f32 v{DD+p}, v{S+2*p}, v{S+2*p+1}")
        a(f"ds_write_b128 v{XWA}, {vr(DD+4*k,4)} offset:{1024*k}")
    head, pre = epi_prelude()
    if not OPT.get("eweave", 1):
        head, pre = head + pre, []
    for l in head: a(l)
    ACC, BIAS = T0, T1
    a("s_waitcnt lgkmcnt(0)")
    a("s_barrier")
    st("epb")
    de = DsTrack(a)
    XB = S
    jobs = [(ct, tl) for ct in range(8) for tl in range(3)]
    def xr(k):
        ct, tl = jobs[k]
        off = (ct >> 1) * 8192 + (ct & 1) * 2048 + (32768 + 256 if tl == 2 else 0)
        de(f"ds_read_b128 {vr(XB+4*(k&7),4)}, v{RR if tl == 1 else RA} offset:{off}", k)
    for k in range(8): xr(k)
    for l in pre[:13]: a(l)
    pre = pre[13:]
    for k, (ct, tl) in enumerate(jobs):
        de.wait(k)
        a(mfma16(ACC + 4*tl, W2R + 4*ct, XB + 4*(k & 7), None if ct == 0 else ACC + 4*tl))
        if k + 8 < 24:
            xr(k + 8)
        for l in pre[:2]: de(l, "dg")
        pre = pre[2:]
        if k in (15, 17, 19):
            a(mfma16(BIAS + 4*((k-15)//2), W2R + 32, DG + 2*((k-15)//2), None))
    a("s_nop 3")
    for tl in range(3):
        for r in range(4):
            a(f"v_fma_f32 v{ACC+4*tl+r}, v{ACC+4*tl+r}, s{t2}, v{BIAS+4*tl+r}")
        for p in range(2):
            a(f"v_cvt_pk_bf16_f32 v{DD+2*tl+p}, v{ACC+4*tl+2*p}, v{ACC+4*tl+2*p+1}")
        if tl == 2:
            a(f"s_mov_b64 exec, s[{sRM}:{sRM+1}]")
        a(f"buffer_store_dwordx2 {vr(DD+2*tl,2)}, v{SA}, s[{sOUT}:{sOUT+3}], s{(sOA, sOB, t1)[tl]} offen {OPT.get('of', '')}")
    if diag:
        st("end")
        a("s_waitcnt vmcnt(0)")
        st("drained")
        if OPT.get("trace"):
            a("s_mov_b64 exec, -1")
            a("v_writelane_b32 v186, s81, 20")
            a("s_sub_u32 s90, s81, s71")
            a("v_writelane_b32 v186, s90, 21")
            a(f"v_writelane_b32 v186, s{sNT}, 22")
            a.srd(84, 22, 0x80000, WS_STAMP + 0x100000)
            a("s_lshl_b32 s90, s89, 3")
            a("s_add_u32 s90, s90, s3")
            a("s_lshl_b32 s90, s90, 8")
            a("v_lshlrev_b32 v6, 2, v1")
            a("buffer_store_dword v186, v6, s[84:87], s90 offen")
        if "smap" not in OPT: a("s_mov_b32 s100, s71")
        a("s_lshl_b32 s89, s89, 1")
        a(f"s_add_u32 s89, s89, s{sWIN}")
        a.stamp_flush(22, 1, 89, sWV)
    if OPT.get("lite"):
        a("s_waitcnt vmcnt(0)")
        a("s_memrealtime s[90:91]")
        a("s_mov_b64 exec, 1")
        a.srd(84, 22, 0x80000, WS_STAMP + 0x80000)
        a("s_lshl_b32 s88, s2, 3")
        a("s_add_u32 s88, s88, s3")
        a("s_lshl_b32 s88, s88, 2")
        a("v_mov_b32 v0, 0")
        a("s_waitcnt lgkmcnt(0)")
        a("v_mov_b32 v1, s90")
        a("buffer_store_dword v1, v0, s[84:87], s88 offen")
    a.label("K2_END")
    a("s_endpgm")
    return a.text()
```

```python
from common import *

MAXT = 13
BLKSZ = 2176
O_IX, O_SO = 1024, 1152
BLK = 0
BLKW = MAXT * BLKSZ
CNT = BLK + 2 * BLKW
MISC = CNT + 256
IDX = MISC + 256
IDXW = MAXT * 128
LIST = IDX + 2 * IDXW
XW = LIST + 4096
WBS = XW + 10240
RING0 = 98304
K2_LDS = RING0 + 65536
assert CNT % 256 == 0 and XW % 256 == 0 and WBS + 16384 <= RING0
CAP1, CAP2 = 128, 48
PADIDX = N
K2_BLOCK = 512

IDN, QB, S, T0, T1, DD, MM, NN, HF, HB = 8, 16, 32, 64, 80, 96, 112, 120, 128, 136
PF, AO, SO0, IX, PA, BA, IA, DEG = 140, 156, 164, 168, 176, 180, 181, 182
VBASE, VCNT, VREC = 183, 184, 185
BI = 5
W2R = 188
WBQ = 224
SO1 = 224
K2_VGPR = 256
TT = (T0, T1)
SO = (SO0, SO1)

sTAB, sREC, sP, sX, sWF, sOUT, sMX = 24, 28, 32, 36, 40, 44, 48
sWIN, sWV, sN0, sNA, sNW, sNB_ = 52, 53, 54, 55, 56, 57
sTW, sLO, sCAP, sNB, sNT, sI, sRING = 58, 59, 60, 61, 62, 63, 64
sF1, sF2, sSLOW, sSINIT, sBLK, sIDX = 65, 66, 67, 68, 69, 70
sM0, sM1 = 72, 74
sLIST, sCA, sSA, sW2, sNB2, sWBO = 6, 7, 8, 9, 10, 11
t0, t1, t2, t3 = 76, 77, 78, 79

OPT = dict()


def dma(stage_off):
    out = []
    for q in range(4):
        out.append(f"s_add_u32 m0, s{sRING}, {stage_off + 1024*q}")
        out.append("s_nop 0")
        out.append(f"buffer_load_dwordx4 {vr(IX+2*q,2)}, s[{sP}:{sP+3}], 0 idxen offen lds")
    return out


def idx_reads(tile_off):
    return [f"ds_read_b32 v{IX+2*q}, v{IA} offset:{tile_off*128 + 32*q}" for q in range(4)]


def pf_reads(stage):
    return [f"ds_read_b128 {vr(PF+4*k,4)}, v{PA+k} offset:{stage*4096}" for k in range(4)]


def ao_reads(tile_off):
    return [f"ds_read_b128 {vr(AO,4)}, v{BA} offset:{tile_off*BLKSZ}",
            f"ds_read_u16 v{AO+4}, v{BI} offset:{tile_off*BLKSZ + O_IX}"]


def so_read(tile_off, buf):
    return f"ds_read_b128 {vr(SO[buf],4)}, v{BA} offset:{tile_off*BLKSZ + O_SO}"


def zmf(c):
    t = TT[c]
    return [mfma(t, PF + 8*c, IDN, None), mfma(t, PF + 8*c + 4, IDN + 4, t),
            f"v_smfmac_f32_32x32x32_bf16 {vr(t,16)}, {vr(AO,4)}, {vr(QB+8*c,8)}, v{AO+4}"]


def ssmf(c, buf, first=False):
    return mfma(S + 16*c, HB, SO[buf], None if first else S + 16*c)


def cvts():
    return [f"v_cvt_pk_bf16_f32 v{HB+p}, v{HF+2*p}, v{HF+2*p+1}" for p in range(4)]


def exps(c):
    return [f"v_exp_f32 v{DD+r}, v{TT[c]+r}" for r in range(16)]


RQ = 244


def rcps():
    if OPT.get("quad", 0):
        return [f"v_rcp_f32 v{RQ+r}, v{RQ+r}" for r in range(4)]
    return [f"v_rcp_f32 v{MM+r}, v{MM+r}" for r in range(8)]


def fms():
    if OPT.get("quad", 0):
        return ([f"v_mul_f32 v{HF+r}, v{MM+(r^1)}, v{RQ+(r>>1)}" for r in range(8)]
                + [f"v_mul_f32 v{HF+r}, v{NN+r}, v{HF+r}" for r in range(8)])
    return [f"v_mul_f32 v{HF+r}, v{NN+r}, v{MM+r}" for r in range(8)]


def prun(c, fm=True):
    t = TT[c]
    P = fms() if fm else []
    if OPT.get("p5"):
        P += [f"v_add_f32 v{DD+r}, 1.0, v{DD+r}" for r in range(16)]
        P += [f"v_mul_f32 v{MM+j}, v{DD+2*j}, v{DD+2*j+1}" for j in range(8)]
        P += [f"v_mul_f32 v{NN+j}, v{t+2*j}, v{DD+2*j+1}" for j in range(8)]
        P += [f"v_fma_f32 v{NN+j}, v{t+2*j+1}, v{DD+2*j}, v{NN+j}" for j in range(8)]
        return P
    P += [f"v_add_f32 v{DD+2*j+1}, 1.0, v{DD+2*j+1}" for j in range(8)]
    P += [f"v_fma_f32 v{NN+j}, v{t+2*j+1}, v{DD+2*j}, v{t+2*j+1}" for j in range(8)]
    P += [f"v_fma_f32 v{MM+j}, v{DD+2*j}, v{DD+2*j+1}, v{DD+2*j+1}" for j in range(8)]
    P += [f"v_fmac_f32 v{NN+j}, v{t+2*j}, v{DD+2*j+1}" for j in range(8)]
    if OPT.get("quad", 0):
        P += [f"v_mul_f32 v{RQ+j}, v{MM+2*j}, v{MM+2*j+1}" for j in range(4)]
    return P


def weave(base, inserts):
    out = []
    ins = sorted(inserts, key=lambda x: x[0])
    k = 0
    for i, l in enumerate(base):
        while k < len(ins) and ins[k][0] <= i:
            out += ins[k][1]; k += 1
        out.append(l)
    while k < len(ins):
        out += ins[k][1]; k += 1
    return out


def trun(c, par, stage, role):
    z = zmf(1 - c)
    late = role == "B" and c == 1
    w = ["s_waitcnt lgkmcnt(0)"] if late else []
    if stage == 0:
        base = exps(c)
        pos = [0, 5, 10]
    elif stage == 1:
        base = exps(c) + rcps()
        pos = [10, 15, 20] if late else [0, 6, 12]
    else:
        base = cvts() + exps(c) + rcps()
        pos = [12, 17, 22, 6] if late else [0, 7, 13, 20]
    ins = [(pos[0], w + [z[0]])] + [(pos[k], [z[k]]) for k in (1, 2)]
    if stage >= 2:
        ins.append((pos[3], [ssmf(c, par ^ 1, stage < 4)]))
    return [f"s_setprio {2 if role == 'A' else 1}"] + weave(base, ins) + ["s_setprio 0"]


def w2_loads(fs):
    out = []
    for f in fs:
        if f in (4, 8):
            out.append(f"s_add_u32 s{t3}, s{sW2}, {1024*f}")
        so = sW2 if f < 4 else t3
        out.append(f"buffer_load_dwordx4 {vr(W2R+4*f,4)}, v4, s[{sWF}:{sWF+3}], s{so} offen offset:{(f & 3) * 1024}")
    return out


def blk1(par, role, vm=4, w2=()):
    nst = (par + 1) & 1
    pf, ao = pf_reads(nst), ao_reads(par + 1)
    out = [f"s_waitcnt vmcnt({vm})"] + pf[:2] + ao + pf[2:] + idx_reads(par + 3) + [so_read(par, par)] + w2_loads(w2)
    return out + (["s_waitcnt lgkmcnt(0)"] if role == "A" else [])


def blk2(par, role="B"):
    nst = (par + 1) & 1
    tr = OPT.get("trace")
    lim = f"s{sSW}" if role == "A" and OPT.get("sw", 1) else "0"
    return (dma(nst * 4096) + (["s_memtime s[90:91]"] if tr else [])
            + [f"s_sub_u32 s{sI}, s{sI}, 1", f"s_cmp_le_u32 s{sI}, {lim}"]
            + (["s_waitcnt lgkmcnt(0)", f"s_mov_b32 m0, s{sI}", "v_writelane_b32 v186, s90, m0"] if tr else []))


INC = [f"v_add_u32 v{BA}, {2*BLKSZ}, v{BA}", f"v_add_u32 v{BI}, {2*BLKSZ}, v{BI}", f"v_add_u32 v{IA}, 256, v{IA}"]


def drain(par):
    return (cvts() + rcps()[:2] + [ssmf(0, par)] + rcps()[2:] + ["s_nop 0"] + fms() + cvts() + ["s_nop 1", ssmf(1, par)])


DG, RA, RR, SA, SR, XWA = 228, 236, 237, 238, 239, 240
sRM, sOA, sOB, sSW, sS = 12, 14, 15, 16, 17


def epi_prelude():
    t = [PF + k for k in range(12)]
    hi, p0, p1, n, kg, i0, i1, i2 = t[:8]
    head = [f"v_lshrrev_b32 v{kg}, 4, v1", f"v_and_b32 v{n}, 15, v1", f"s_sub_u32 s{t0}, s{sS}, 16",
            f"v_lshl_add_u32 v{RA}, v{kg}, 8, v4", f"v_cmp_le_u32 vcc, s{t0}, v{n}", f"v_add_u32 v{RA}, {RING0}, v{RA}",
            f"v_add_u32 v{RR}, 256, v{RA}", "s_mov_b64 exec, vcc", f"v_add_u32 v{RR}, 0x8000, v{RA}", "s_mov_b64 exec, -1"]
    L = [f"v_and_b32 v{hi}, 0xffff0000, v{DEG}", f"v_lshlrev_b32 v{i0}, 2, v{n}", f"v_sub_f32 v{p1}, v{DEG}, v{hi}",
         f"v_add_u32 v{i1}, 64, v{i0}", f"v_and_b32 v{p0}, 0xffff0000, v{p1}", f"v_add_u32 v{i2}, 128, v{i0}",
         f"v_sub_f32 v{p1}, v{p1}, v{p0}", f"v_lshrrev_b32 v{hi}, 16, v{hi}", f"v_or_b32 v{p0}, v{p0}, v{hi}",
         f"v_lshrrev_b32 v{p1}, 16, v{p1}", f"v_mov_b32 v{DG+6}, 0", f"v_mov_b32 v{DG+7}, 0", f"v_lshlrev_b32 v{SA}, 3, v{kg}"]
    for tl, ix in enumerate((i0, i1, i2)):
        L += [f"ds_bpermute_b32 v{DG+2*tl}, v{ix}, v{p0}", f"ds_bpermute_b32 v{DG+2*tl+1}, v{ix}, v{p1}"]
    if OPT.get("ofull", 1):
        L += [f"s_movk_i32 s{t0}, 272", f"v_mad_u32_u24 v{SA}, v{n}, s{t0}, v{SA}", f"s_lshl_b32 s{t1}, s3, 5",
              f"v_add_u32 v{SA}, s{t1}, v{SA}", f"v_lshlrev_b32 v{SR}, 4, v{n}", f"v_mad_u32_u24 v{SR}, v{kg}, s{t0}, v{SR}",
              f"s_mul_i32 s{t0}, s3, {4*272}", f"v_add_u32 v{SR}, s{t0}, v{SR}", f"s_lshl_b32 s{t0}, s3, 2",
              f"s_sub_u32 s{t0}, s{sNB_}, s{t0}", f"s_sub_u32 s{t0}, s{t0}, 32", f"v_cmp_gt_i32 s[{sRM}:{sRM+1}], s{t0}, v{kg}",
              f"s_lshl_b32 s{sOA}, s{sN0}, 8", f"s_lshl_b32 s{t0}, s3, 10", f"s_add_u32 s{sOA}, s{sOA}, s{t0}",
              f"s_add_u32 s{sOB}, s{sOA}, 8192"]
        return head, L
    L += [f"v_lshl_add_u32 v{SA}, v{n}, 8, v{SA}", f"s_sub_u32 s{t0}, s{sNB_}, 32",
          f"v_cmp_gt_u32 s[{sRM}:{sRM+1}], s{t0}, v{n}", f"s_lshl_b32 s{sOA}, s{sN0}, 8", f"s_lshl_b32 s{t0}, s3, 5",
          f"s_add_u32 s{sOA}, s{sOA}, s{t0}", f"s_add_u32 s{sOB}, s{sOA}, 4096", f"s_add_u32 s{t1}, s{sOA}, 8192"]
    return head, L


def fast_loop(a, role):
    L = "K2" + role
    em = lambda ls: [a(l) for l in ls]
    A = role == "A"
    T = lambda c, par, stage: trun(c, par, stage, role)
    def unit(T_, blk, P):
        em(T_)
        em(blk + P if A else P + blk)
    unit(T(0, 0, 0), blk1(0, role, 4, (5, 6)), prun(0, False))
    unit(T(1, 0, 1), blk2(0), prun(1))
    unit(T(0, 1, 2), blk1(1, role, 6, (7, 8)), prun(0))
    if A:
        em(T(1, 1, 3)); em(blk2(1, role))
        a(f"s_cbranch_scc1 {L}_EXIT1")
        a.raw(".p2align 6")
        a.label(f"{L}_LOOP")
        em(INC + prun(1))
        unit(T(0, 0, 4), blk1(0, role), prun(0))
        em(T(1, 0, 4)); em(blk2(0, role))
        a(f"s_cbranch_scc1 {L}_EXIT0")
        em(prun(1))
        unit(T(0, 1, 4), blk1(1, role), prun(0))
        em(T(1, 1, 4)); em(blk2(1, role))
        a(f"s_cbranch_scc0 {L}_LOOP")
    else:
        unit(T(1, 1, 3), blk2(1), prun(1))
        a(f"s_cbranch_scc1 {L}_EXIT1")
        a.raw(".p2align 6")
        a.label(f"{L}_LOOP")
        unit(T(0, 0, 4), blk1(0, role), INC + prun(0))
        unit(T(1, 0, 4), blk2(0), prun(1))
        a(f"s_cbranch_scc1 {L}_EXIT0")
        a.label(f"{L}_MID")
        unit(T(0, 1, 4), blk1(1, role), prun(0))
        unit(T(1, 1, 4), blk2(1), prun(1))
        a(f"s_cbranch_scc0 {L}_LOOP")
    for par in (1, 0):
        a.label(f"{L}_EXIT{par}")
        if A:
            em(prun(1))
            if OPT.get("sw", 1):
                a(f"s_cmp_lg_u32 s{sI}, 0")
                a(f"s_cbranch_scc1 K2B_{'LOOP' if par else 'MID'}")
        em(drain(par))
        a("s_branch K2_EPI")


def gen_k2(force_slow=False, diag=False, nogather=False, **opt):
    OPT.clear(); OPT.update(opt)
    a = Asm()
    a.diag = diag
    smap = OPT.get("smap", dict(start=0, tab=1, rec=2, recl=3, b4=4, loop=5, epi=6, epb=7, end=8, drained=9))
    st = lambda name: a.stamp(smap[name]) if name in smap else None
    hi = lambda: a("s_setprio 3") if OPT.get("prio", True) else None
    lo = lambda: a("s_setprio 0") if OPT.get("prio", True) else None
    a(f"s_cmp_ge_u32 s2, {NBKT}")
    a("s_cbranch_scc1 K2_END")
    st("start")
    a.cyc(88)
    if diag:
        a("s_mov_b32 s89, s2")
    a("s_load_dwordx2 s[22:23], s[0:1], 80")
    a("s_load_dwordx2 s[4:5], s[0:1], 0")
    a("s_load_dwordx2 s[20:21], s[0:1], 64")
    Z = HF
    NZ0, NZ1, NZ2 = OPT.get("nz", (14, 14, 0))
    NLINE = (MISC + 256) // 256
    NZ = (NLINE + 7) // 8
    def clear(k0, k1):
        if k0 < k1:
            a("s_lshl_b32 m0, s3, 8")
            a("s_nop 0")
        for k in range(k0, k1):
            if k == NZ - 1:
                a(f"s_min_u32 s{t0}, s3, {NLINE - 1 - 8*k}")
                a(f"s_lshl_b32 m0, s{t0}, 8")
                a("s_nop 0")
            a(f"ds_write_addtid_b32 v{Z} offset:{2048*k}")
    LA = AO
    LR, L64, Q1 = AO + 4, AO + 5, AO + 6
    CST = MM
    MX = [QB, QB + 4, QB + 8, QB + 12, NN, NN + 4, W2R + 28, W2R + 32]
    OH, OX, BIL = 186, 187, AO + 7
    XA = W2R + 20
    a("v_lshrrev_b32 v2, 6, v0")
    a("v_and_b32 v1, 63, v0")
    a("v_readfirstlane_b32 s3, v2")
    a(f"v_mov_b32 v{Z}, 0")
    clear(0, NZ0)
    a(f"s_and_b32 s{t0}, s2, 7")
    a("s_lshr_b32 s2, s2, 3")
    a(f"s_lshl_b32 s{t0}, s{t0}, 5")
    a(f"s_add_u32 s2, s2, s{t0}")
    a(f"s_lshr_b32 s{sWIN}, s3, 2")
    a("v_lshrrev_b32 v3, 2, v0")
    a("v_lshlrev_b32 v7, 2, v3")
    a(f"v_mov_b32 v{VCNT}, 0")
    a(f"v_cmp_gt_u32 vcc, {NCHUNK}, v3")
    a(f"s_lshl_b32 s{t3}, s2, 9")
    a(f"s_mov_b32 s{sTAB+2}, {hex(NBKT * 512)}")
    a(f"s_mov_b32 s{sTAB+3}, 0x00020000")
    a(f"s_and_b32 s{sWV}, s3, 3")
    a(f"s_lshl_b32 s{t0}, s2, 17")
    a(f"s_add_u32 s{t0}, s{t0}, {BM-1}")
    a(f"s_add_u32 s{t2}, s{t0}, 0x20000")
    a(f"s_mul_hi_u32 s{sN0}, s{t0}, {hex(START_MAGIC)}")
    a(f"s_mul_hi_u32 s{t2}, s{t2}, {hex(START_MAGIC)}")
    a(f"s_lshr_b32 s{sN0}, s{sN0}, {START_SH}")
    a(f"s_lshr_b32 s{t2}, s{t2}, {START_SH}")
    a(f"s_min_u32 s{t2}, s{t2}, {N}")
    a(f"s_sub_u32 s{sNB_}, s{t2}, s{sN0}")
    a(f"s_lshl_b32 s{sWBO}, s3, 13")
    a(f"s_add_u32 s{sRING}, s{sWBO}, {RING0}")
    a("s_mov_b64 exec, vcc")
    a("s_waitcnt lgkmcnt(0)")
    a(f"s_add_u32 s{sTAB}, s22, {hex(WS_TAB)}")
    a(f"s_addc_u32 s{sTAB+1}, s23, 0")
    a(f"buffer_load_dword v{VCNT}, v7, s[{sTAB}:{sTAB+3}], s{t3} offen")
    a("s_mov_b64 exec, -1")
    clear(NZ0, NZ0 + NZ1)
    a("v_lshrrev_b32 v5, 4, v1")
    a("v_and_b32 v6, 15, v1")
    a("v_xor_b32 v6, v6, v5")
    a(f"s_lshl_b32 s{t1}, s{sWV}, 2")
    a(f"v_xor_b32 v6, s{t1}, v6")
    a("v_lshlrev_b32 v6, 4, v6")
    a("v_lshl_add_u32 v6, v5, 8, v6")
    a("v_lshlrev_b32 v4, 4, v1")
    a(f"s_lshl_b32 s{t1}, s{sN0}, 8")
    a(f"s_lshl_b32 s{t2}, s3, 10")
    a(f"s_add_u32 s{t1}, s{t1}, s{t2}")
    a(f"s_add_u32 m0, s{t2}, {XW}")
    a.srd(sX, 4, N * 256)
    a(f"buffer_load_dwordx4 v6, s[{sX}:{sX+3}], s{t1} offen lds")
    a("s_cmp_ge_u32 s3, 2")
    a("s_cbranch_scc1 K2_X2")
    a(f"s_add_u32 m0, s{t2}, {XW + 8192}")
    a(f"s_add_u32 s{t1}, s{t1}, 8192")
    a(f"buffer_load_dwordx4 v6, s[{sX}:{sX+3}], s{t1} offen lds")
    a.label("K2_X2")
    a(f"s_mov_b32 m0, s{sRING}")
    a.srd(sWF, 22, NFRAG * 1024, WS_WB)
    for z in range(4):
        a(f"buffer_load_dwordx4 v4, s[{sWF}:{sWF+3}], s{sWBO} offen offset:{1024*z} lds")
    a.srd(sREC, 22, E * RECB, WS_REC)
    a(f"s_mov_b32 s{sLO}, 0")
    a(f"s_mov_b32 s{sCAP}, {CAP1}")
    a(f"s_mov_b32 s{sF1}, 1")
    a(f"s_mov_b32 s{sF2}, 1")
    a(f"s_lshl_b32 s{sLIST}, s3, 9")
    a(f"s_add_u32 s{sLIST}, s{sLIST}, {LIST}")
    a("v_and_b32 v7, 3, v0")
    a(f"s_movk_i32 s{t0}, {CH}")
    a(f"v_mad_u32_u24 v{VREC}, v3, s{t0}, v7")
    a(f"v_mul_u32_u24 v{VREC}, {RECB}, v{VREC}")
    a(f"v_xor_b32 v{Q1}, 3, v7")
    a(f"v_lshlrev_b32 v{Q1}, 16, v{Q1}")
    a(f"v_lshl_add_u32 v{LR}, v1, 2, s{sLIST}")
    a(f"v_add_u32 v{L64}, 64, v1")
    a("v_and_b32 v2, 31, v1")
    a("v_lshrrev_b32 v5, 5, v1")
    a(f"s_lshl_b32 s{t0}, s{sWIN}, 4")
    a(f"v_add_u32 v{XA}, 12, v2")
    a(f"v_lshrrev_b32 v{XA}, 5, v{XA}")
    a(f"v_mad_i32_i24 v{XA}, v{XA}, -4, v2")
    a(f"v_add_u32 v{XA}, -4, v{XA}")
    a(f"v_min_u32 v{XA}, 23, v{XA}")
    a(f"v_add_u32 v{XA}, s{t0}, v{XA}")
    a(f"v_and_b32 v7, 15, v{XA}")
    a("v_xor_b32 v7, v7, v5")
    a("v_lshlrev_b32 v7, 4, v7")
    a(f"v_lshl_add_u32 v{XA}, v{XA}, 8, v7")
    a(f"v_add_u32 v{XA}, {XW}, v{XA}")
    for s in range(1, 8):
        a(f"v_xor_b32 v{XA+s}, {32*s}, v{XA}")
    a(f"s_lshl_b32 s{t0}, s{sWV}, 14")
    a(f"s_add_u32 s{t0}, s{t0}, {RING0}")
    a(f"v_add_u32 v3, s{t0}, v4")
    a.srd(sP, 22, N, WS_P, stride=512)
    a.srd(sOUT, 20, N * 256)
    a(f"s_mov_b32 s{sSINIT}, 0")
    a(f"s_mul_i32 s{sBLK}, s{sWIN}, {BLKW}")
    a(f"s_mul_i32 s{sIDX}, s{sWIN}, {IDXW}")
    a(f"s_add_u32 s{sIDX}, s{sIDX}, {IDX}")
    a(f"s_lshl_b32 s{t0}, s{sN0}, 2")
    a(f"s_sub_u32 s{sCA}, {CNT}, s{t0}")
    a(f"s_mov_b32 s{sSA}, {hex((-4*CNT) & 0xffffffff)}")
    a(f"s_mov_b32 s{sNW}, {IDX}")
    a(f"s_mul_i32 s{sW2}, s3, {9*1024}")
    a(f"s_add_u32 s{sW2}, s{sW2}, {WS_W2F - WS_WB}")
    clear(NZ0 + NZ1, NZ0 + NZ1 + NZ2)
    hi()
    a("s_waitcnt vmcnt(5)")
    st("tab")
    a(f"v_add_u32 v7, v{VCNT}, v{Q1}")
    a(f"v_and_b32 v6, 0xffff, v{VCNT}")
    a(f"v_lshrrev_b32 v{VCNT}, 18, v7")
    a(f"v_mad_u32_u24 v{VREC}, v6, {RECB}, v{VREC}")
    a(f"v_add_u32 v{LA+1}, {4*RECB}, v{VREC}")
    D = lambda src, ctl: a(f"v_add_u32_dpp v{VBASE}, v{src}, v{src} {ctl}")
    D(VCNT, "row_shr:1 row_mask:0xf bank_mask:0xf bound_ctrl:0")
    a(f"v_add_u32 v{LA+2}, {8*RECB}, v{VREC}")
    a(f"v_add_u32 v{LA+3}, {12*RECB}, v{VREC}")
    D(VBASE, "row_shr:2 row_mask:0xf bank_mask:0xf bound_ctrl:0")
    a(f"v_cmp_lt_u32 vcc, 4, v{VCNT}")
    a("s_nop 0")
    D(VBASE, "row_shr:4 row_mask:0xf bank_mask:0xf bound_ctrl:0")
    a("s_nop 1")
    D(VBASE, "row_shr:8 row_mask:0xf bank_mask:0xf bound_ctrl:0")
    a("s_nop 1")
    D(VBASE, "row_bcast:15 row_mask:0xa bank_mask:0xf")
    a("s_nop 1")
    D(VBASE, "row_bcast:31 row_mask:0xc bank_mask:0xf")
    a("s_cbranch_vccnz K2_GEN0")
    a(f"v_readlane_b32 s{sTW}, v{VBASE}, 63")
    a(f"v_sub_u32 v{VBASE}, v{VBASE}, v{VCNT}")
    a(f"v_lshl_add_u32 v6, v{VBASE}, 2, s{sLIST}")
    a(f"s_cmp_gt_u32 s{sTW}, {CAP1}")
    a("s_cbranch_scc1 K2_GEN")
    a(f"s_mov_b32 s{t0}, s{sTW}")
    for j in range(4):
        a(f"v_cmpx_lt_u32 vcc, {j}, v{VCNT}")
        a(f"ds_write_b32 v6, v{VREC if j == 0 else LA+j} offset:{4*j}")
    a.label("K2_LISTED")
    a("s_mov_b64 exec, -1")
    a(f"ds_read_b32 v{LA}, v{LR}")
    a(f"ds_read_b32 v{LA+1}, v{LR} offset:256")
    a(f"v_cmp_gt_u32 s[{sM0}:{sM0+1}], s{t0}, v1")
    a(f"v_cmp_gt_u32 s[{sM1}:{sM1+1}], s{t0}, v{L64}")
    R = (PF, PF + 4)
    for r in range(2):
        a(f"s_waitcnt lgkmcnt({1-r})")
        a(f"buffer_load_dwordx3 {vr(R[r],3)}, v{LA+r}, s[{sREC}:{sREC+3}], 0 offen")
    lo()
    st("rec")
    a(f"s_cmp_eq_u32 s{sF1}, 0")
    a("s_cbranch_scc1 K2_NF2")
    a(f"s_lshl_b32 s{t1}, s3, 11")
    a(f"s_add_u32 m0, s{t1}, {WBS}")
    a(f"s_add_u32 s{t0}, s{sWBO}, 4096")
    for z in range(2):
        a(f"buffer_load_dwordx4 v4, s[{sWF}:{sWF+3}], s{t0} offen offset:{1024*z} lds")
    L67 = OPT.get("l67", 1)
    if L67:
        a(f"s_add_u32 m0, s{sRING}, 2048")
        a("s_nop 0")
        for z in range(2, 4):
            a(f"buffer_load_dwordx4 v4, s[{sWF}:{sWF+3}], s{t0} offen offset:{1024*z} lds")
    a.label("K2_NF2")
    clear(NZ0 + NZ1 + NZ2, NZ)
    a(f"v_mov_b32 v{Z+4}, {PADIDX}")
    a("s_lshl_b32 m0, s3, 8")
    a(f"s_min_u32 s{t0}, s3, 4")
    a(f"ds_write_addtid_b32 v{Z+4} offset:{IDX}")
    a(f"s_lshl_b32 m0, s{t0}, 8")
    a("s_nop 0")
    a(f"ds_write_addtid_b32 v{Z+4} offset:{IDX + 2048}")
    a(f"s_cmp_eq_u32 s{sF1}, 0")
    a("s_cbranch_scc1 K2_NF3")
    a(f"v_and_b32 v{IX}, 7, v1")
    a("v_lshrrev_b32 v7, 4, v1")
    a(f"v_xor_b32 v7, v{IX}, v7")
    a("v_lshlrev_b32 v7, 4, v7")
    a(f"s_lshl_b32 s{t0}, s{sWV}, 7")
    a(f"v_add_u32 v{IX+1}, s{t0}, v7")
    a(f"v_xor_b32 v{IX+3}, 64, v{IX+1}")
    a(f"v_mov_b32 v{IX+5}, v{IX+1}")
    a(f"v_mov_b32 v{IX+7}, v{IX+3}")
    a(f"v_mov_b32 v{DEG}, 0")
    a(f"s_lshl_b32 s{t0}, s{sWV}, 11")
    a(f"s_add_u32 s{t0}, s{t0}, {WS_CST - WS_WB}")
    st("pb2")
    a(f"s_waitcnt vmcnt({6 if L67 else 4}) lgkmcnt(0)")
    a("s_barrier")
    st("b2")
    for s in range(4):
        for c in range(2):
            a(f"ds_read_b128 {vr(WBQ+4*(4*c+s),4)}, v3 offset:{(8*c+s)*1024}")
    for c in range(2):
        a(f"buffer_load_dwordx4 {vr(CST+4*c,4)}, v4, s[{sWF}:{sWF+3}], s{t0} offen offset:{1024*c}")
    if not L67:
        a(f"s_lshl_b32 s{t0}, s{sWV}, 14")
    for c in range(0 if L67 else 2):
        a(f"s_add_u32 s{t0}, s{t0}, {4096 if c == 0 else 8192}")
        for s in (6, 7):
            a(f"buffer_load_dwordx4 {vr(DD+8*c+4*(s-6),4)}, v4, s[{sWF}:{sWF+3}], s{t0} offen offset:{1024*(s-4)}")
    a("s_cmp_lg_u32 s3, 7")
    a("s_cbranch_scc1 K2_NMX")
    a.srd(sMX, 22, NGEMM * 16, WS_PMAX)
    a(f"s_movk_i32 s{t0}, 0x1000")
    for k in range(5):
        so = "0" if k < 4 else f"s{t0}"
        a(f"buffer_load_dwordx4 {vr(MX[k],4)}, v4, s[{sMX}:{sMX+3}], {so} offen offset:{(k & 3) * 1024}")
    a.srd(sMX, 22, NCHUNK * 20, WS_EMAX)
    for k in range(3):
        a(f"buffer_load_dwordx4 {vr(MX[5+k],4)}, v4, s[{sMX}:{sMX+3}], 0 offen offset:{1024*k}")
    a(f"s_waitcnt vmcnt({14 if L67 else 16})")
    a("s_branch K2_J3")
    a.label("K2_NMX")
    a(f"s_waitcnt vmcnt({6 if L67 else 8})")
    a.label("K2_J3")
    hi()
    st("recl")
    AC = (PF + 8, PF + 9); RK = (PF + 10, PF + 11); SU = (PF + 12, PF + 13); BP = (PF + 14, PF + 15)
    a("v_mov_b32 v6, 1")
    for r in range(2):
        a(f"v_lshrrev_b32 v{AC[r]}, 14, v{R[r]+2}")
    for r in range(2):
        a(f"v_lshl_add_u32 v{AC[r]}, v{AC[r]}, 2, s{sCA}")
    for r in range(2):
        a(f"s_mov_b64 exec, s[{(sM0, sM1)[r]}:{(sM0, sM1)[r]+1}]")
        a(f"ds_add_rtn_u32 v{RK[r]}, v{AC[r]}, v6")
    a("s_mov_b64 exec, -1")
    a(f"v_mov_b32 v7, {MISC}")
    a(f"v_mov_b32 v{Z+4}, s{sTW}")
    a(f"v_lshlrev_b32 v{Z+5}, 2, v1")
    a("s_mov_b64 exec, 1")
    a(f"ds_max_u32 v7, v{Z+4}")
    a("s_mov_b64 exec, -1")
    a(f"v_add_u32 v6, {CNT}, v{Z+5}")
    BX = (SO0, SO0 + 1); EW = (HB, AO)
    a("s_waitcnt lgkmcnt(0)")
    st("pb3")
    a("s_barrier")
    st("b3")
    a(f"ds_read_b32 v{Z+5}, v6")
    a(f"ds_read_b32 v{Z+4}, v7")
    for l in w2_loads(range(0, 2)): a(l)
    for r in range(2):
        a(f"v_and_b32 v{R[r]+2}, 0x3fff, v{R[r]+2}")
    a("s_waitcnt lgkmcnt(1)")
    a(f"v_add_u32 v7, 1, v{Z+5}")
    a("v_and_b32 v7, -2, v7")
    a("v_mov_b32 v6, v7")
    a(f"v_cvt_f32_u32 v{Z+5}, v{Z+5}")
    D7 = lambda ctl: a(f"v_add_u32_dpp v7, v7, v7 {ctl}")
    D7("row_shr:1 row_mask:0xf bank_mask:0xf bound_ctrl:0")
    a(f"v_mov_b32 v{Z+6}, {BLKSZ - 512}")
    a(f"v_mov_b32 v{Z+7}, {BLKSZ}")
    D7("row_shr:2 row_mask:0xf bank_mask:0xf bound_ctrl:0")
    a(f"v_add_u32 v{BA}, s{sBLK}, v4")
    a(f"v_lshrrev_b32 v{IA}, 3, v1")
    D7("row_shr:4 row_mask:0xf bank_mask:0xf bound_ctrl:0")
    a(f"v_lshl_add_u32 v{IA}, v{IA}, 2, s{sIDX}")
    a("s_waitcnt lgkmcnt(0)")
    D7("row_shr:8 row_mask:0xf bank_mask:0xf bound_ctrl:0")
    a(f"v_readfirstlane_b32 s{t2}, v{Z+4}")
    a(f"v_mov_b32 v{Z+4}, 0x3f80")
    D7("row_bcast:15 row_mask:0xa bank_mask:0xf")
    a(f"v_mov_b32 v{Z+3}, {BLKSZ - 128}")
    a("s_nop 0")
    D7("row_bcast:31 row_mask:0xc bank_mask:0xf")
    a(f"s_cmp_eq_u32 s{sCAP}, {CAP2}")
    a(f"v_readlane_b32 s{t1}, v7, 63")
    a("v_sub_u32 v6, v7, v6")
    a("s_cbranch_scc1 K2_FIX")
    a(f"s_add_u32 s{t0}, s{t1}, 63")
    a(f"s_lshr_b32 s{t0}, s{t0}, 6")
    a(f"s_lshl_b32 s{t0}, s{t0}, 5")
    a.label("K2_CUT")
    a(f"s_sub_u32 s{sS}, s{t1}, s{t0}")
    a(f"v_cmp_ge_u32 vcc, s{t0}, v7")
    a(f"v_cmp_le_i32 s[{sRM}:{sRM+1}], s{sS}, v7")
    a(f"s_and_b32 s{sS}, vcc_lo, 0xff8000")
    a(f"s_and_b32 s{sS}, s{sS}, s{sRM}")
    a("s_cbranch_scc0 K2_CUT2")
    a(f"s_flbit_i32_b32 s{sS}, s{sS}")
    a(f"s_sub_u32 s{sS}, 31, s{sS}")
    a.label("K2_CUTD")
    a(f"v_readlane_b32 s{t0}, v7, s{sS}")
    a(f"s_add_u32 s{sS}, s{sS}, 1")
    a(f"s_lshl_b64 exec, -1, s{sS}")
    a(f"s_sub_u32 s{sRM}, {MAXT*32}, s{t0}")
    a(f"v_add_u32 v6, s{sRM}, v6")
    a("s_mov_b64 exec, -1")
    for r in range(2):
        a(f"ds_bpermute_b32 v{BP[r]}, v{AC[r]}, v6")
    a(f"s_sub_u32 s{t1}, s{t1}, s{t0}")
    for l in w2_loads(range(2, 5)): a(l)
    a(f"s_mov_b32 s{sF1}, 0")
    a(f"s_cmp_eq_u32 s{sWIN}, 0")
    a(f"s_cselect_b32 s{sNT}, s{t0}, s{t1}")
    a(f"s_add_u32 s{sNT}, s{sNT}, 31")
    a(f"s_lshr_b32 s{sNT}, s{sNT}, 5")
    a(f"s_add_u32 s{sSW}, s{t0}, 31")
    a(f"s_lshr_b32 s{sSW}, s{sSW}, 5")
    a(f"s_sub_u32 s{sSW}, s{sNT}, s{sSW}")
    a(f"s_max_i32 s{sSW}, s{sSW}, 0")
    a(f"s_max_u32 s{t0}, s{t0}, s{t1}")
    a(f"s_cmp_gt_u32 s{t0}, {MAXT*32}")
    a(f"s_cselect_b32 s{t0}, 0x7fffffff, s{t2}")
    a(f"s_cmp_gt_u32 s{t0}, s{sCAP}")
    a("s_cbranch_scc1 K2_OV")
    a.label("K2_NOOV")
    t = [T1 + k for k in range(8)]
    BO = (SO0 + 2, SO0 + 3)
    a(f"s_lshl_b32 s{t0}, s{sS}, 2")
    a(f"s_add_u32 s{t0}, s{t0}, {CNT}")
    for r in range(2):
        a(f"s_waitcnt lgkmcnt({1-r})")
        a(f"v_add_u32 v{BP[r]}, v{BP[r]}, v{RK[r]}")
        a(f"v_lshl_add_u32 v{t[r]}, v{BP[r]}, 2, s{sNW}")
    for r in range(2):
        a(f"s_mov_b64 exec, s[{(sM0, sM1)[r]}:{(sM0, sM1)[r]+1}]")
        if not nogather:
            a(f"ds_write_b32 v{t[r]}, v{R[r]+2}")
    a("s_mov_b64 exec, -1")
    a(f"v_add_f32 v{DEG}, v{DEG}, v{Z+5}")
    def lookups():
        for r in range(2):
            a(f"v_cmpx_le_u32 vcc, s{t0}, v{AC[r]}")
            a(f"v_add_u32 v{AC[r]}, -64, v{AC[r]}")
            a("s_mov_b64 exec, -1")
        for r in range(2):
            a(f"ds_bpermute_b32 v{BO[r]}, v{AC[r]}, v{OH}")
            a(f"ds_bpermute_b32 v{BX[r]}, v{AC[r]}, v{OX}")

    def scatter(extra=()):
        extra = list(extra)
        cnt = [0]
        def e(l):
            a(l)
            cnt[0] += 1
            if extra and l.startswith('v_') and cnt[0] % 4 == 0:
                a(extra.pop(0))
        for r in range(2):
            e(f"v_lshl_add_u32 v{SU[r]}, v{AC[r]}, 2, s{sSA}")
        a("s_waitcnt lgkmcnt(0)")
        for r in range(2):
            p = BP[r]
            e(f"v_lshrrev_b32 v{t[0]}, 5, v{p}")
            e(f"v_mul_u32_u24 v{t[2]}, v{t[0]}, v{Z+6}")
            e(f"v_mad_u32_u24 v{t[3]}, v{t[0]}, v{Z+7}, v{SU[r]}")
            e(f"v_lshl_add_u32 v{t[2]}, v{p}, 4, v{t[2]}")
            e(f"v_mul_u32_u24 v{t[6]}, v{t[0]}, v{Z+3}")
            e(f"v_and_b32 v{t[4]}, 4, v{p}")
            e(f"v_lshrrev_b32 v{t[5]}, 1, v{p}")
            e(f"v_lshl_add_u32 v{t[3]}, v{t[4]}, 7, v{t[3]}")
            e(f"v_add_u32 v{t[4]}, v{BO[r]}, v{t[2]}")
            e(f"v_and_or_b32 v{t[3]}, v{t[5]}, 12, v{t[3]}")
            e(f"v_lshl_add_u32 v{t[6]}, v{p}, 2, v{t[6]}")
            e(f"v_and_or_b32 v{t[3]}, v{p}, 2, v{t[3]}")
            a(f"s_mov_b64 exec, s[{(sM0, sM1)[r]}:{(sM0, sM1)[r]+1}]")
            a(f"ds_write2_b32 v{t[2]}, v{R[r]}, v{R[r]+1} offset0:0 offset1:128")
            a(f"ds_write_b16 v{t[4]}, v{Z+4}")
            a(f"ds_write_b32 v{t[6]}, v{BX[r]} offset:{O_IX}")
            a(f"ds_write_b16 v{t[3]}, v{Z+4} offset:{O_SO}")
            a("s_mov_b64 exec, -1")
        while extra: a(extra.pop(0))
    scatter.n = 1
    a("s_waitcnt vmcnt(5) lgkmcnt(0)")
    st("pb4")
    a("s_barrier")
    st("b4")
    for l in idx_reads(0): a(l)
    a(f"s_cmp_eq_u32 s{sF2}, 0")
    a("s_cbranch_scc1 K2_NF4")
    WB2 = HB
    QE = OPT.get("qe", 2)
    dq = DsTrack(a)
    def qm(s):
        return [mfma(S + 16*c, T0 + 4*s, WBQ + 4*(4*c+s) if s < 4 else WB2 + 4*(2*c+s-4) if s < 6 else DD + 8*c + 4*(s-6), None if s == 0 else S + 16*c) for c in range(2)]
    WV = OPT.get("wv", 0)
    QE = OPT.get("qe", 2)
    D1 = OPT.get("d1", 1)
    for s in range(WV):
        a(f"ds_read_b128 {vr(T0+4*s,4)}, v{XA+s}")
    a(f"s_waitcnt lgkmcnt({WV})")
    for l in dma(0): a(l)
    HH = 5
    a("v_add_u32 v6, 20, v2")
    a("v_lshrrev_b32 v6, 5, v6")
    a("v_lshrrev_b32 v7, 2, v2")
    a("v_add3_u32 v6, v6, v7, 1")
    a(f"v_bfe_u32 v{OH}, v6, 1, 1")
    a(f"v_and_b32 v{OX}, 1, v6")
    a(f"v_lshl_add_u32 v{OH}, v{OX}, 1, v{OH}")
    a(f"v_lshlrev_b32 v{OH}, 2, v{OH}")
    a("v_lshrrev_b32 v6, 2, v6")
    a(f"v_lshl_add_u32 v{OX}, v6, 4, v{OH}")
    a("v_and_b32 v7, 3, v2")
    a(f"v_lshlrev_b32 v{OX}, v{OX}, v7")
    a(f"v_or_b32 v{OX}, 0x40004, v{OX}")
    a(f"v_lshl_add_u32 v{OH}, v6, 9, v{OH}")
    a(f"v_lshlrev_b32 v{BIL}, 2, v2")
    a(f"v_lshl_add_u32 v{BIL}, v{HH}, 1, v{BIL}")
    lookups()
    a("v_bfe_u32 v6, v1, 1, 3")
    a(f"v_xor_b32 v6, v6, v{HH}")
    a("v_lshlrev_b32 v6, 4, v6")
    a("v_lshl_add_u32 v6, v2, 7, v6")
    a(f"v_add_u32 v{PA}, s{sRING}, v6")
    for k in range(1, 4):
        a(f"v_xor_b32 v{PA+k}, {32*k}, v{PA}")
    a("v_and_b32 v7, 1, v1")
    a("v_lshlrev_b32 v7, 4, v7")
    a("v_mov_b32 v6, 0x3f80")
    a("v_lshlrev_b32 v7, v7, v6")
    for i in range(2):
        a(f"v_mov_b32 v{IDN+4*i}, 0")
    for i in range(2):
        a(f"s_mov_b32 exec_lo, {hex(3 << (16*i))}")
        a(f"s_mov_b32 exec_hi, {hex(3 << (16*i + 8))}")
        a(f"v_mov_b32 v{IDN+4*i}, v7")
    a("s_mov_b64 exec, -1")
    fl = [f"s_lshl_b32 s{t0}, s{sWV}, 12", f"s_add_u32 s{t0}, s{t0}, {WBS}", f"v_add_u32 v2, s{t0}, v4"]
    for q in range(1, 4):
        a(fl[q-1])
        for i in range(2):
            a(f"v_mov_b32_dpp v{IDN+4*i+q}, v{IDN+4*i+q-1} row_shr:2 row_mask:0xf bank_mask:0xf bound_ctrl:0")
    a(f"v_add_u32 v{BI}, s{sBLK}, v{BIL}")
    st("dma0")
    if WV:
        a("s_waitcnt lgkmcnt(0)")
    scatter([l for s in range(WV) for l in qm(s)])
    st("scat")
    for s in range(WV, QE):
        dq(f"ds_read_b128 {vr(T0+4*s,4)}, v{XA+s}", f"x{s}")
    for l in idx_reads(1): dq(l, "w")
    for s in range(4, 8 if L67 else 6):
        for c in range(2):
            if s < 6:
                dq(f"ds_read_b128 {vr(WB2+4*(2*c+s-4),4)}, v2 offset:{(2*c+s-4)*1024}", "w")
            else:
                dq(f"ds_read_b128 {vr(DD+8*c+4*(s-6),4)}, v3 offset:{8192*c+4096+(s-6)*1024}", "w")
    lo()
    for s in range(WV, QE):
        dq.wait(f"x{s}")
        for l in qm(s): a(l)
    for s in range(max(WV, QE), 8):
        dq(f"ds_read_b128 {vr(T0+4*s,4)}, v{XA+s}", f"x{s}")
    a("s_cmp_lg_u32 s3, 7")
    a("s_cbranch_scc1 K2_NMX2")
    mx = [MX[k] + q for k in range(5) for q in range(4)]
    for k in range(1, 10):
        a(f"v_max3_u32 v{mx[0]}, v{mx[0]}, v{mx[2*k-1]}, v{mx[2*k]}")
    a(f"v_max_u32 v{Z}, v{mx[0]}, v{mx[19]}")
    me = [MX[k] + q for k in range(5, 8) for q in range(4)]
    for k in range(1, 6):
        a(f"v_max3_u32 v{me[0]}, v{me[0]}, v{me[2*k-1]}, v{me[2*k]}")
    a(f"v_max_u32 v{Z+1}, v{me[0]}, v{me[11]}")
    for sh in (1, 2, 4, 8):
        a("s_nop 0")
        for k in range(2):
            a(f"v_max_u32_dpp v{Z+k}, v{Z+k}, v{Z+k} row_shr:{sh} row_mask:0xf bank_mask:0xf bound_ctrl:0")
    for bc, rm in ((15, "0xa"), (31, "0xc")):
        a("s_nop 0")
        for k in range(2):
            a(f"v_max_u32_dpp v{Z+k}, v{Z+k}, v{Z+k} row_bcast:{bc} row_mask:{rm} bank_mask:0xf")
    a(f"v_mov_b32 v7, {MISC + 4}")
    a("s_mov_b32 exec_lo, 0")
    a("s_mov_b32 exec_hi, 0x80000000")
    a(f"ds_write2_b32 v7, v{Z}, v{Z+1} offset0:0 offset1:1")
    a("s_mov_b64 exec, -1")
    a("s_waitcnt lgkmcnt(0)")
    a.label("K2_NMX2")
    a(f"v_mov_b32 v7, {MISC + 4}")
    dm = dma(4096)
    early = QE < 8
    if early:
        dq.wait("w")
        st("pb5")
        a("s_barrier")
        st("b5")
        if D1 == 1:
            for l in dm: a(l)
        st("dma1")
        dq(f"ds_read2_b32 {vr(Z+4,2)}, v7 offset0:0 offset1:1")
    for s in range(max(WV, QE), 8):
        dq.wait(f"x{s}")
        for c, l in enumerate(qm(s)):
            a(l)
            if D1 == 2 and s >= 4:
                a(dm[3*(s-4) + 2*c])
    st("q8")
    a(f"s_mov_b32 s{sSLOW}, {1 if force_slow else 0}")
    a(f"s_mov_b32 s{sF2}, 0")
    a(f"s_mov_b32 s{sNB}, 1")
    a("s_nop 7")
    for c in range(2):
        q = S + 16*c
        a(f"v_max_f32 v6, |v{q}|, |v{q+1}|")
        for r in range(2, 16, 2):
            a(f"v_max3_f32 v6, |v{q+r}|, |v{q+r+1}|, v6")
        for p in range(8):
            a(f"v_cvt_pk_bf16_f32 v{QB+8*c+p}, v{q+2*p}, v{q+2*p+1}")
        a("s_mov_b32 exec_hi, 0")
        for p in range(2):
            a(f"v_mov_b32 v{QB+8*c+4*p}, v{CST+4*c+p}")
        a("s_mov_b32 exec_hi, -1")
        if c == 0:
            a("s_waitcnt lgkmcnt(0)")
        a(f"v_fma_f32 v7, v{Z+5}, v{CST+4*c+3}, v{Z+4}")
        a("v_add_f32 v6, v7, v6")
        a(f"v_cmp_nge_f32 vcc, {hex(f32bits(30.0 if OPT.get('quad', 0) else 60.0))}, v6")
        a("s_cmp_lg_u64 vcc, 0")
        a(f"s_cselect_b32 s{sSLOW}, 1, s{sSLOW}")
        if c == 0 and OPT.get("pfe", 0):
            for l in ao_reads(0) + idx_reads(2): a(l)
            a("s_waitcnt vmcnt(4)")
            for l in pf_reads(0): a(l)
    a(f"s_cmp_lt_u32 s{sNT}, 2")
    a(f"s_cselect_b32 s{t0}, 1, s{sSLOW}")
    a(f"s_cmp_eq_u32 s{sCAP}, {CAP2}")
    a("s_cbranch_scc1 K2_SLOW0")
    a(f"s_mov_b32 s{sI}, s{sNT}")
    a(f"s_cmp_lg_u32 s{t0}, 0")
    a("s_cbranch_scc1 K2_SLOW")
    st("post")
    if not OPT.get("pfe", 0):
        for l in ao_reads(0) + idx_reads(2): a(l)
        a("s_waitcnt vmcnt(4)")
    st("loop")
    a.cyc(71)
    if not OPT.get("pfe", 0):
        for l in pf_reads(0): a(l)
    a("s_waitcnt lgkmcnt(0)")
    for l in zmf(0): a(l)
    for l in dma(0): a(l)
    a(f"s_cmp_lg_u32 s{sWIN}, 0")
    a("s_cbranch_scc1 K2_FA")
    a("s_nop 1")
    fast_loop(a, "B")
    a.label("K2_FA")
    a("s_nop 1")
    fast_loop(a, "A")
    a.label("K2_CUT2")
    a(f"s_add_u32 s{t0}, s{t0}, 32")
    a(f"s_lshl_b32 s{sS}, s{t0}, 1")
    a(f"s_sub_u32 s{sS}, s{sS}, 128")
    a(f"s_cmp_lt_i32 s{sS}, s{t1}")
    a("s_cbranch_scc1 K2_CUT")
    a.label("K2_FIX")
    a(f"s_mov_b32 s{sS}, 19")
    a("s_branch K2_CUTD")
    a.label("K2_NF3")
    a("s_waitcnt vmcnt(0) lgkmcnt(0)")
    a("s_barrier")
    a("s_branch K2_J3")
    a.label("K2_NF4")
    a("s_waitcnt lgkmcnt(0)")
    for l in dma(0) + idx_reads(1): a(l)
    lookups()
    a(f"v_add_u32 v{BI}, s{sBLK}, v{BIL}")
    scatter()
    a("s_waitcnt lgkmcnt(0)")
    a("s_barrier")
    for l in dma(4096): a(l)
    a("s_branch K2_SLOW")
    a.label("K2_OV")
    a(f"s_cmp_eq_u32 s{sCAP}, {CAP2}")
    a("s_cbranch_scc1 K2_NOOV")
    a(f"s_mov_b32 s{sCAP}, {CAP2}")
    a(f"s_add_u32 s{t2}, s{t2}, {CAP2-1}")
    a(f"s_mul_hi_u32 s{sNB2}, s{t2}, {hex((2**32 + CAP2 - 1)//CAP2)}")
    a("s_waitcnt lgkmcnt(0)")
    a("s_barrier")
    a.label("K2_BATCH")
    a(f"v_mov_b32 v{Z}, 0")
    clear(0, NZ0 + NZ1 + NZ2)
    a(f"v_lshl_add_u32 v{LR}, v1, 2, s{sLIST}")
    a(f"v_add_u32 v{L64}, 64, v1")
    a("s_branch K2_GEN")
    a.label("K2_GEN0")
    a(f"v_readlane_b32 s{sTW}, v{VBASE}, 63")
    a(f"v_sub_u32 v{VBASE}, v{VBASE}, v{VCNT}")
    a.label("K2_GEN")
    a(f"s_add_u32 s{t0}, s{sLO}, s{sCAP}")
    a(f"s_lshl_b32 s{t2}, s{sLO}, 2")
    a(f"s_sub_u32 s{t2}, s{sLIST}, s{t2}")
    a(f"v_max_u32 v6, s{sLO}, v{VBASE}")
    a(f"v_add_u32 v7, v{VBASE}, v{VCNT}")
    a(f"v_min_u32 v7, s{t0}, v7")
    a(f"v_sub_u32 v{LA}, v6, v{VBASE}")
    a(f"v_mad_u32_u24 v{LA}, v{LA}, {4*RECB}, v{VREC}")
    a("v_sub_u32 v7, v7, v6")
    a(f"v_lshl_add_u32 v6, v6, 2, s{t2}")
    a.label("K2_EXP")
    for j in range(4):
        a(f"v_cmpx_lt_i32 vcc, {j}, v7")
        a(f"ds_write_b32 v6, v{LA} offset:{4*j}")
        a(f"v_add_u32 v{LA}, {4*RECB}, v{LA}")
    a("v_cmpx_lt_i32 vcc, 4, v7")
    a("v_add_u32 v6, 16, v6")
    a("v_subrev_u32 v7, 4, v7")
    a(f"s_sub_u32 s{t0}, s{sTW}, s{sLO}")
    a(f"s_max_i32 s{t0}, s{t0}, 0")
    a(f"s_min_u32 s{t0}, s{t0}, s{sCAP}")
    a("s_nop 1")
    a("s_cbranch_execnz K2_EXP")
    a("s_branch K2_LISTED")
    a.label("K2_SLOW0")
    a(f"s_mov_b32 s{sNB}, s{sNB2}")
    a.label("K2_SLOW")
    a(f"s_mov_b32 s{sI}, s{sNT}")
    a(f"s_cmp_lg_u32 s{sSINIT}, 0")
    a("s_cbranch_scc1 K2_SL1")
    for l in w2_loads(range(5, 9)): a(l)
    for r in range(32):
        a(f"v_mov_b32 v{S+r}, 0")
    a(f"s_mov_b32 s{sSINIT}, 1")
    a.label("K2_SL1")
    a(f"s_cmp_eq_u32 s{sNT}, 0")
    a("s_cbranch_scc1 K2_BDONE")
    a(f"s_mov_b32 s{t1}, s{sRING}")
    a.label("K2_SLOOP")
    a("s_waitcnt vmcnt(0)")
    for l in pf_reads(0) + ao_reads(0) + [so_read(0, 0)] + idx_reads(2): a(l)
    a("s_waitcnt lgkmcnt(0)")
    for l in dma(0): a(l)
    for c in range(2):
        for l in zmf(c): a(l)
        a("s_nop 15")
        for l in exps(c): a(l)
        for r in range(16): a(f"v_add_f32 v{DD+r}, 1.0, v{DD+r}")
        for r in range(16): a(f"v_rcp_f32 v{DD+r}, v{DD+r}")
        for j in range(8):
            a(f"v_mul_f32 v{HF+j}, v{TT[c]+2*j}, v{DD+2*j}")
        for j in range(8):
            a(f"v_fma_f32 v{HF+j}, v{TT[c]+2*j+1}, v{DD+2*j+1}, v{HF+j}")
        for l in cvts(): a(l)
        a("s_nop 1")
        a(ssmf(c, 0))
    for k in range(4):
        a(f"v_xor_b32 v{PA+k}, 0x1000, v{PA+k}")
    a(f"s_xor_b32 s{sRING}, s{sRING}, 0x1000")
    a(f"v_add_u32 v{BA}, {BLKSZ}, v{BA}")
    a(f"v_add_u32 v{BI}, {BLKSZ}, v{BI}")
    a(f"v_add_u32 v{IA}, 128, v{IA}")
    a(f"s_sub_u32 s{sI}, s{sI}, 1")
    a(f"s_cmp_lg_u32 s{sI}, 0")
    a("s_cbranch_scc1 K2_SLOOP")
    a(f"s_xor_b32 s{t0}, s{t1}, s{sRING}")
    a(f"s_mov_b32 s{sRING}, s{t1}")
    for k in range(4):
        a(f"v_xor_b32 v{PA+k}, s{t0}, v{PA+k}")
    a.label("K2_BDONE")
    a(f"s_add_u32 s{sLO}, s{sLO}, s{sCAP}")
    a(f"s_sub_u32 s{sNB}, s{sNB}, 1")
    a(f"s_cmp_eq_u32 s{sNB}, 0")
    a("s_cbranch_scc1 K2_EPI")
    a("s_waitcnt vmcnt(0) lgkmcnt(0)")
    a("s_barrier")
    a("s_branch K2_BATCH")
    a.label("K2_EPI")
    st("epi")
    a.cyc(81)
    if diag: a("s_sub_u32 s71, s81, s71")
    a(f"s_mov_b32 s{t2}, {hex(f32bits(-LN2))}")
    a(f"v_add_u32 v{XWA}, s{sRING}, v4")
    a("s_waitcnt vmcnt(0)")
    for k in range(4):
        for p in range(4*k, 4*k + 4):
            a(f"v_cvt_pk_bf16_f32 v{DD+p}, v{S+2*p}, v{S+2*p+1}")
        a(f"ds_write_b128 v{XWA}, {vr(DD+4*k,4)} offset:{1024*k}")
    head, pre = epi_prelude()
    if not OPT.get("eweave", 1):
        head, pre = head + pre, []
    for l in head: a(l)
    ACC, BIAS = T0, T1
    a("s_waitcnt lgkmcnt(0)")
    a("s_barrier")
    st("epb")
    de = DsTrack(a)
    XB = S
    jobs = [(ct, tl) for ct in range(8) for tl in range(3)]
    def xr(k):
        ct, tl = jobs[k]
        off = (ct >> 1) * 8192 + (ct & 1) * 2048 + (32768 + 256 if tl == 2 else 0)
        de(f"ds_read_b128 {vr(XB+4*(k&7),4)}, v{RR if tl == 1 else RA} offset:{off}", k)
    for k in range(8): xr(k)
    for l in pre[:13]: a(l)
    pre = pre[13:]
    for k, (ct, tl) in enumerate(jobs):
        de.wait(k)
        a(mfma16(ACC + 4*tl, W2R + 4*ct, XB + 4*(k & 7), None if ct == 0 else ACC + 4*tl))
        if k + 8 < 24:
            xr(k + 8)
        for l in pre[:2]: de(l, "dg")
        pre = pre[2:]
        if k in (15, 17, 19):
            a(mfma16(BIAS + 4*((k-15)//2), W2R + 32, DG + 2*((k-15)//2), None))
    if OPT.get("ofull", 1):
        a("s_nop 3")
        for tl in range(3):
            for r in range(4):
                a(f"v_fma_f32 v{ACC+4*tl+r}, v{ACC+4*tl+r}, s{t2}, v{BIAS+4*tl+r}")
            for p in range(2):
                a(f"v_cvt_pk_bf16_f32 v{DD+2*tl+p}, v{ACC+4*tl+2*p}, v{ACC+4*tl+2*p+1}")
            a(f"ds_write_b64 v{SA}, {vr(DD+2*tl,2)} offset:{16*272*tl}")
        a("s_cmp_ge_u32 s3, 2")
        a("s_waitcnt lgkmcnt(0)")
        a("s_barrier")
        a(f"ds_read_b128 {vr(DD,4)}, v{SR}")
        a("s_cbranch_scc1 K2_ST1")
        a(f"ds_read_b128 {vr(DD+4,4)}, v{SR} offset:{32*272}")
        a(f"s_mov_b64 exec, s[{sRM}:{sRM+1}]")
        a("s_waitcnt lgkmcnt(0)")
        a(f"buffer_store_dwordx4 {vr(DD+4,4)}, v4, s[{sOUT}:{sOUT+3}], s{sOB} offen {OPT.get('of', 'nt')}")
        a("s_mov_b64 exec, -1")
        a.label("K2_ST1")
        a("s_waitcnt lgkmcnt(0)")
        a(f"buffer_store_dwordx4 {vr(DD,4)}, v4, s[{sOUT}:{sOUT+3}], s{sOA} offen {OPT.get('of', 'nt')}")
    else:
        a("s_nop 3")
        for tl in range(3):
            for r in range(4):
                a(f"v_fma_f32 v{ACC+4*tl+r}, v{ACC+4*tl+r}, s{t2}, v{BIAS+4*tl+r}")
            for p in range(2):
                a(f"v_cvt_pk_bf16_f32 v{DD+2*tl+p}, v{ACC+4*tl+2*p}, v{ACC+4*tl+2*p+1}")
            if tl == 2:
                a(f"s_mov_b64 exec, s[{sRM}:{sRM+1}]")
            a(f"buffer_store_dwordx2 {vr(DD+2*tl,2)}, v{SA}, s[{sOUT}:{sOUT+3}], s{(sOA, sOB, t1)[tl]} offen {OPT.get('of', '')}")
    if diag:
        st("end")
        a("s_waitcnt vmcnt(0)")
        st("drained")
        if OPT.get("trace"):
            a("s_mov_b64 exec, -1")
            a("v_writelane_b32 v186, s81, 20")
            a("s_sub_u32 s90, s81, s71")
            a("v_writelane_b32 v186, s90, 21")
            a(f"v_writelane_b32 v186, s{sNT}, 22")
            a.srd(84, 22, 0x80000, WS_STAMP + 0x100000)
            a("s_lshl_b32 s90, s89, 3")
            a("s_add_u32 s90, s90, s3")
            a("s_lshl_b32 s90, s90, 8")
            a("v_lshlrev_b32 v6, 2, v1")
            a("buffer_store_dword v186, v6, s[84:87], s90 offen")
        if "smap" not in OPT: a("s_mov_b32 s100, s71")
        a("s_lshl_b32 s89, s89, 1")
        a(f"s_add_u32 s89, s89, s{sWIN}")
        a.stamp_flush(22, 1, 89, sWV)
    if OPT.get("lite"):
        a("s_waitcnt vmcnt(0)")
        a("s_memrealtime s[90:91]")
        a("s_mov_b64 exec, 1")
        a.srd(84, 22, 0x80000, WS_STAMP + 0x80000)
        a("s_lshl_b32 s88, s2, 3")
        a("s_add_u32 s88, s88, s3")
        a("s_lshl_b32 s88, s88, 2")
        a("v_mov_b32 v0, 0")
        a("s_waitcnt lgkmcnt(0)")
        a("v_mov_b32 v1, s90")
        a("buffer_store_dword v1, v0, s[84:87], s88 offen")
    a.label("K2_END")
    a("s_endpgm")
    return a.text()
```

```python
from common import *

K1_LDS = 65536
K1_VGPR = 128
K1_BLOCK = 320


SF = {"p": "", "r": ""}


def gen_k1(order=("sort", "gemm"), diag=False, pf="", rf="", cpf=16, xc=True, wf="", wfirst=False, slast=False, sprio=False, elate=1, mix=0, gprio=0):
    SF["p"], SF["r"] = pf, rf
    a = Asm()
    a.diag = diag
    NSW = 128 if xc else NCHUNK
    SF["xc"] = xc
    SF["w"] = wf
    SF["wfirst"] = wfirst
    SF["elate"] = elate
    SF["mix"] = mix
    SF["gprio"] = gprio
    total = NSW + NGEMMW
    a(f"s_cmp_ge_u32 s2, {total}")
    a("s_cbranch_scc1 K1_END")
    a.stamp(0)
    a.cyc(88)
    if diag:
        a("s_mov_b32 s89, s2")
        for k in range(1, 10): a(f"s_mov_b32 s{92+k}, 0")
    a("s_load_dwordx16 s[4:19], s[0:1], 0")
    a("s_load_dwordx2 s[20:21], s[0:1], 80")
    a("v_lshrrev_b32 v2, 6, v0")
    a("v_and_b32 v1, 63, v0")
    a("v_readfirstlane_b32 s3, v2")
    if cpf:
        a(f"s_cmp_ge_u32 s2, {cpf}")
        a("s_cbranch_scc1 K1_NOPF")
        a("s_getpc_b64 s[60:61]")
        a.label("K1_PC")
        a("s_mov_b32 s62, K2_END-K1_PC")
        a("s_mov_b32 s63, 0x00020000")
        a("v_lshlrev_b32 v60, 7, v0")
        a("buffer_load_dword v61, v60, s[60:63], 0 offen")
        a.label("K1_NOPF")
    if slast:
        a(f"s_cmp_lt_u32 s2, {NGEMMW}")
        a("s_cbranch_scc1 K1_gemm")
        a(f"s_sub_u32 s2, s2, {NGEMMW}")
    else:
        a(f"s_cmp_ge_u32 s2, {NSW}")
        a("s_cbranch_scc1 K1_gemm")
    if sprio:
        a("s_setprio 2")
    if xc:
        a("s_and_b32 s22, s2, 7")
        a("s_lshl_b32 s22, s22, 4")
        a("s_lshr_b32 s2, s2, 3")
        a("s_add_u32 s2, s2, s22")
        a(f"s_cmp_ge_u32 s2, {NCHUNK}")
        a("s_cbranch_scc1 K1_END")

    def fin():
        if diag:
            a.stamp(8)
            a("s_waitcnt vmcnt(0)")
            a.stamp(9)
            a("s_cmp_eq_u32 s3, 4")
            a("s_cbranch_scc1 K1_END")
            a.stamp_flush(20, 0, 89, 3)
        a("s_endpgm")
    k1_sort(a, 0)
    a("s_branch K1_sort2")
    a.label("K1_gemm")
    if not slast:
        a(f"s_sub_u32 s2, s2, {NSW}")
    k1_gemm(a)
    fin()
    a.label("K1_sort2")
    k1_sort(a, 1)
    fin()
    a.label("K1_prep")
    k1_prep(a)
    a.label("K1_END")
    a("s_endpgm")
    return a.text(), total


def k1_sort_head(a):
    HIST, STRT, RB = 16384, 18432, 0
    DST, SRC, EV, BK, RK = 8, 12, 16, 24, 28
    a("v_lshlrev_b32 v3, 4, v0")
    a("v_lshlrev_b32 v4, 5, v0")
    a("v_lshlrev_b32 v5, 2, v0")
    a("v_mov_b32 v6, 0")
    a(f"s_mul_i32 s22, s2, {CH*4}")
    a(f"s_mul_i32 s23, s2, {CH*8}")
    a(f"ds_write_b32 v5, v6 offset:{HIST}")
    a("s_waitcnt lgkmcnt(0)")
    a.srd(24, 10, E * 4)
    a(f"buffer_load_dwordx4 {vr(DST,4)}, v3, s[24:27], s22 offen")
    a.srd(32, 6, E * 8)
    a.srd(28, 8, E * 4)
    if not SF["elate"]:
        k1_sort_rest(a)


def k1_sort_rest(a):
    DST, SRC, EV, BK, RK = 8, 12, 16, 24, 28
    a(f"buffer_load_dwordx4 {vr(EV,4)}, v4, s[32:35], s23 offen")
    a(f"buffer_load_dwordx4 {vr(EV+4,4)}, v4, s[32:35], s23 offen offset:16")
    a(f"buffer_load_dwordx4 {vr(SRC,4)}, v3, s[28:31], s22 offen")


def k1_sort(a, part):
    HIST, STRT, RB = 16384, 18432, 0
    DST, SRC, EV, BK, RK = 8, 12, 16, 24, 28
    if part == 0:
        return k1_sort_head(a)
    a.srd(40, 20, E * RECB, WS_REC)
    a.srd(44, 20, NBKT * 512, WS_TAB)
    a.srd(48, 20, NCHUNK * 20, WS_EMAX)
    a("v_mov_b32 v32, 1")
    a(f"s_movk_i32 s37, {BM}")
    a("s_mov_b32 s52, 0x7fff7fff")
    a("v_lshlrev_b32 v33, 4, v1")
    a("s_barrier")
    a.stamp(1)
    a(f"s_waitcnt vmcnt({0 if SF['elate'] else 3})")
    if SF["elate"] == 1:
        k1_sort_rest(a)
    a.stamp(2)
    for j in range(4):
        a(f"v_mul_u32_u24 v{BK+j}, s37, v{DST+j}")
    for j in range(4):
        a(f"v_lshrrev_b32 v{BK+j}, 17, v{BK+j}")
    for j in range(4):
        a(f"v_lshlrev_b32 v{BK+j}, 2, v{BK+j}")
        a(f"ds_add_rtn_u32 v{RK+j}, v{BK+j}, v32 offset:{HIST}")
    if SF["elate"] == 2:
        k1_sort_rest(a)
    a("s_waitcnt lgkmcnt(0)")
    a("s_barrier")
    a.stamp(3)
    a(f"ds_read_b128 v[40:43], v33 offset:{HIST}")
    a("s_waitcnt lgkmcnt(0)")
    a("v_add_u32 v50, v40, v41")
    a("v_add_u32 v51, v50, v42")
    a("v_add_u32 v57, v51, v43")
    a("s_nop 1")
    a("v_add_u32_dpp v56, v57, v57 row_shr:1 row_mask:0xf bank_mask:0xf bound_ctrl:0")
    for sh in (2, 4, 8):
        a("s_nop 1")
        a(f"v_add_u32_dpp v56, v56, v56 row_shr:{sh} row_mask:0xf bank_mask:0xf bound_ctrl:0")
    a("s_nop 1")
    a("v_add_u32_dpp v56, v56, v56 row_bcast:15 row_mask:0xa bank_mask:0xf")
    a("s_nop 1")
    a("v_add_u32_dpp v56, v56, v56 row_bcast:31 row_mask:0xc bank_mask:0xf")
    a("v_sub_u32 v48, v56, v57")
    a("v_add_u32 v49, v48, v40")
    a("v_add_u32 v50, v48, v50")
    a("v_add_u32 v51, v48, v51")
    a(f"ds_write_b128 v33, v[48:51] offset:{STRT}")
    for j in range(4):
        a(f"ds_read_b32 v{BK+j}, v{BK+j} offset:{STRT}")
    a("s_waitcnt vmcnt(0)")
    a(f"s_mul_i32 s53, s2, {CH*RECB}")
    for j in range(4):
        a(f"v_lshl_or_b32 v{SRC+j}, v{DST+j}, 14, v{SRC+j}")
    for j in range(4):
        a(f"s_waitcnt lgkmcnt({3 - j + 2*j})")
        a(f"v_add_u32 v{BK+j}, v{BK+j}, v{RK+j}")
        a(f"v_mul_u32_u24 v{BK+j}, {RECB}, v{BK+j}")
        a(f"ds_write2_b32 v{BK+j}, v{EV+2*j}, v{EV+2*j+1} offset0:0 offset1:1")
        a(f"ds_write_b32 v{BK+j}, v{SRC+j} offset:8")
    a("s_waitcnt lgkmcnt(0)")
    a("s_barrier")
    a.stamp(4)
    for j in range(3):
        a(f"ds_read_b128 {vr(68+4*j,4)}, v3 offset:{RB + 5120*j}")
    for j in range(3):
        a(f"s_waitcnt lgkmcnt({2-j})")
        a(f"buffer_store_dwordx4 {vr(68+4*j,4)}, v3, s[40:43], s53 offen {SF['r']}")
        if j < 2:
            a("s_add_u32 s53, s53, 5120")
    a("v_lshlrev_b32 v33, 11, v1")
    a("s_lshl_b32 s53, s2, 2")
    for k in range(4):
        a(f"s_cmp_lg_u32 s3, {k}")
        a(f"s_cbranch_scc1 K1S_t{k}")
        a(f"v_lshl_or_b32 v{40+k}, v{40+k}, 16, v{48+k}")
        a(f"buffer_store_dword v{40+k}, v33, s[44:47], s53 offen offset:{512*k}")
        a.label(f"K1S_t{k}")
    for j in range(8):
        a(f"v_and_b32 v{60+j}, s52, v{EV+j}")
    for st in (1, 2, 4):
        for j in range(0, 8, 2*st):
            a(f"v_pk_max_u16 v{60+j}, v{60+j}, v{60+j+st}")
    a("v_lshlrev_b32 v61, 16, v60")
    a("v_and_b32 v60, 0xffff0000, v60")
    a("v_max_u32 v60, v60, v61")
    dpp_max64(a, 60)
    a("s_mov_b32 exec_lo, 0")
    a("s_mov_b32 exec_hi, 0x80000000")
    a("s_mul_i32 s54, s2, 20")
    a("s_lshl_b32 s55, s3, 2")
    a("s_add_u32 s54, s54, s55")
    a("buffer_store_dword v60, v6, s[48:51], s54 offen")


def k1_prep(a):
    a(f"s_cmp_ge_u32 s2, {NFRAG}")
    a("s_cbranch_scc1 K1_END")
    a("v_and_b32 v3, 31, v1")
    a("v_lshlrev_b32 v3, 1, v3")
    a("v_lshrrev_b32 v4, 5, v1")
    a("v_lshlrev_b32 v5, 4, v1")
    a(f"s_mov_b32 s38, {hex(f32bits(-LOG2E))}")
    a("s_lshl_b32 s22, s2, 10")
    a("s_waitcnt lgkmcnt(0)")
    a.srd(40, 20, NFRAG * 1024, WS_WB)
    a.srd(24, 12, 260 * 512)
    a("s_cmp_ge_u32 s2, 136")
    a("s_cbranch_scc1 K1P_cst")
    a("s_cmp_ge_u32 s2, 64")
    a("s_cbranch_scc1 K1P_w2")
    a("v_lshl_add_u32 v3, v4, 12, v3")
    a("s_lshr_b32 s23, s2, 3")
    a("s_and_b32 s36, s2, 7")
    a("s_lshl_b32 s23, s23, 6")
    a("s_lshl_b32 s36, s36, 13")
    a("s_add_u32 s23, s23, s36")
    a("s_add_u32 s23, s23, 0x10000")
    for j in range(8):
        a(f"buffer_load_ushort v{8+j}, v3, s[24:27], s23 offen offset:{512*j}")
    a("s_barrier")
    a("s_waitcnt vmcnt(0)")
    for j in range(8):
        a(f"v_lshlrev_b32 v{8+j}, 16, v{8+j}")
    for j in range(8):
        a(f"v_mul_f32 v{8+j}, s38, v{8+j}")
    for q in range(4):
        a(f"v_cvt_pk_bf16_f32 v{16+q}, v{8+2*q}, v{9+2*q}")
    a(f"buffer_store_dwordx4 v[16:19], v5, s[40:43], s22 offen {SF['w']}")
    a("s_endpgm")
    a.label("K1P_w2")
    a("s_sub_u32 s37, s2, 64")
    a("s_mul_i32 s23, s37, 57")
    a("s_lshr_b32 s23, s23, 9")
    a("s_mul_i32 s36, s23, 9")
    a("s_sub_u32 s36, s37, s36")
    a("s_lshl_b32 s23, s23, 5")
    a("v_and_b32 v3, 15, v1")
    a("v_lshlrev_b32 v3, 1, v3")
    a("s_cmp_eq_u32 s36, 8")
    a("s_cbranch_scc1 K1P_b2")
    a.srd(24, 16, 256 * 256)
    a("v_lshl_add_u32 v3, v4, 12, v3")
    a("v_bfe_u32 v6, v1, 4, 1")
    a("v_lshl_add_u32 v3, v6, 10, v3")
    a("s_lshl_b32 s36, s36, 13")
    a("s_add_u32 s23, s23, s36")
    for j in range(8):
        a(f"buffer_load_ushort v{8+j}, v3, s[24:27], s23 offen offset:{256*(8*(j>>2)+(j&3))}")
    a("s_barrier")
    a("s_waitcnt vmcnt(0)")
    for q in range(4):
        a(f"v_lshl_or_b32 v{16+q}, v{9+2*q}, 16, v{8+2*q}")
    a(f"buffer_store_dwordx4 v[16:19], v5, s[40:43], s22 offen {SF['w']}")
    a("s_endpgm")
    a.label("K1P_b2")
    a.srd(24, 18, 256)
    a("v_lshrrev_b32 v3, 4, v1")
    a("v_lshlrev_b32 v3, 3, v3")
    a("buffer_load_dwordx2 v[8:9], v3, s[24:27], s23 offen")
    a("s_barrier")
    a("s_waitcnt vmcnt(0)")
    for p in range(2):
        a(f"v_lshlrev_b32 v{16+2*p}, 16, v{8+p}")
        a(f"v_and_b32 v{17+2*p}, 0xffff0000, v{8+p}")
    a(f"buffer_store_dwordx4 v[16:19], v5, s[40:43], s22 offen {SF['w']}")
    a("s_endpgm")
    a.label("K1P_cst")
    a("s_sub_u32 s37, s2, 136")
    a("s_lshl_b32 s23, s37, 6")
    a("s_add_u32 s36, s23, 0x20000")
    for k in range(4):
        a(f"buffer_load_ushort v{8+k}, v3, s[24:27], s36 offen offset:{512*k}")
    a("v_mov_b32 v18, 0")
    a("s_barrier")
    a("s_waitcnt vmcnt(0)")
    for k in range(4):
        a(f"v_lshlrev_b32 v{8+k}, 16, v{8+k}")
    for k in range(4):
        a(f"v_mul_f32 v{8+k}, s38, v{8+k}")
    a("v_add_f32 v19, |v8|, |v9|")
    a("v_add_f32 v19, |v10|, v19")
    a("v_add_f32 v19, |v11|, v19")
    for p in range(2):
        a(f"v_cvt_pk_bf16_f32 v{16+p}, v{8+2*p}, v{9+2*p}")
    a(f"buffer_store_dwordx4 v[16:19], v5, s[40:43], s22 offen {SF['w']}")


def k1_gemm(a):
    WL, XL = 0, 32768
    XB, WA, ACC = 32, 64, 96
    a("s_cmp_eq_u32 s3, 4")
    a("s_cbranch_scc1 K1_prep")
    if SF["gprio"]:
        a("s_setprio 2")
    a("s_lshr_b32 s22, s2, 4")
    a("s_and_b32 s23, s2, 7")
    if SF["xc"]:
        a("s_mul_i32 s23, s23, 20")
    else:
        a("s_lshl_b32 s22, s22, 3")
    a("s_add_u32 s22, s22, s23")
    a(f"s_cmp_ge_u32 s22, {NGEMM // 2}")
    a("s_cbranch_scc1 K1_END")
    a("s_bfe_u32 s23, s2, 0x10003")
    a("s_and_b32 s36, s3, 1")
    a("s_lshr_b32 s37, s3, 1")
    a("v_lshrrev_b32 v3, 3, v1")
    a("v_and_b32 v4, 7, v1")
    a("v_lshlrev_b32 v4, 4, v4")
    a("v_lshl_add_u32 v3, v3, 9, v4")
    a("v_and_b32 v4, 16, v1")
    a("v_lshlrev_b32 v4, 2, v4")
    a("v_xor_b32 v3, v3, v4")
    a("v_lshrrev_b32 v5, 4, v1")
    a("v_and_b32 v6, 15, v1")
    a("v_xor_b32 v6, v6, v5")
    a("v_lshlrev_b32 v6, 4, v6")
    a("v_lshl_add_u32 v8, v5, 8, v6")
    for z in range(1, 4):
        a(f"v_xor_b32 v{8+z}, {64*z}, v8")
    a("s_lshl_b32 s38, s37, 15")
    a("s_lshl_b32 s39, s23, 8")
    a("s_add_u32 s38, s38, s39")
    a("s_lshl_b32 s39, s36, 7")
    a("s_add_u32 s38, s38, s39")
    a("s_lshl_b32 s52, s36, 14")
    a("s_lshl_b32 s39, s37, 13")
    a("s_add_u32 s52, s52, s39")
    a("s_lshl_b32 s53, s22, 1")
    a("s_add_u32 s53, s53, s37")
    a("s_lshl_b32 s54, s53, 13")
    a("s_lshl_b32 s39, s36, 12")
    a("s_add_u32 s54, s54, s39")
    a("s_lshl_b32 s55, s37, 13")
    a("s_add_u32 s55, s55, s39")
    def xdma():
        a(f"s_add_u32 m0, s55, {XL}")
        a.srd(24, 4, N * 256)
        for z in range(4):
            a(f"buffer_load_dwordx4 v{8+z}, s[24:27], s54 offen offset:{1024*z} lds")
    a("v_lshrrev_b32 v12, 5, v1")
    a("s_lshl_b32 s58, s23, 8")
    a("s_lshl_b32 s39, s36, 7")
    a("s_add_u32 s58, s58, s39")
    a("s_waitcnt lgkmcnt(0)")
    if not SF["wfirst"]:
        xdma()
    a.srd(28, 12, 260 * 512)
    for z in range(8):
        a("s_mov_b32 m0, s52")
        a("s_add_u32 s52, s52, 1024")
        a("buffer_load_dwordx4 v3, s[28:31], s38 offen lds")
        a("s_add_u32 s38, s38, 4096")
    if SF["wfirst"]:
        xdma()
    a.srd(40, 20, N * 512, WS_P)
    a.srd(44, 20, NGEMM * 16, WS_PMAX)
    a("v_and_b32 v13, 31, v1")
    a("v_bfe_u32 v14, v1, 2, 2")
    a("v_lshl_add_u32 v14, v12, 3, v14")
    a("v_lshlrev_b32 v14, 7, v14")
    a("v_and_b32 v15, 3, v1")
    a("v_lshl_add_u32 v14, v15, 3, v14")
    a("v_bfe_u32 v15, v1, 4, 1")
    a("v_lshl_add_u32 v14, v15, 5, v14")
    a("v_bfe_u32 v15, v1, 3, 1")
    a("v_lshl_add_u32 v14, v15, 6, v14")
    a("s_lshl_b32 s39, s36, 14")
    a("v_add_u32 v14, s39, v14")
    a("v_xor_b32 v26, 64, v14")
    a("v_and_b32 v15, 15, v1")
    a("v_xor_b32 v15, v15, v12")
    a("v_lshlrev_b32 v15, 4, v15")
    a("v_lshl_add_u32 v15, v13, 8, v15")
    a("s_lshl_b32 s39, s37, 13")
    a(f"s_add_u32 s39, s39, {XL}")
    a("v_add_u32 v16, s39, v15")
    for s in range(1, 8):
        a(f"v_xor_b32 v{16+s}, {32*s}, v16")
    a("v_and_b32 v27, 7, v1")
    a("v_lshlrev_b32 v27, 4, v27")
    a("v_lshl_add_u32 v27, v13, 7, v27")
    a("v_lshl_add_u32 v27, v12, 3, v27")
    a("s_lshl_b32 s39, s3, 12")
    a("s_add_u32 s39, s39, 49152")
    a("v_add_u32 v27, s39, v27")
    a("v_lshl_add_u32 v28, v1, 4, s39")
    a("v_lshrrev_b32 v24, 3, v1")
    a("v_and_b32 v25, 7, v1")
    a("v_xor_b32 v25, v25, v24")
    a("v_lshlrev_b32 v25, 4, v25")
    a("v_lshl_add_u32 v24, v24, 9, v25")
    a("s_lshl_b32 s56, s53, 14")
    a("s_lshl_b32 s39, s23, 8")
    a("s_add_u32 s56, s56, s39")
    a("s_lshl_b32 s39, s36, 7")
    a("s_add_u32 s56, s56, s39")
    a(f"s_mov_b32 s57, {hex(f32bits(-LOG2E))}")
    a("s_add_u32 s62, s14, s58")
    a("s_addc_u32 s63, s15, 0")
    a("s_load_dwordx16 s[64:79], s[62:63], 0")
    a("s_load_dwordx16 s[4:19], s[62:63], 64")
    a("v_mov_b32 v31, 0xffff0000")
    a("s_waitcnt lgkmcnt(0)")
    for h in range(2):
        a("s_mov_b32 exec_lo, " + ("-1" if h == 0 else "0"))
        a("s_mov_b32 exec_hi, " + ("0" if h == 0 else "-1"))
        for T in range(2):
            for g in range(4):
                for p in range(2):
                    sr_ = (64, 4)[T] + 4*g + 2*h + p
                    a(f"v_lshlrev_b32_e64 v{ACC+16*T+4*g+2*p}, 16, s{sr_}")
                    a(f"v_and_b32 v{ACC+16*T+4*g+2*p+1}, s{sr_}, v31")
    a("s_mov_b64 exec, -1")
    a.stamp(1)
    a("s_waitcnt vmcnt(0)")
    a.stamp(2)
    a("s_barrier")
    a.stamp(3)
    d = DsTrack(a)
    def wread(k):
        T, s = k >> 3, k & 7
        for i in range(2):
            d(f"ds_read_b64_tr_b16 {vr(WA+(k&7)*4+2*i,2)}, v{(14, 26)[T]} offset:{16*s*128+4*i*128}", f"w{k}")
    def post(T):
        P = [f"v_mul_f32 v{ACC+16*T+r}, s57, v{ACC+16*T+r}" for r in range(16)]
        for g in range(4):
            P.append(f"v_xor_b32 v{29+(g&1)}, {16*(4*T+g)}, v27")
            for p in range(2):
                P.append(f"v_cvt_pk_bf16_f32 v{PK+2*g+p}, v{ACC+16*T+4*g+2*p}, v{ACC+16*T+4*g+2*p+1}")
            P.append(f"ds_write_b64 v{29+(g&1)}, {vr(PK+2*g,2)}")
        return P
    PK = 8
    for s in range(4):
        d(f"ds_read_b128 {vr(XB+4*s,4)}, v{16+s}", f"x{s}")
        wread(s)
    p0 = post(0)
    for k in range(16):
        T, s = k >> 3, k & 7
        d.wait(f"w{k}", f"x{s}")
        a(mfma(ACC + 16*T, WA + (k & 7)*4, XB + 4*s, ACC + 16*T))
        if k + 4 < 8:
            d(f"ds_read_b128 {vr(XB+4*(k+4),4)}, v{16+k+4}", f"x{k+4}")
        if k + 4 < 16:
            wread(k + 4)
        if k >= 11:
            take = p0[:7]; p0 = p0[7:]
            for l in take: d(l)
    a.stamp(4)
    a(f"v_max_f32 v25, |v{ACC}|, |v{ACC+1}|")
    for r in range(2, 16, 2):
        a(f"v_max3_f32 v25, |v{ACC+r}|, |v{ACC+r+1}|, v25")
    a("s_nop 1")
    for l in post(1): a(l)
    for q in range(4):
        a(f"ds_read_b128 {vr(XB+4*q,4)}, v28 offset:{1024*q}")
    for r in range(16, 32, 2):
        a(f"v_max3_f32 v25, |v{ACC+r}|, |v{ACC+r+1}|, v25")
    def pstores(flag):
        for q in range(4):
            a(f"s_waitcnt lgkmcnt({3-q})")
            a(f"buffer_store_dwordx4 {vr(XB+4*q,4)}, v24, s[40:43], s56 offen {flag}")
            if q < 3:
                a("s_add_u32 s56, s56, 4096")
    if SF["mix"]:
        a(f"s_cmp_ge_u32 s2, {SF['mix']}")
        a("s_cbranch_scc1 K1G_nt")
        pstores("sc1")
        a("s_branch K1G_st")
        a.label("K1G_nt")
    pstores(SF["p"])
    a.label("K1G_st")
    dpp_max64(a, 25)
    a("s_lshl_b32 s39, s22, 1")
    a("s_add_u32 s39, s39, s23")
    a("s_lshl_b32 s39, s39, 4")
    a("s_lshl_b32 s36, s3, 2")
    a("s_add_u32 s39, s39, s36")
    a("v_mov_b32 v26, 0")
    a("s_mov_b32 exec_lo, 0")
    a("s_mov_b32 exec_hi, 0x80000000")
    a("buffer_store_dword v25, v26, s[44:47], s39 offen")
```

```python
from common import *

MAXT = 13
BLKSZ = 2176
O_IX, O_SO = 1024, 1152
BLK = 0
BLKW = MAXT * BLKSZ
CNT = BLK + 2 * BLKW
MISC = CNT + 256
IDX = MISC + 256
IDXW = MAXT * 128
LIST = IDX + 2 * IDXW
XW = LIST + 4096
WBS = XW + 10240
RING0 = 98304
K2_LDS = RING0 + 65536
assert CNT % 256 == 0 and XW % 256 == 0 and WBS + 16384 <= RING0
CAP1, CAP2 = 128, 48
PADIDX = N
K2_BLOCK = 512

IDN, QB, S, T0, T1, DD, MM, NN, HF, HB = 8, 16, 32, 64, 80, 96, 112, 120, 128, 136
PF, AO, SO0, IX, PA, BA, IA, DEG = 140, 156, 164, 168, 176, 180, 181, 182
VBASE, VCNT, VREC = 183, 184, 185
BI = 5
W2R = 188
WBQ = 224
SO1 = 224
K2_VGPR = 256
TT = (T0, T1)
SO = (SO0, SO1)

sTAB, sREC, sP, sX, sWF, sOUT, sMX = 24, 28, 32, 36, 40, 44, 48
sWIN, sWV, sN0, sNA, sNW, sNB_ = 52, 53, 54, 55, 56, 57
sTW, sLO, sCAP, sNB, sNT, sI, sRING = 58, 59, 60, 61, 62, 63, 64
sF1, sF2, sSLOW, sSINIT, sBLK, sIDX = 65, 66, 67, 68, 69, 70
sM0, sM1 = 72, 74
sLIST, sCA, sSA, sW2, sNB2, sWBO = 6, 7, 8, 9, 10, 11
t0, t1, t2, t3 = 76, 77, 78, 79

OPT = dict()


def dma(stage_off):
    out = []
    for q in range(4):
        out.append(f"s_add_u32 m0, s{sRING}, {stage_off + 1024*q}")
        out.append("s_nop 0")
        out.append(f"buffer_load_dwordx4 {vr(IX+2*q,2)}, s[{sP}:{sP+3}], 0 idxen offen lds")
    return out


def idx_reads(tile_off):
    return [f"ds_read_b32 v{IX+2*q}, v{IA} offset:{tile_off*128 + 32*q}" for q in range(4)]


def pf_reads(stage):
    return [f"ds_read_b128 {vr(PF+4*k,4)}, v{PA+k} offset:{stage*4096}" for k in range(4)]


def ao_reads(tile_off):
    return [f"ds_read_b128 {vr(AO,4)}, v{BA} offset:{tile_off*BLKSZ}",
            f"ds_read_u16 v{AO+4}, v{BI} offset:{tile_off*BLKSZ + O_IX}"]


def so_read(tile_off, buf):
    return f"ds_read_b128 {vr(SO[buf],4)}, v{BA} offset:{tile_off*BLKSZ + O_SO}"


def zmf(c):
    t = TT[c]
    return [mfma(t, PF + 8*c, IDN, None), mfma(t, PF + 8*c + 4, IDN + 4, t),
            f"v_smfmac_f32_32x32x32_bf16 {vr(t,16)}, {vr(AO,4)}, {vr(QB+8*c,8)}, v{AO+4}"]


def ssmf(c, buf, first=False):
    return mfma(S + 16*c, HB, SO[buf], None if first else S + 16*c)


def cvts():
    return [f"v_cvt_pk_bf16_f32 v{HB+p}, v{HF+2*p}, v{HF+2*p+1}" for p in range(4)]


def exps(c):
    return [f"v_exp_f32 v{DD+r}, v{TT[c]+r}" for r in range(16)]


RQ = 244


def rcps():
    if OPT.get("quad", 0):
        return [f"v_rcp_f32 v{RQ+r}, v{RQ+r}" for r in range(4)]
    return [f"v_rcp_f32 v{MM+r}, v{MM+r}" for r in range(8)]


def fms():
    if OPT.get("quad", 0):
        return ([f"v_mul_f32 v{HF+r}, v{MM+(r^1)}, v{RQ+(r>>1)}" for r in range(8)]
                + [f"v_mul_f32 v{HF+r}, v{NN+r}, v{HF+r}" for r in range(8)])
    return [f"v_mul_f32 v{HF+r}, v{NN+r}, v{MM+r}" for r in range(8)]


def prun(c, fm=True):
    t = TT[c]
    P = fms() if fm else []
    if OPT.get("p5"):
        P += [f"v_add_f32 v{DD+r}, 1.0, v{DD+r}" for r in range(16)]
        P += [f"v_mul_f32 v{MM+j}, v{DD+2*j}, v{DD+2*j+1}" for j in range(8)]
        P += [f"v_mul_f32 v{NN+j}, v{t+2*j}, v{DD+2*j+1}" for j in range(8)]
        P += [f"v_fma_f32 v{NN+j}, v{t+2*j+1}, v{DD+2*j}, v{NN+j}" for j in range(8)]
        return P
    P += [f"v_add_f32 v{DD+2*j+1}, 1.0, v{DD+2*j+1}" for j in range(8)]
    P += [f"v_fma_f32 v{NN+j}, v{t+2*j+1}, v{DD+2*j}, v{t+2*j+1}" for j in range(8)]
    P += [f"v_fma_f32 v{MM+j}, v{DD+2*j}, v{DD+2*j+1}, v{DD+2*j+1}" for j in range(8)]
    P += [f"v_fmac_f32 v{NN+j}, v{t+2*j}, v{DD+2*j+1}" for j in range(8)]
    if OPT.get("quad", 0):
        P += [f"v_mul_f32 v{RQ+j}, v{MM+2*j}, v{MM+2*j+1}" for j in range(4)]
    return P


def weave(base, inserts):
    out = []
    ins = sorted(inserts, key=lambda x: x[0])
    k = 0
    for i, l in enumerate(base):
        while k < len(ins) and ins[k][0] <= i:
            out += ins[k][1]; k += 1
        out.append(l)
    while k < len(ins):
        out += ins[k][1]; k += 1
    return out


def trun(c, par, stage, role):
    z = zmf(1 - c)
    late = role == "B" and c == 1
    w = ["s_waitcnt lgkmcnt(0)"] if late else []
    if stage == 0:
        base = exps(c)
        pos = [0, 5, 10]
    elif stage == 1:
        base = exps(c) + rcps()
        pos = [10, 15, 20] if late else [0, 6, 12]
    else:
        base = cvts() + exps(c) + rcps()
        pos = [12, 17, 22, 6] if late else [0, 7, 13, 20]
    ins = [(pos[0], w + [z[0]])] + [(pos[k], [z[k]]) for k in (1, 2)]
    if stage >= 2:
        ins.append((pos[3], [ssmf(c, par ^ 1, stage < 4)]))
    return [f"s_setprio {2 if role == 'A' else 1}"] + weave(base, ins) + ["s_setprio 0"]


def w2_loads(fs):
    out = []
    for f in fs:
        if f in (4, 8) or (f > 4 and f == fs[0]):
            out.append(f"s_add_u32 s{t3}, s{sW2}, {1024*(f & ~3)}")
        so = sW2 if f < 4 else t3
        out.append(f"buffer_load_dwordx4 {vr(W2R+4*f,4)}, v4, s[{sWF}:{sWF+3}], s{so} offen offset:{(f & 3) * 1024}")
    return out


def blk1(par, role, vm=4, w2=()):
    nst = (par + 1) & 1
    pf, ao = pf_reads(nst), ao_reads(par + 1)
    out = [f"s_waitcnt vmcnt({vm})"] + pf[:2] + ao + pf[2:] + idx_reads(par + 3) + [so_read(par, par)] + w2_loads(w2)
    return out + (["s_waitcnt lgkmcnt(0)"] if role == "A" else [])


def blk2(par, role="B"):
    nst = (par + 1) & 1
    tr = OPT.get("trace")
    lim = f"s{sSW}" if role == "A" and OPT.get("sw", 1) else "0"
    return (dma(nst * 4096) + (["s_memtime s[90:91]"] if tr else [])
            + [f"s_sub_u32 s{sI}, s{sI}, 1", f"s_cmp_le_u32 s{sI}, {lim}"]
            + (["s_waitcnt lgkmcnt(0)", f"s_mov_b32 m0, s{sI}", "v_writelane_b32 v186, s90, m0"] if tr else []))


INC = [f"v_add_u32 v{BA}, {2*BLKSZ}, v{BA}", f"v_add_u32 v{BI}, {2*BLKSZ}, v{BI}", f"v_add_u32 v{IA}, 256, v{IA}"]


def drain(par):
    return (cvts() + rcps()[:2] + [ssmf(0, par)] + rcps()[2:] + ["s_nop 0"] + fms() + cvts() + ["s_nop 1", ssmf(1, par)])


DG, RA, RR, SA, SR, XWA = 228, 236, 237, 238, 239, 240
sRM, sOA, sOB, sSW, sS = 12, 14, 15, 16, 17


def epi_prelude():
    t = [PF + k for k in range(12)]
    hi, p0, p1, n, kg, i0, i1, i2 = t[:8]
    head = [f"v_lshrrev_b32 v{kg}, 4, v1", f"v_and_b32 v{n}, 15, v1", f"s_sub_u32 s{t0}, s{sS}, 16",
            f"v_lshl_add_u32 v{RA}, v{kg}, 8, v4", f"v_cmp_le_u32 vcc, s{t0}, v{n}", f"v_add_u32 v{RA}, {RING0}, v{RA}",
            f"v_add_u32 v{RR}, 256, v{RA}", "s_mov_b64 exec, vcc", f"v_add_u32 v{RR}, 0x8000, v{RA}", "s_mov_b64 exec, -1"]
    L = [f"v_lshlrev_b32 v{i0}, 2, v{n}", f"v_add_u32 v{i1}, 64, v{i0}", f"v_add_u32 v{i2}, 128, v{i0}", f"v_lshlrev_b32 v{SA}, 3, v{kg}"]
    L += [f"ds_bpermute_b32 v{DG+tl}, v{ix}, v{DEG}" for tl, ix in enumerate((i0, i1, i2))]
    if OPT.get("ofull", 1):
        L += [f"s_movk_i32 s{t0}, 272", f"v_mad_u32_u24 v{SA}, v{n}, s{t0}, v{SA}", f"s_lshl_b32 s{t1}, s3, 5",
              f"v_add_u32 v{SA}, s{t1}, v{SA}", f"v_lshlrev_b32 v{SR}, 4, v{n}", f"v_mad_u32_u24 v{SR}, v{kg}, s{t0}, v{SR}",
              f"s_mul_i32 s{t0}, s3, {4*272}", f"v_add_u32 v{SR}, s{t0}, v{SR}", f"s_lshl_b32 s{t0}, s3, 2",
              f"s_sub_u32 s{t0}, s{sNB_}, s{t0}", f"s_sub_u32 s{t0}, s{t0}, 32", f"v_cmp_gt_i32 s[{sRM}:{sRM+1}], s{t0}, v{kg}",
              f"s_lshl_b32 s{sOA}, s{sN0}, 8", f"s_lshl_b32 s{t0}, s3, 10", f"s_add_u32 s{sOA}, s{sOA}, s{t0}",
              f"s_add_u32 s{sOB}, s{sOA}, 8192"]
        return head, L
    L += [f"v_lshl_add_u32 v{SA}, v{n}, 8, v{SA}", f"s_sub_u32 s{t0}, s{sNB_}, 32",
          f"v_cmp_gt_u32 s[{sRM}:{sRM+1}], s{t0}, v{n}", f"s_lshl_b32 s{sOA}, s{sN0}, 8", f"s_lshl_b32 s{t0}, s3, 5",
          f"s_add_u32 s{sOA}, s{sOA}, s{t0}", f"s_add_u32 s{sOB}, s{sOA}, 4096", f"s_add_u32 s{t1}, s{sOA}, 8192"]
    return head, L


def fast_loop(a, role):
    L = "K2" + role
    em = lambda ls: [a(l) for l in ls]
    A = role == "A"
    T = lambda c, par, stage: trun(c, par, stage, role)
    def unit(T_, blk, P):
        em(T_)
        em(blk + P if A else P + blk)
    unit(T(0, 0, 0), blk1(0, role), prun(0, False))
    unit(T(1, 0, 1), blk2(0), prun(1))
    unit(T(0, 1, 2), blk1(1, role), prun(0))
    if A:
        em(T(1, 1, 3)); em(blk2(1, role))
        a(f"s_cbranch_scc1 {L}_EXIT1")
        a.raw(f".p2align {OPT.get('al', 6)}")
        a.label(f"{L}_LOOP")
        em(INC + prun(1))
        unit(T(0, 0, 4), blk1(0, role), prun(0))
        em(T(1, 0, 4)); em(blk2(0, role))
        a(f"s_cbranch_scc1 {L}_EXIT0")
        em(prun(1))
        unit(T(0, 1, 4), blk1(1, role), prun(0))
        em(T(1, 1, 4)); em(blk2(1, role))
        a(f"s_cbranch_scc0 {L}_LOOP")
    else:
        unit(T(1, 1, 3), blk2(1), prun(1))
        a(f"s_cbranch_scc1 {L}_EXIT1")
        a.raw(f".p2align {OPT.get('al', 6)}")
        a.label(f"{L}_LOOP")
        unit(T(0, 0, 4), blk1(0, role), INC + prun(0))
        unit(T(1, 0, 4), blk2(0), prun(1))
        a(f"s_cbranch_scc1 {L}_EXIT0")
        a.label(f"{L}_MID")
        unit(T(0, 1, 4), blk1(1, role), prun(0))
        unit(T(1, 1, 4), blk2(1), prun(1))
        a(f"s_cbranch_scc0 {L}_LOOP")
    for par in (1, 0):
        a.label(f"{L}_EXIT{par}")
        if A:
            em(prun(1))
            if OPT.get("sw", 1):
                a(f"s_cmp_lg_u32 s{sI}, 0")
                a(f"s_cbranch_scc1 K2B_{'LOOP' if par else 'MID'}")
        em(drain(par))
        a("s_branch K2_EPI")


def gen_k2(force_slow=False, diag=False, nogather=False, **opt):
    OPT.clear(); OPT.update(opt)
    a = Asm()
    a.diag = diag
    smap = OPT.get("smap", dict(start=0, tab=1, rec=2, recl=3, b4=4, loop=5, epi=6, epb=7, end=8, drained=9))
    st = lambda name: a.stamp(smap[name]) if name in smap else None
    hi = lambda: a("s_setprio 3") if OPT.get("prio", True) else None
    lo = lambda: a("s_setprio 0") if OPT.get("prio", True) else None
    a(f"s_cmp_ge_u32 s2, {NBKT}")
    a("s_cbranch_scc1 K2_END")
    st("start")
    a.cyc(88)
    if diag:
        a("s_mov_b32 s89, s2")
    a("s_load_dwordx2 s[22:23], s[0:1], 80")
    a("s_load_dwordx2 s[4:5], s[0:1], 0")
    a("s_load_dwordx2 s[20:21], s[0:1], 64")
    Z = HF
    NZ0, NZ1, NZ2 = OPT.get("nz", (14, 14, 0))
    NLINE = (MISC + 256) // 256
    NZ = (NLINE + 7) // 8
    def clear(k0, k1):
        if k0 < k1:
            a("s_lshl_b32 m0, s3, 8")
            a("s_nop 0")
        for k in range(k0, k1):
            if k == NZ - 1:
                a(f"s_min_u32 s{t0}, s3, {NLINE - 1 - 8*k}")
                a(f"s_lshl_b32 m0, s{t0}, 8")
                a("s_nop 0")
            a(f"ds_write_addtid_b32 v{Z} offset:{2048*k}")
    LA = AO
    LR, L64, Q1 = AO + 4, AO + 5, AO + 6
    CST = MM
    MX = [QB, QB + 4, QB + 8, QB + 12, NN, NN + 4, W2R + 28, W2R + 32]
    OH, OX, BIL = 186, 187, AO + 7
    XA = W2R + 20
    a("v_lshrrev_b32 v2, 6, v0")
    a("v_and_b32 v1, 63, v0")
    a("v_readfirstlane_b32 s3, v2")
    a(f"v_mov_b32 v{Z}, 0")
    clear(0, NZ0)
    a(f"s_and_b32 s{t0}, s2, 7")
    a("s_lshr_b32 s2, s2, 3")
    a(f"s_lshl_b32 s{t0}, s{t0}, 5")
    a(f"s_add_u32 s2, s2, s{t0}")
    a(f"s_lshr_b32 s{sWIN}, s3, 2")
    a("v_lshrrev_b32 v3, 2, v0")
    a("v_lshlrev_b32 v7, 2, v3")
    a(f"v_mov_b32 v{VCNT}, 0")
    a(f"v_cmp_gt_u32 vcc, {NCHUNK}, v3")
    a(f"s_lshl_b32 s{t3}, s2, 9")
    a(f"s_mov_b32 s{sTAB+2}, {hex(NBKT * 512)}")
    a(f"s_mov_b32 s{sTAB+3}, 0x00020000")
    a(f"s_and_b32 s{sWV}, s3, 3")
    a(f"s_lshl_b32 s{t0}, s2, 17")
    a(f"s_add_u32 s{t0}, s{t0}, {BM-1}")
    a(f"s_add_u32 s{t2}, s{t0}, 0x20000")
    a(f"s_mul_hi_u32 s{sN0}, s{t0}, {hex(START_MAGIC)}")
    a(f"s_mul_hi_u32 s{t2}, s{t2}, {hex(START_MAGIC)}")
    a(f"s_lshr_b32 s{sN0}, s{sN0}, {START_SH}")
    a(f"s_lshr_b32 s{t2}, s{t2}, {START_SH}")
    a(f"s_min_u32 s{t2}, s{t2}, {N}")
    a(f"s_sub_u32 s{sNB_}, s{t2}, s{sN0}")
    a(f"s_lshl_b32 s{sWBO}, s3, 13")
    a(f"s_add_u32 s{sRING}, s{sWBO}, {RING0}")
    a("s_mov_b64 exec, vcc")
    a("s_waitcnt lgkmcnt(0)")
    a(f"s_add_u32 s{sTAB}, s22, {hex(WS_TAB)}")
    a(f"s_addc_u32 s{sTAB+1}, s23, 0")
    a(f"buffer_load_dword v{VCNT}, v7, s[{sTAB}:{sTAB+3}], s{t3} offen")
    a("s_mov_b64 exec, -1")
    clear(NZ0, NZ0 + NZ1)
    a("v_lshrrev_b32 v5, 4, v1")
    a("v_and_b32 v6, 15, v1")
    a("v_xor_b32 v6, v6, v5")
    a(f"s_lshl_b32 s{t1}, s{sWV}, 2")
    a(f"v_xor_b32 v6, s{t1}, v6")
    a("v_lshlrev_b32 v6, 4, v6")
    a("v_lshl_add_u32 v6, v5, 8, v6")
    a("v_lshlrev_b32 v4, 4, v1")
    a(f"s_lshl_b32 s{t1}, s{sN0}, 8")
    a(f"s_lshl_b32 s{t2}, s3, 10")
    a(f"s_add_u32 s{t1}, s{t1}, s{t2}")
    a(f"s_add_u32 m0, s{t2}, {XW}")
    a.srd(sX, 4, N * 256)
    a(f"buffer_load_dwordx4 v6, s[{sX}:{sX+3}], s{t1} offen lds")
    a("s_cmp_ge_u32 s3, 2")
    a("s_cbranch_scc1 K2_X2")
    a(f"s_add_u32 m0, s{t2}, {XW + 8192}")
    a(f"s_add_u32 s{t1}, s{t1}, 8192")
    a(f"buffer_load_dwordx4 v6, s[{sX}:{sX+3}], s{t1} offen lds")
    a.label("K2_X2")
    a(f"s_mov_b32 m0, s{sRING}")
    a.srd(sWF, 22, NFRAG * 1024, WS_WB)
    for z in range(4):
        a(f"buffer_load_dwordx4 v4, s[{sWF}:{sWF+3}], s{sWBO} offen offset:{1024*z} lds")
    a.srd(sREC, 22, E * RECB, WS_REC)
    a(f"s_mov_b32 s{sLO}, 0")
    a(f"s_mov_b32 s{sCAP}, {CAP1}")
    a(f"s_mov_b32 s{sF1}, 1")
    a(f"s_mov_b32 s{sF2}, 1")
    a(f"s_lshl_b32 s{sLIST}, s3, 9")
    a(f"s_add_u32 s{sLIST}, s{sLIST}, {LIST}")
    a("v_and_b32 v7, 3, v0")
    a(f"s_movk_i32 s{t0}, {CH}")
    a(f"v_mad_u32_u24 v{VREC}, v3, s{t0}, v7")
    a(f"v_mul_u32_u24 v{VREC}, {RECB}, v{VREC}")
    a(f"v_xor_b32 v{Q1}, 3, v7")
    a(f"v_lshlrev_b32 v{Q1}, 16, v{Q1}")
    a(f"v_lshl_add_u32 v{LR}, v1, 2, s{sLIST}")
    a(f"v_add_u32 v{L64}, 64, v1")
    a("v_and_b32 v2, 31, v1")
    a("v_lshrrev_b32 v5, 5, v1")
    a(f"s_lshl_b32 s{t0}, s{sWIN}, 4")
    a(f"v_add_u32 v{XA}, 12, v2")
    a(f"v_lshrrev_b32 v{XA}, 5, v{XA}")
    a(f"v_mad_i32_i24 v{XA}, v{XA}, -4, v2")
    a(f"v_add_u32 v{XA}, -4, v{XA}")
    a(f"v_min_u32 v{XA}, 23, v{XA}")
    a(f"v_add_u32 v{XA}, s{t0}, v{XA}")
    a(f"v_and_b32 v7, 15, v{XA}")
    a("v_xor_b32 v7, v7, v5")
    a("v_lshlrev_b32 v7, 4, v7")
    a(f"v_lshl_add_u32 v{XA}, v{XA}, 8, v7")
    a(f"v_add_u32 v{XA}, {XW}, v{XA}")
    for s in range(1, 8):
        a(f"v_xor_b32 v{XA+s}, {32*s}, v{XA}")
    a(f"s_lshl_b32 s{t0}, s{sWV}, 14")
    a(f"s_add_u32 s{t0}, s{t0}, {RING0}")
    a(f"v_add_u32 v3, s{t0}, v4")
    a.srd(sP, 22, N, WS_P, stride=512)
    a.srd(sOUT, 20, N * 256)
    a(f"s_mov_b32 s{sSINIT}, 0")
    a(f"s_mul_i32 s{sBLK}, s{sWIN}, {BLKW}")
    a(f"s_mul_i32 s{sIDX}, s{sWIN}, {IDXW}")
    a(f"s_add_u32 s{sIDX}, s{sIDX}, {IDX}")
    a(f"s_lshl_b32 s{t0}, s{sN0}, 2")
    a(f"s_sub_u32 s{sCA}, {CNT}, s{t0}")
    a(f"s_mov_b32 s{sSA}, {hex((-4*CNT) & 0xffffffff)}")
    a(f"s_mov_b32 s{sNW}, {IDX}")
    a(f"s_mul_i32 s{sW2}, s3, {9*1024}")
    a(f"s_add_u32 s{sW2}, s{sW2}, {WS_W2F - WS_WB}")
    clear(NZ0 + NZ1, NZ0 + NZ1 + NZ2)
    hi()
    a("s_waitcnt vmcnt(5)")
    st("tab")
    a(f"v_add_u32 v7, v{VCNT}, v{Q1}")
    a(f"v_and_b32 v6, 0xffff, v{VCNT}")
    a(f"v_lshrrev_b32 v{VCNT}, 18, v7")
    a(f"v_mad_u32_u24 v{VREC}, v6, {RECB}, v{VREC}")
    a(f"v_add_u32 v{LA+1}, {4*RECB}, v{VREC}")
    D = lambda src, ctl: a(f"v_add_u32_dpp v{VBASE}, v{src}, v{src} {ctl}")
    D(VCNT, "row_shr:1 row_mask:0xf bank_mask:0xf bound_ctrl:0")
    a(f"v_add_u32 v{LA+2}, {8*RECB}, v{VREC}")
    a(f"v_add_u32 v{LA+3}, {12*RECB}, v{VREC}")
    D(VBASE, "row_shr:2 row_mask:0xf bank_mask:0xf bound_ctrl:0")
    a(f"v_cmp_lt_u32 vcc, 4, v{VCNT}")
    a("s_nop 0")
    D(VBASE, "row_shr:4 row_mask:0xf bank_mask:0xf bound_ctrl:0")
    a("s_nop 1")
    D(VBASE, "row_shr:8 row_mask:0xf bank_mask:0xf bound_ctrl:0")
    a("s_nop 1")
    D(VBASE, "row_bcast:15 row_mask:0xa bank_mask:0xf")
    a("s_nop 1")
    D(VBASE, "row_bcast:31 row_mask:0xc bank_mask:0xf")
    a("s_cbranch_vccnz K2_GEN0")
    a(f"v_readlane_b32 s{sTW}, v{VBASE}, 63")
    a(f"v_sub_u32 v{VBASE}, v{VBASE}, v{VCNT}")
    a(f"v_lshl_add_u32 v6, v{VBASE}, 2, s{sLIST}")
    a(f"s_cmp_gt_u32 s{sTW}, {CAP1}")
    a("s_cbranch_scc1 K2_GEN")
    a(f"s_mov_b32 s{t0}, s{sTW}")
    for j in range(4):
        a(f"v_cmpx_lt_u32 vcc, {j}, v{VCNT}")
        a(f"ds_write_b32 v6, v{VREC if j == 0 else LA+j} offset:{4*j}")
    a.label("K2_LISTED")
    a("s_mov_b64 exec, -1")
    a(f"ds_read_b32 v{LA}, v{LR}")
    a(f"ds_read_b32 v{LA+1}, v{LR} offset:256")
    a(f"v_cmp_gt_u32 s[{sM0}:{sM0+1}], s{t0}, v1")
    a(f"v_cmp_gt_u32 s[{sM1}:{sM1+1}], s{t0}, v{L64}")
    R = (PF, PF + 4)
    for r in range(2):
        a(f"s_waitcnt lgkmcnt({1-r})")
        a(f"buffer_load_dwordx3 {vr(R[r],3)}, v{LA+r}, s[{sREC}:{sREC+3}], 0 offen")
    lo()
    st("rec")
    a(f"s_cmp_eq_u32 s{sF1}, 0")
    a("s_cbranch_scc1 K2_NF2")
    a(f"s_lshl_b32 s{t1}, s3, 11")
    a(f"s_add_u32 m0, s{t1}, {WBS}")
    a(f"s_add_u32 s{t0}, s{sWBO}, 4096")
    for z in range(2):
        a(f"buffer_load_dwordx4 v4, s[{sWF}:{sWF+3}], s{t0} offen offset:{1024*z} lds")
    L67 = OPT.get("l67", 1)
    if L67:
        a(f"s_add_u32 m0, s{sRING}, 2048")
        a("s_nop 0")
        for z in range(2, 4):
            a(f"buffer_load_dwordx4 v4, s[{sWF}:{sWF+3}], s{t0} offen offset:{1024*z} lds")
    a.label("K2_NF2")
    clear(NZ0 + NZ1 + NZ2, NZ)
    a(f"v_mov_b32 v{Z+4}, {PADIDX}")
    a("s_lshl_b32 m0, s3, 8")
    a(f"s_min_u32 s{t0}, s3, 4")
    a(f"ds_write_addtid_b32 v{Z+4} offset:{IDX}")
    a(f"s_lshl_b32 m0, s{t0}, 8")
    a("s_nop 0")
    a(f"ds_write_addtid_b32 v{Z+4} offset:{IDX + 2048}")
    a(f"s_cmp_eq_u32 s{sF1}, 0")
    a("s_cbranch_scc1 K2_NF3")
    a(f"v_and_b32 v{IX}, 7, v1")
    a("v_lshrrev_b32 v7, 4, v1")
    a(f"v_xor_b32 v7, v{IX}, v7")
    a("v_lshlrev_b32 v7, 4, v7")
    a(f"s_lshl_b32 s{t0}, s{sWV}, 7")
    a(f"v_add_u32 v{IX+1}, s{t0}, v7")
    a(f"v_xor_b32 v{IX+3}, 64, v{IX+1}")
    a(f"v_mov_b32 v{IX+5}, v{IX+1}")
    a(f"v_mov_b32 v{IX+7}, v{IX+3}")
    a(f"v_mov_b32 v{DEG}, 0")
    a(f"s_lshl_b32 s{t0}, s{sWV}, 11")
    a(f"s_add_u32 s{t0}, s{t0}, {WS_CST - WS_WB}")
    st("pb2")
    a(f"s_waitcnt vmcnt({6 if L67 else 4}) lgkmcnt(0)")
    a("s_barrier")
    st("b2")
    for s in range(4):
        for c in range(2):
            a(f"ds_read_b128 {vr(WBQ+4*(4*c+s),4)}, v3 offset:{(8*c+s)*1024}")
    for c in range(2):
        a(f"buffer_load_dwordx4 {vr(CST+4*c,4)}, v4, s[{sWF}:{sWF+3}], s{t0} offen offset:{1024*c}")
    if not L67:
        a(f"s_lshl_b32 s{t0}, s{sWV}, 14")
    for c in range(0 if L67 else 2):
        a(f"s_add_u32 s{t0}, s{t0}, {4096 if c == 0 else 8192}")
        for s in (6, 7):
            a(f"buffer_load_dwordx4 {vr(DD+8*c+4*(s-6),4)}, v4, s[{sWF}:{sWF+3}], s{t0} offen offset:{1024*(s-4)}")
    a("s_cmp_lg_u32 s3, 3")
    a("s_cbranch_scc1 K2_NMX")
    a.srd(sMX, 22, NGEMM * 16, WS_PMAX)
    a(f"s_movk_i32 s{t0}, 0x1000")
    for k in range(5):
        so = "0" if k < 4 else f"s{t0}"
        a(f"buffer_load_dwordx4 {vr(MX[k],4)}, v4, s[{sMX}:{sMX+3}], {so} offen offset:{(k & 3) * 1024}")
    a.srd(sMX, 22, NCHUNK * 20, WS_EMAX)
    for k in range(3):
        a(f"buffer_load_dwordx4 {vr(MX[5+k],4)}, v4, s[{sMX}:{sMX+3}], 0 offen offset:{1024*k}")
    a(f"s_waitcnt vmcnt({14 if L67 else 16})")
    a("s_branch K2_J3")
    a.label("K2_NMX")
    a(f"s_waitcnt vmcnt({6 if L67 else 8})")
    a.label("K2_J3")
    NW2 = OPT.get("nw2", 5)
    hi()
    st("recl")
    AC = (PF + 8, PF + 9); RK = (PF + 10, PF + 11); SU = (PF + 12, PF + 13); BP = (PF + 14, PF + 15)
    a("v_mov_b32 v6, 1")
    for r in range(2):
        a(f"v_lshrrev_b32 v{AC[r]}, 14, v{R[r]+2}")
    for r in range(2):
        a(f"v_lshl_add_u32 v{AC[r]}, v{AC[r]}, 2, s{sCA}")
    for r in range(2):
        a(f"s_mov_b64 exec, s[{(sM0, sM1)[r]}:{(sM0, sM1)[r]+1}]")
        a(f"ds_add_rtn_u32 v{RK[r]}, v{AC[r]}, v6")
    a("s_mov_b64 exec, -1")
    a(f"v_mov_b32 v7, {MISC}")
    a(f"v_mov_b32 v{Z+4}, s{sTW}")
    a(f"v_lshlrev_b32 v{Z+5}, 2, v1")
    a("s_mov_b64 exec, 1")
    a(f"ds_max_u32 v7, v{Z+4}")
    a("s_mov_b64 exec, -1")
    a(f"v_add_u32 v6, {CNT}, v{Z+5}")
    BX = (SO0, SO0 + 1); EW = (HB, AO)
    a("s_waitcnt lgkmcnt(0)")
    st("pb3")
    a("s_barrier")
    st("b3")
    a(f"ds_read_b32 v{Z+5}, v6")
    a(f"ds_read_b32 v{Z+4}, v7")
    for l in w2_loads(range(0, 2)): a(l)
    for r in range(2):
        a(f"v_and_b32 v{R[r]+2}, 0x3fff, v{R[r]+2}")
    a("s_waitcnt lgkmcnt(1)")
    a(f"v_add_u32 v7, 1, v{Z+5}")
    a("v_and_b32 v7, -2, v7")
    a("v_mov_b32 v6, v7")
    a(f"v_cvt_f32_u32 v{Z+5}, v{Z+5}")
    D7 = lambda ctl: a(f"v_add_u32_dpp v7, v7, v7 {ctl}")
    D7("row_shr:1 row_mask:0xf bank_mask:0xf bound_ctrl:0")
    a(f"v_mov_b32 v{Z+6}, {BLKSZ - 512}")
    a(f"v_mov_b32 v{Z+7}, {BLKSZ}")
    D7("row_shr:2 row_mask:0xf bank_mask:0xf bound_ctrl:0")
    a(f"v_add_u32 v{BA}, s{sBLK}, v4")
    a(f"v_lshrrev_b32 v{IA}, 3, v1")
    D7("row_shr:4 row_mask:0xf bank_mask:0xf bound_ctrl:0")
    a(f"v_lshl_add_u32 v{IA}, v{IA}, 2, s{sIDX}")
    a("s_waitcnt lgkmcnt(0)")
    D7("row_shr:8 row_mask:0xf bank_mask:0xf bound_ctrl:0")
    a(f"v_readfirstlane_b32 s{t2}, v{Z+4}")
    a(f"v_mov_b32 v{Z+4}, 0x3f80")
    D7("row_bcast:15 row_mask:0xa bank_mask:0xf")
    a(f"v_mov_b32 v{Z+3}, {BLKSZ - 128}")
    a("s_nop 0")
    D7("row_bcast:31 row_mask:0xc bank_mask:0xf")
    a(f"s_cmp_eq_u32 s{sCAP}, {CAP2}")
    a(f"v_readlane_b32 s{t1}, v7, 63")
    a("v_sub_u32 v6, v7, v6")
    a("s_cbranch_scc1 K2_FIX")
    a(f"s_add_u32 s{t0}, s{t1}, 63")
    a(f"s_lshr_b32 s{t0}, s{t0}, 6")
    a(f"s_lshl_b32 s{t0}, s{t0}, 5")
    a.label("K2_CUT")
    a(f"s_sub_u32 s{sS}, s{t1}, s{t0}")
    a(f"v_cmp_ge_u32 vcc, s{t0}, v7")
    a(f"v_cmp_le_i32 s[{sRM}:{sRM+1}], s{sS}, v7")
    a(f"s_and_b32 s{sS}, vcc_lo, 0xff8000")
    a(f"s_and_b32 s{sS}, s{sS}, s{sRM}")
    a("s_cbranch_scc0 K2_CUT2")
    a(f"s_flbit_i32_b32 s{sS}, s{sS}")
    a(f"s_sub_u32 s{sS}, 31, s{sS}")
    a.label("K2_CUTD")
    a(f"v_readlane_b32 s{t0}, v7, s{sS}")
    a(f"s_add_u32 s{sS}, s{sS}, 1")
    a(f"s_lshl_b64 exec, -1, s{sS}")
    a(f"s_sub_u32 s{sRM}, {MAXT*32}, s{t0}")
    a(f"v_add_u32 v6, s{sRM}, v6")
    a("s_mov_b64 exec, -1")
    for r in range(2):
        a(f"ds_bpermute_b32 v{BP[r]}, v{AC[r]}, v6")
    a(f"s_sub_u32 s{t1}, s{t1}, s{t0}")
    for l in w2_loads(range(2, NW2)): a(l)
    a(f"s_mov_b32 s{sF1}, 0")
    a(f"s_cmp_eq_u32 s{sWIN}, 0")
    a(f"s_cselect_b32 s{sNT}, s{t0}, s{t1}")
    a(f"s_add_u32 s{sNT}, s{sNT}, 31")
    a(f"s_lshr_b32 s{sNT}, s{sNT}, 5")
    a(f"s_add_u32 s{sSW}, s{t0}, 31")
    a(f"s_lshr_b32 s{sSW}, s{sSW}, 5")
    a(f"s_sub_u32 s{sSW}, s{sNT}, s{sSW}")
    a(f"s_max_i32 s{sSW}, s{sSW}, 0")
    a(f"s_max_u32 s{t0}, s{t0}, s{t1}")
    a(f"s_cmp_gt_u32 s{t0}, {MAXT*32}")
    a(f"s_cselect_b32 s{t0}, 0x7fffffff, s{t2}")
    a(f"s_cmp_gt_u32 s{t0}, s{sCAP}")
    a("s_cbranch_scc1 K2_OV")
    a.label("K2_NOOV")
    t = [T1 + k for k in range(8)]
    BO = (SO0 + 2, SO0 + 3)
    a(f"s_lshl_b32 s{t0}, s{sS}, 2")
    a(f"s_add_u32 s{t0}, s{t0}, {CNT}")
    for r in range(2):
        a(f"s_waitcnt lgkmcnt({1-r})")
        a(f"v_add_u32 v{BP[r]}, v{BP[r]}, v{RK[r]}")
        a(f"v_lshl_add_u32 v{t[r]}, v{BP[r]}, 2, s{sNW}")
    for r in range(2):
        a(f"s_mov_b64 exec, s[{(sM0, sM1)[r]}:{(sM0, sM1)[r]+1}]")
        if not nogather:
            a(f"ds_write_b32 v{t[r]}, v{R[r]+2}")
    a("s_mov_b64 exec, -1")
    a(f"v_add_f32 v{DEG}, v{DEG}, v{Z+5}")
    def lookups():
        for r in range(2):
            a(f"v_cmpx_le_u32 vcc, s{t0}, v{AC[r]}")
            a(f"v_add_u32 v{AC[r]}, -64, v{AC[r]}")
            a("s_mov_b64 exec, -1")
        for r in range(2):
            a(f"ds_bpermute_b32 v{BO[r]}, v{AC[r]}, v{OH}")
            a(f"ds_bpermute_b32 v{BX[r]}, v{AC[r]}, v{OX}")

    def scatter(extra=()):
        extra = list(extra)
        cnt = [0]
        def e(l):
            a(l)
            cnt[0] += 1
            if extra and l.startswith('v_') and cnt[0] % 4 == 0:
                a(extra.pop(0))
        for r in range(2):
            e(f"v_lshl_add_u32 v{SU[r]}, v{AC[r]}, 2, s{sSA}")
        a("s_waitcnt lgkmcnt(0)")
        for r in range(2):
            p = BP[r]
            e(f"v_lshrrev_b32 v{t[0]}, 5, v{p}")
            e(f"v_mul_u32_u24 v{t[2]}, v{t[0]}, v{Z+6}")
            e(f"v_mad_u32_u24 v{t[3]}, v{t[0]}, v{Z+7}, v{SU[r]}")
            e(f"v_lshl_add_u32 v{t[2]}, v{p}, 4, v{t[2]}")
            e(f"v_mul_u32_u24 v{t[6]}, v{t[0]}, v{Z+3}")
            e(f"v_and_b32 v{t[4]}, 4, v{p}")
            e(f"v_lshrrev_b32 v{t[5]}, 1, v{p}")
            e(f"v_lshl_add_u32 v{t[3]}, v{t[4]}, 7, v{t[3]}")
            e(f"v_add_u32 v{t[4]}, v{BO[r]}, v{t[2]}")
            e(f"v_and_or_b32 v{t[3]}, v{t[5]}, 12, v{t[3]}")
            e(f"v_lshl_add_u32 v{t[6]}, v{p}, 2, v{t[6]}")
            e(f"v_and_or_b32 v{t[3]}, v{p}, 2, v{t[3]}")
            a(f"s_mov_b64 exec, s[{(sM0, sM1)[r]}:{(sM0, sM1)[r]+1}]")
            a(f"ds_write2_b32 v{t[2]}, v{R[r]}, v{R[r]+1} offset0:0 offset1:128")
            a(f"ds_write_b16 v{t[4]}, v{Z+4}")
            a(f"ds_write_b32 v{t[6]}, v{BX[r]} offset:{O_IX}")
            a(f"ds_write_b16 v{t[3]}, v{Z+4} offset:{O_SO}")
            a("s_mov_b64 exec, -1")
        while extra: a(extra.pop(0))
    scatter.n = 1
    a(f"s_waitcnt vmcnt({NW2}) lgkmcnt(0)")
    st("pb4")
    a("s_barrier")
    st("b4")
    for l in idx_reads(0): a(l)
    a(f"s_cmp_eq_u32 s{sF2}, 0")
    a("s_cbranch_scc1 K2_NF4")
    WB2 = HB
    QE = OPT.get("qe", 2)
    dq = DsTrack(a)
    def qm(s):
        return [mfma(S + 16*c, T0 + 4*s, WBQ + 4*(4*c+s) if s < 4 else WB2 + 4*(2*c+s-4) if s < 6 else DD + 8*c + 4*(s-6), None if s == 0 else S + 16*c) for c in range(2)]
    WV = OPT.get("wv", 0)
    QE = OPT.get("qe", 2)
    D1 = OPT.get("d1", 1)
    for s in range(WV):
        a(f"ds_read_b128 {vr(T0+4*s,4)}, v{XA+s}")
    a(f"s_waitcnt lgkmcnt({WV})")
    for l in dma(0): a(l)
    HH = 5
    a("v_add_u32 v6, 20, v2")
    a("v_lshrrev_b32 v6, 5, v6")
    a("v_lshrrev_b32 v7, 2, v2")
    a("v_add3_u32 v6, v6, v7, 1")
    a(f"v_bfe_u32 v{OH}, v6, 1, 1")
    a(f"v_and_b32 v{OX}, 1, v6")
    a(f"v_lshl_add_u32 v{OH}, v{OX}, 1, v{OH}")
    a(f"v_lshlrev_b32 v{OH}, 2, v{OH}")
    a("v_lshrrev_b32 v6, 2, v6")
    a(f"v_lshl_add_u32 v{OX}, v6, 4, v{OH}")
    a("v_and_b32 v7, 3, v2")
    a(f"v_lshlrev_b32 v{OX}, v{OX}, v7")
    a(f"v_or_b32 v{OX}, 0x40004, v{OX}")
    a(f"v_lshl_add_u32 v{OH}, v6, 9, v{OH}")
    a(f"v_lshlrev_b32 v{BIL}, 2, v2")
    a(f"v_lshl_add_u32 v{BIL}, v{HH}, 1, v{BIL}")
    lookups()
    a("v_bfe_u32 v6, v1, 1, 3")
    a(f"v_xor_b32 v6, v6, v{HH}")
    a("v_lshlrev_b32 v6, 4, v6")
    a("v_lshl_add_u32 v6, v2, 7, v6")
    a(f"v_add_u32 v{PA}, s{sRING}, v6")
    for k in range(1, 4):
        a(f"v_xor_b32 v{PA+k}, {32*k}, v{PA}")
    a("v_and_b32 v7, 1, v1")
    a("v_lshlrev_b32 v7, 4, v7")
    a("v_mov_b32 v6, 0x3f80")
    a("v_lshlrev_b32 v7, v7, v6")
    for i in range(2):
        a(f"v_mov_b32 v{IDN+4*i}, 0")
    for i in range(2):
        a(f"s_mov_b32 exec_lo, {hex(3 << (16*i))}")
        a(f"s_mov_b32 exec_hi, {hex(3 << (16*i + 8))}")
        a(f"v_mov_b32 v{IDN+4*i}, v7")
    a("s_mov_b64 exec, -1")
    fl = [f"s_lshl_b32 s{t0}, s{sWV}, 12", f"s_add_u32 s{t0}, s{t0}, {WBS}", f"v_add_u32 v2, s{t0}, v4"]
    for q in range(1, 4):
        a(fl[q-1])
        for i in range(2):
            a(f"v_mov_b32_dpp v{IDN+4*i+q}, v{IDN+4*i+q-1} row_shr:2 row_mask:0xf bank_mask:0xf bound_ctrl:0")
    a(f"v_add_u32 v{BI}, s{sBLK}, v{BIL}")
    st("dma0")
    if WV:
        a("s_waitcnt lgkmcnt(0)")
    scatter([l for s in range(WV) for l in qm(s)])
    st("scat")
    for s in range(WV, QE):
        dq(f"ds_read_b128 {vr(T0+4*s,4)}, v{XA+s}", f"x{s}")
    for l in idx_reads(1): dq(l, "w")
    for s in range(4, 8 if L67 else 6):
        for c in range(2):
            if s < 6:
                dq(f"ds_read_b128 {vr(WB2+4*(2*c+s-4),4)}, v2 offset:{(2*c+s-4)*1024}", "w")
            else:
                dq(f"ds_read_b128 {vr(DD+8*c+4*(s-6),4)}, v3 offset:{8192*c+4096+(s-6)*1024}", "w")
    lo()
    for s in range(WV, QE):
        dq.wait(f"x{s}")
        for l in qm(s): a(l)
    for s in range(max(WV, QE), 8):
        dq(f"ds_read_b128 {vr(T0+4*s,4)}, v{XA+s}", f"x{s}")
    a("s_cmp_lg_u32 s3, 3")
    a("s_cbranch_scc1 K2_NMX2")
    mx = [MX[k] + q for k in range(5) for q in range(4)]
    for k in range(1, 10):
        a(f"v_max3_u32 v{mx[0]}, v{mx[0]}, v{mx[2*k-1]}, v{mx[2*k]}")
    a(f"v_max_u32 v{Z}, v{mx[0]}, v{mx[19]}")
    me = [MX[k] + q for k in range(5, 8) for q in range(4)]
    for k in range(1, 6):
        a(f"v_max3_u32 v{me[0]}, v{me[0]}, v{me[2*k-1]}, v{me[2*k]}")
    a(f"v_max_u32 v{Z+1}, v{me[0]}, v{me[11]}")
    for sh in (1, 2, 4, 8):
        a("s_nop 0")
        for k in range(2):
            a(f"v_max_u32_dpp v{Z+k}, v{Z+k}, v{Z+k} row_shr:{sh} row_mask:0xf bank_mask:0xf bound_ctrl:0")
    for bc, rm in ((15, "0xa"), (31, "0xc")):
        a("s_nop 0")
        for k in range(2):
            a(f"v_max_u32_dpp v{Z+k}, v{Z+k}, v{Z+k} row_bcast:{bc} row_mask:{rm} bank_mask:0xf")
    a(f"v_mov_b32 v7, {MISC + 4}")
    a("s_mov_b32 exec_lo, 0")
    a("s_mov_b32 exec_hi, 0x80000000")
    a(f"ds_write2_b32 v7, v{Z}, v{Z+1} offset0:0 offset1:1")
    a("s_mov_b64 exec, -1")
    a("s_waitcnt lgkmcnt(0)")
    a.label("K2_NMX2")
    a(f"v_mov_b32 v7, {MISC + 4}")
    dm = dma(4096)
    early = QE < 8
    if early:
        dq.wait("w")
        st("pb5")
        a("s_barrier")
        st("b5")
        if D1 == 1:
            for l in dm: a(l)
        st("dma1")
        dq(f"ds_read2_b32 {vr(Z+4,2)}, v7 offset0:0 offset1:1")
    for s in range(max(WV, QE), 8):
        dq.wait(f"x{s}")
        for c, l in enumerate(qm(s)):
            a(l)
            if D1 == 2 and s >= 4:
                a(dm[3*(s-4) + 2*c])
    st("q8")
    a(f"s_mov_b32 s{sSLOW}, {1 if force_slow else 0}")
    a(f"s_mov_b32 s{sF2}, 0")
    a(f"s_mov_b32 s{sNB}, 1")
    a("s_nop 7")
    for c in range(2):
        q = S + 16*c
        a(f"v_max_f32 v6, |v{q}|, |v{q+1}|")
        for r in range(2, 16, 2):
            a(f"v_max3_f32 v6, |v{q+r}|, |v{q+r+1}|, v6")
        for p in range(8):
            a(f"v_cvt_pk_bf16_f32 v{QB+8*c+p}, v{q+2*p}, v{q+2*p+1}")
        a("s_mov_b32 exec_hi, 0")
        for p in range(2):
            a(f"v_mov_b32 v{QB+8*c+4*p}, v{CST+4*c+p}")
        a("s_mov_b32 exec_hi, -1")
        if c == 0:
            a("s_waitcnt lgkmcnt(0)")
        a(f"v_fma_f32 v7, v{Z+5}, v{CST+4*c+3}, v{Z+4}")
        a("v_add_f32 v6, v7, v6")
        a(f"v_cmp_nge_f32 vcc, {hex(f32bits(30.0 if OPT.get('quad', 0) else 60.0))}, v6")
        a("s_cmp_lg_u64 vcc, 0")
        a(f"s_cselect_b32 s{sSLOW}, 1, s{sSLOW}")
        if c == 0 and OPT.get("pfe", 0):
            for l in ao_reads(0) + idx_reads(2): a(l)
            a("s_waitcnt vmcnt(4)")
            for l in pf_reads(0): a(l)
    a(f"s_cmp_lt_u32 s{sNT}, 2")
    a(f"s_cselect_b32 s{t0}, 1, s{sSLOW}")
    a(f"s_cmp_eq_u32 s{sCAP}, {CAP2}")
    a("s_cbranch_scc1 K2_SLOW0")
    a(f"s_mov_b32 s{sI}, s{sNT}")
    a(f"s_cmp_lg_u32 s{t0}, 0")
    a("s_cbranch_scc1 K2_SLOW")
    st("post")
    if not OPT.get("pfe", 0):
        for l in ao_reads(0) + idx_reads(2): a(l)
        a("s_waitcnt vmcnt(4)")
    st("loop")
    a.cyc(71)
    if not OPT.get("pfe", 0):
        for l in pf_reads(0): a(l)
    a("s_waitcnt lgkmcnt(0)")
    for l in zmf(0): a(l)
    for l in dma(0): a(l)
    a(f"s_cmp_lg_u32 s{sWIN}, 0")
    a("s_cbranch_scc1 K2_FA")
    a("s_nop 1")
    fast_loop(a, "B")
    a.label("K2_FA")
    a("s_nop 1")
    fast_loop(a, "A")
    a.label("K2_CUT2")
    a(f"s_add_u32 s{t0}, s{t0}, 32")
    a(f"s_lshl_b32 s{sS}, s{t0}, 1")
    a(f"s_sub_u32 s{sS}, s{sS}, 128")
    a(f"s_cmp_lt_i32 s{sS}, s{t1}")
    a("s_cbranch_scc1 K2_CUT")
    a.label("K2_FIX")
    a(f"s_mov_b32 s{sS}, 19")
    a("s_branch K2_CUTD")
    a.label("K2_NF3")
    a("s_waitcnt vmcnt(0) lgkmcnt(0)")
    a("s_barrier")
    a("s_branch K2_J3")
    a.label("K2_NF4")
    a("s_waitcnt lgkmcnt(0)")
    for l in dma(0) + idx_reads(1): a(l)
    lookups()
    a(f"v_add_u32 v{BI}, s{sBLK}, v{BIL}")
    scatter()
    a("s_waitcnt lgkmcnt(0)")
    a("s_barrier")
    for l in dma(4096): a(l)
    a("s_branch K2_SLOW")
    a.label("K2_OV")
    a(f"s_cmp_eq_u32 s{sCAP}, {CAP2}")
    a("s_cbranch_scc1 K2_NOOV")
    a(f"s_mov_b32 s{sCAP}, {CAP2}")
    a(f"s_add_u32 s{t2}, s{t2}, {CAP2-1}")
    a(f"s_mul_hi_u32 s{sNB2}, s{t2}, {hex((2**32 + CAP2 - 1)//CAP2)}")
    a("s_waitcnt lgkmcnt(0)")
    a("s_barrier")
    a.label("K2_BATCH")
    a(f"v_mov_b32 v{Z}, 0")
    clear(0, NZ0 + NZ1 + NZ2)
    a(f"v_lshl_add_u32 v{LR}, v1, 2, s{sLIST}")
    a(f"v_add_u32 v{L64}, 64, v1")
    a("s_branch K2_GEN")
    a.label("K2_GEN0")
    a(f"v_readlane_b32 s{sTW}, v{VBASE}, 63")
    a(f"v_sub_u32 v{VBASE}, v{VBASE}, v{VCNT}")
    a.label("K2_GEN")
    a(f"s_add_u32 s{t0}, s{sLO}, s{sCAP}")
    a(f"s_lshl_b32 s{t2}, s{sLO}, 2")
    a(f"s_sub_u32 s{t2}, s{sLIST}, s{t2}")
    a(f"v_max_u32 v6, s{sLO}, v{VBASE}")
    a(f"v_add_u32 v7, v{VBASE}, v{VCNT}")
    a(f"v_min_u32 v7, s{t0}, v7")
    a(f"v_sub_u32 v{LA}, v6, v{VBASE}")
    a(f"v_mad_u32_u24 v{LA}, v{LA}, {4*RECB}, v{VREC}")
    a("v_sub_u32 v7, v7, v6")
    a(f"v_lshl_add_u32 v6, v6, 2, s{t2}")
    a.label("K2_EXP")
    for j in range(4):
        a(f"v_cmpx_lt_i32 vcc, {j}, v7")
        a(f"ds_write_b32 v6, v{LA} offset:{4*j}")
        a(f"v_add_u32 v{LA}, {4*RECB}, v{LA}")
    a("v_cmpx_lt_i32 vcc, 4, v7")
    a("v_add_u32 v6, 16, v6")
    a("v_subrev_u32 v7, 4, v7")
    a(f"s_sub_u32 s{t0}, s{sTW}, s{sLO}")
    a(f"s_max_i32 s{t0}, s{t0}, 0")
    a(f"s_min_u32 s{t0}, s{t0}, s{sCAP}")
    a("s_nop 1")
    a("s_cbranch_execnz K2_EXP")
    a("s_branch K2_LISTED")
    a.label("K2_SLOW0")
    a(f"s_mov_b32 s{sNB}, s{sNB2}")
    a.label("K2_SLOW")
    a(f"s_mov_b32 s{sI}, s{sNT}")
    a(f"s_cmp_lg_u32 s{sSINIT}, 0")
    a("s_cbranch_scc1 K2_SL1")
    for r in range(32):
        a(f"v_mov_b32 v{S+r}, 0")
    a(f"s_mov_b32 s{sSINIT}, 1")
    a.label("K2_SL1")
    a(f"s_cmp_eq_u32 s{sNT}, 0")
    a("s_cbranch_scc1 K2_BDONE")
    a(f"s_mov_b32 s{t1}, s{sRING}")
    a.label("K2_SLOOP")
    a("s_waitcnt vmcnt(0)")
    for l in pf_reads(0) + ao_reads(0) + [so_read(0, 0)] + idx_reads(2): a(l)
    a("s_waitcnt lgkmcnt(0)")
    for l in dma(0): a(l)
    for c in range(2):
        for l in zmf(c): a(l)
        a("s_nop 15")
        for l in exps(c): a(l)
        for r in range(16): a(f"v_add_f32 v{DD+r}, 1.0, v{DD+r}")
        for r in range(16): a(f"v_rcp_f32 v{DD+r}, v{DD+r}")
        for j in range(8):
            a(f"v_mul_f32 v{HF+j}, v{TT[c]+2*j}, v{DD+2*j}")
        for j in range(8):
            a(f"v_fma_f32 v{HF+j}, v{TT[c]+2*j+1}, v{DD+2*j+1}, v{HF+j}")
        for l in cvts(): a(l)
        a("s_nop 1")
        a(ssmf(c, 0))
    for k in range(4):
        a(f"v_xor_b32 v{PA+k}, 0x1000, v{PA+k}")
    a(f"s_xor_b32 s{sRING}, s{sRING}, 0x1000")
    a(f"v_add_u32 v{BA}, {BLKSZ}, v{BA}")
    a(f"v_add_u32 v{BI}, {BLKSZ}, v{BI}")
    a(f"v_add_u32 v{IA}, 128, v{IA}")
    a(f"s_sub_u32 s{sI}, s{sI}, 1")
    a(f"s_cmp_lg_u32 s{sI}, 0")
    a("s_cbranch_scc1 K2_SLOOP")
    a(f"s_xor_b32 s{t0}, s{t1}, s{sRING}")
    a(f"s_mov_b32 s{sRING}, s{t1}")
    for k in range(4):
        a(f"v_xor_b32 v{PA+k}, s{t0}, v{PA+k}")
    a.label("K2_BDONE")
    a(f"s_add_u32 s{sLO}, s{sLO}, s{sCAP}")
    a(f"s_sub_u32 s{sNB}, s{sNB}, 1")
    a(f"s_cmp_eq_u32 s{sNB}, 0")
    a("s_cbranch_scc1 K2_EPI")
    a("s_waitcnt vmcnt(0) lgkmcnt(0)")
    a("s_barrier")
    a("s_branch K2_BATCH")
    a.label("K2_EPI")
    st("epi")
    a.cyc(81)
    if diag: a("s_sub_u32 s71, s81, s71")
    a(f"s_mov_b32 s{t2}, {hex(f32bits(-LN2))}")
    for l in w2_loads(range(NW2, 9)): a(l)
    a(f"v_add_u32 v{XWA}, s{sRING}, v4")
    a(f"s_waitcnt vmcnt({9 - NW2})")
    for k in range(4):
        for p in range(4*k, 4*k + 4):
            a(f"v_cvt_pk_bf16_f32 v{DD+p}, v{S+2*p}, v{S+2*p+1}")
        a(f"ds_write_b128 v{XWA}, {vr(DD+4*k,4)} offset:{1024*k}")
    head, pre = epi_prelude()
    if not OPT.get("eweave", 1):
        head, pre = head + pre, []
    for l in head: a(l)
    ACC, BIAS = T0, T1
    a("s_waitcnt lgkmcnt(0)")
    a("s_barrier")
    st("epb")
    de = DsTrack(a)
    XB = S
    jobs = [(ct, tl) for ct in range(8) for tl in range(3)]
    def xr(k):
        ct, tl = jobs[k]
        off = (ct >> 1) * 8192 + (ct & 1) * 2048 + (32768 + 256 if tl == 2 else 0)
        de(f"ds_read_b128 {vr(XB+4*(k&7),4)}, v{RR if tl == 1 else RA} offset:{off}", k)
    for k in range(8): xr(k)
    for l in pre[:7]: de(l, "dg")
    pre = pre[7:]
    if pre:
        pre += ["s_nop 0"] * (len(pre) & 1)
    else:
        a("s_nop 0")
    bias = [f"v_mul_f32 v{BIAS+4*tl+r}, v{DG+tl}, v{W2R+32+r}" for tl in range(3) for r in range(4)]
    for k, (ct, tl) in enumerate(jobs):
        de.wait(k)
        if tl == 0 and ct >= NW2:
            a(f"s_waitcnt vmcnt({8 - ct if ct < 7 else 0})")
        if k == 21:
            pre = bias
        a(mfma16(ACC + 4*tl, W2R + 4*ct, XB + 4*(k & 7), None if ct == 0 else ACC + 4*tl))
        if k + 8 < 24:
            xr(k + 8)
        n_ = 4 if k >= 21 else 2
        for l in pre[:n_]: de(l, "dg")
        pre = pre[n_:]
    if OPT.get("ofull", 1):
        a("s_nop 3")
        for tl in range(3):
            for r in range(4):
                a(f"v_fma_f32 v{ACC+4*tl+r}, v{ACC+4*tl+r}, s{t2}, v{BIAS+4*tl+r}")
            for p in range(2):
                a(f"v_cvt_pk_bf16_f32 v{DD+2*tl+p}, v{ACC+4*tl+2*p}, v{ACC+4*tl+2*p+1}")
            a(f"ds_write_b64 v{SA}, {vr(DD+2*tl,2)} offset:{16*272*tl}")
        a("s_cmp_ge_u32 s3, 2")
        a("s_waitcnt lgkmcnt(0)")
        a("s_barrier")
        a(f"ds_read_b128 {vr(DD,4)}, v{SR}")
        a("s_cbranch_scc1 K2_ST1")
        a(f"ds_read_b128 {vr(DD+4,4)}, v{SR} offset:{32*272}")
        a(f"s_mov_b64 exec, s[{sRM}:{sRM+1}]")
        a("s_waitcnt lgkmcnt(0)")
        a(f"buffer_store_dwordx4 {vr(DD+4,4)}, v4, s[{sOUT}:{sOUT+3}], s{sOB} offen {OPT.get('of', 'sc0 sc1')}")
        a("s_mov_b64 exec, -1")
        a.label("K2_ST1")
        a("s_waitcnt lgkmcnt(0)")
        a(f"buffer_store_dwordx4 {vr(DD,4)}, v4, s[{sOUT}:{sOUT+3}], s{sOA} offen {OPT.get('of', 'sc0 sc1')}")
    else:
        a("s_nop 3")
        for tl in range(3):
            for r in range(4):
                a(f"v_fma_f32 v{ACC+4*tl+r}, v{ACC+4*tl+r}, s{t2}, v{BIAS+4*tl+r}")
            for p in range(2):
                a(f"v_cvt_pk_bf16_f32 v{DD+2*tl+p}, v{ACC+4*tl+2*p}, v{ACC+4*tl+2*p+1}")
            if tl == 2:
                a(f"s_mov_b64 exec, s[{sRM}:{sRM+1}]")
            a(f"buffer_store_dwordx2 {vr(DD+2*tl,2)}, v{SA}, s[{sOUT}:{sOUT+3}], s{(sOA, sOB, t1)[tl]} offen {OPT.get('of', '')}")
    if diag:
        st("end")
        a("s_waitcnt vmcnt(0)")
        st("drained")
        if OPT.get("trace"):
            a("s_mov_b64 exec, -1")
            a("v_writelane_b32 v186, s81, 20")
            a("s_sub_u32 s90, s81, s71")
            a("v_writelane_b32 v186, s90, 21")
            a(f"v_writelane_b32 v186, s{sNT}, 22")
            a.srd(84, 22, 0x80000, WS_STAMP + 0x100000)
            a("s_lshl_b32 s90, s89, 3")
            a("s_add_u32 s90, s90, s3")
            a("s_lshl_b32 s90, s90, 8")
            a("v_lshlrev_b32 v6, 2, v1")
            a("buffer_store_dword v186, v6, s[84:87], s90 offen")
        if "smap" not in OPT: a("s_mov_b32 s100, s71")
        a("s_lshl_b32 s89, s89, 1")
        a(f"s_add_u32 s89, s89, s{sWIN}")
        a.stamp_flush(22, 1, 89, sWV)
    if OPT.get("lite"):
        a("s_waitcnt vmcnt(0)")
        a("s_memrealtime s[90:91]")
        a("s_mov_b64 exec, 1")
        a.srd(84, 22, 0x80000, WS_STAMP + 0x80000)
        a("s_lshl_b32 s88, s2, 3")
        a("s_add_u32 s88, s88, s3")
        a("s_lshl_b32 s88, s88, 2")
        a("v_mov_b32 v0, 0")
        a("s_waitcnt lgkmcnt(0)")
        a("v_mov_b32 v1, s90")
        a("buffer_store_dword v1, v0, s[84:87], s88 offen")
    a.label("K2_END")
    a("s_endpgm")
    return a.text()
```

```python
import sys
from common import *
from k1 import gen_k1, K1_LDS, K1_VGPR, K1_BLOCK
from k2 import gen_k2, K2_LDS, K2_VGPR, K2_BLOCK

HEADER = open("gather_scatter__edge_featured_mpnn_mpnn__graph.s.ref").read().split("; Override launch")[0]

DOC = """;
;
"""


def build(order=("sort","gemm"), extra=0, diag=False, dup1=1, dup2=1, pre=0, pf='nt', rf='', cpf=8, xc=True, wf='', wfirst=False, slast=False, sprio=False, elate=1, mix=0, gprio=0, cpw=1, **kw):
    k1, n1 = gen_k1(order, diag, pf, rf, cpf, xc, wf, wfirst, slast, sprio, elate, mix, gprio, cpw)
    k2 = gen_k2(diag=diag, **kw)
    s = HEADER
    nop = "; @launch kernel=mpnn_nop_kernel grid=(256,1,1) block=(256,1,1) lds=0\n"
    s += nop * pre
    s += f"; @launch kernel=mpnn_pre_kernel grid=({n1},1,1) block=({K1_BLOCK},1,1) lds={K1_LDS}\n" * dup1
    s += nop * extra
    s += f"; @launch kernel=mpnn_main_kernel grid=({NBKT},1,1) block=({K2_BLOCK},1,1) lds={K2_LDS}\n" * dup2
    s += DOC
    s += '.amdgcn_target "amdgcn-amd-amdhsa--gfx950"\n'
    s += entry("mpnn_pre_kernel") + k1
    s += entry("mpnn_main_kernel") + k2
    if extra or pre:
        s += entry("mpnn_nop_kernel") + "    s_endpgm\n"
    s += descriptor("mpnn_pre_kernel", K1_VGPR) + descriptor("mpnn_main_kernel", K2_VGPR)
    if extra or pre:
        s += descriptor("mpnn_nop_kernel", 8)
    return s

if __name__ == "__main__":
    out = sys.argv[1] if len(sys.argv) > 1 else "gather_scatter__edge_featured_mpnn_mpnn__graph.s"
    kw = eval("dict(" + (sys.argv[2] if len(sys.argv) > 2 else "") + ")")
    open(out, "w").write(build(**kw))
```

```python
from common import *

K1_LDS = 65536
K1_VGPR = 128
K1_BLOCK = 320


SF = {"p": "", "r": ""}


def gen_k1(order=("sort", "gemm"), diag=False, pf="", rf="", cpf=16, xc=True, wf="", wfirst=False, slast=False, sprio=False, elate=1, mix=0, gprio=0):
    SF["p"], SF["r"] = pf, rf
    a = Asm()
    a.diag = diag
    NSW = 128 if xc else NCHUNK
    SF["xc"] = xc
    SF["w"] = wf
    SF["wfirst"] = wfirst
    SF["elate"] = elate
    SF["mix"] = mix
    SF["gprio"] = gprio
    total = NSW + NGEMMW
    a(f"s_cmp_ge_u32 s2, {total}")
    a("s_cbranch_scc1 K1_END")
    a.stamp(0)
    a.cyc(88)
    if diag:
        a("s_mov_b32 s89, s2")
        for k in range(1, 10): a(f"s_mov_b32 s{92+k}, 0")
    a("s_load_dwordx16 s[4:19], s[0:1], 0")
    a("s_load_dwordx2 s[20:21], s[0:1], 80")
    a("v_lshrrev_b32 v2, 6, v0")
    a("v_and_b32 v1, 63, v0")
    a("v_readfirstlane_b32 s3, v2")
    if cpf:
        a(f"s_cmp_ge_u32 s2, {cpf}")
        a("s_cbranch_scc1 K1_NOPF")
        a("s_getpc_b64 s[60:61]")
        a.label("K1_PC")
        a("s_mov_b32 s62, K2_END-K1_PC")
        a("s_mov_b32 s63, 0x00020000")
        a("v_lshlrev_b32 v60, 7, v0")
        a("buffer_load_dword v61, v60, s[60:63], 0 offen")
        a.label("K1_NOPF")
    if slast:
        a(f"s_cmp_lt_u32 s2, {NGEMMW}")
        a("s_cbranch_scc1 K1_gemm")
        a(f"s_sub_u32 s2, s2, {NGEMMW}")
    else:
        a(f"s_cmp_ge_u32 s2, {NSW}")
        a("s_cbranch_scc1 K1_gemm")
    if sprio:
        a("s_setprio 2")
    if xc:
        a("s_and_b32 s22, s2, 7")
        a("s_lshl_b32 s22, s22, 4")
        a("s_lshr_b32 s2, s2, 3")
        a("s_add_u32 s2, s2, s22")
        a(f"s_cmp_ge_u32 s2, {NCHUNK}")
        a("s_cbranch_scc1 K1_END")

    def fin():
        if diag:
            a.stamp(8)
            a("s_waitcnt vmcnt(0)")
            a.stamp(9)
            a("s_cmp_eq_u32 s3, 4")
            a("s_cbranch_scc1 K1_END")
            a.stamp_flush(20, 0, 89, 3)
        a("s_endpgm")
    k1_sort(a, 0)
    a("s_branch K1_sort2")
    a.label("K1_gemm")
    if not slast:
        a(f"s_sub_u32 s2, s2, {NSW}")
    k1_gemm(a)
    fin()
    a.label("K1_sort2")
    k1_sort(a, 1)
    fin()
    a.label("K1_prep")
    k1_prep(a)
    a.label("K1_END")
    a("s_endpgm")
    return a.text(), total


def k1_sort_head(a):
    HIST, STRT, RB = 16384, 18432, 0
    DST, SRC, EV, BK, RK = 8, 12, 16, 24, 28
    a("v_lshlrev_b32 v3, 4, v0")
    a("v_lshlrev_b32 v4, 5, v0")
    a("v_lshlrev_b32 v5, 2, v0")
    a("v_mov_b32 v6, 0")
    a(f"s_mul_i32 s22, s2, {CH*4}")
    a(f"s_mul_i32 s23, s2, {CH*8}")
    a(f"ds_write_b32 v5, v6 offset:{HIST}")
    a("s_waitcnt lgkmcnt(0)")
    a.srd(24, 10, E * 4)
    a(f"buffer_load_dwordx4 {vr(DST,4)}, v3, s[24:27], s22 offen")
    a.srd(32, 6, E * 8)
    a.srd(28, 8, E * 4)
    if not SF["elate"]:
        k1_sort_rest(a)


def k1_sort_rest(a):
    DST, SRC, EV, BK, RK = 8, 12, 16, 24, 28
    a(f"buffer_load_dwordx4 {vr(EV,4)}, v4, s[32:35], s23 offen")
    a(f"buffer_load_dwordx4 {vr(EV+4,4)}, v4, s[32:35], s23 offen offset:16")
    a(f"buffer_load_dwordx4 {vr(SRC,4)}, v3, s[28:31], s22 offen")


def k1_sort(a, part):
    HIST, STRT, RB = 16384, 18432, 0
    DST, SRC, EV, BK, RK = 8, 12, 16, 24, 28
    if part == 0:
        return k1_sort_head(a)
    a.srd(40, 20, E * RECB, WS_REC)
    a.srd(44, 20, NBKT * 512, WS_TAB)
    a.srd(48, 20, NCHUNK * 20, WS_EMAX)
    a("v_mov_b32 v32, 1")
    a(f"s_movk_i32 s37, {BM}")
    a("s_mov_b32 s52, 0x7fff7fff")
    a("v_lshlrev_b32 v33, 4, v1")
    a("s_barrier")
    a.stamp(1)
    a(f"s_waitcnt vmcnt({0 if SF['elate'] else 3})")
    if SF["elate"] == 1:
        k1_sort_rest(a)
    a.stamp(2)
    for j in range(4):
        a(f"v_mul_u32_u24 v{BK+j}, s37, v{DST+j}")
    for j in range(4):
        a(f"v_lshrrev_b32 v{BK+j}, 17, v{BK+j}")
    for j in range(4):
        a(f"v_lshlrev_b32 v{BK+j}, 2, v{BK+j}")
        a(f"ds_add_rtn_u32 v{RK+j}, v{BK+j}, v32 offset:{HIST}")
    if SF["elate"] == 2:
        k1_sort_rest(a)
    a("s_waitcnt lgkmcnt(0)")
    a("s_barrier")
    a.stamp(3)
    a(f"ds_read_b128 v[40:43], v33 offset:{HIST}")
    a("s_waitcnt lgkmcnt(0)")
    a("v_add_u32 v50, v40, v41")
    a("v_add_u32 v51, v50, v42")
    a("v_add_u32 v57, v51, v43")
    a("s_nop 1")
    a("v_add_u32_dpp v56, v57, v57 row_shr:1 row_mask:0xf bank_mask:0xf bound_ctrl:0")
    for sh in (2, 4, 8):
        a("s_nop 1")
        a(f"v_add_u32_dpp v56, v56, v56 row_shr:{sh} row_mask:0xf bank_mask:0xf bound_ctrl:0")
    a("s_nop 1")
    a("v_add_u32_dpp v56, v56, v56 row_bcast:15 row_mask:0xa bank_mask:0xf")
    a("s_nop 1")
    a("v_add_u32_dpp v56, v56, v56 row_bcast:31 row_mask:0xc bank_mask:0xf")
    a("v_sub_u32 v48, v56, v57")
    a("v_add_u32 v49, v48, v40")
    a("v_add_u32 v50, v48, v50")
    a("v_add_u32 v51, v48, v51")
    a(f"ds_write_b128 v33, v[48:51] offset:{STRT}")
    for j in range(4):
        a(f"ds_read_b32 v{BK+j}, v{BK+j} offset:{STRT}")
    a("v_lshlrev_b32 v33, 11, v1")
    a("s_lshl_b32 s53, s2, 2")
    for k in range(4):
        a(f"s_cmp_lg_u32 s3, {k}")
        a(f"s_cbranch_scc1 K1S_t{k}")
        a(f"v_lshl_or_b32 v{40+k}, v{40+k}, 16, v{48+k}")
        a(f"buffer_store_dword v{40+k}, v33, s[44:47], s53 offen offset:{512*k}")
        a("s_waitcnt vmcnt(1)")
        a("s_branch K1S_j")
        a.label(f"K1S_t{k}")
    a("s_waitcnt vmcnt(0)")
    a.label("K1S_j")
    a(f"s_mul_i32 s53, s2, {CH*RECB}")
    for j in range(4):
        a(f"v_lshl_or_b32 v{SRC+j}, v{DST+j}, 14, v{SRC+j}")
    for j in range(4):
        a(f"s_waitcnt lgkmcnt({3 - j + 2*j})")
        a(f"v_add_u32 v{BK+j}, v{BK+j}, v{RK+j}")
        a(f"v_mul_u32_u24 v{BK+j}, {RECB}, v{BK+j}")
        a(f"ds_write2_b32 v{BK+j}, v{EV+2*j}, v{EV+2*j+1} offset0:0 offset1:1")
        a(f"ds_write_b32 v{BK+j}, v{SRC+j} offset:8")
    for j in range(8):
        a(f"v_and_b32 v{60+j}, s52, v{EV+j}")
    for st in (1, 2, 4):
        for j in range(0, 8, 2*st):
            a(f"v_pk_max_u16 v{60+j}, v{60+j}, v{60+j+st}")
    a("v_lshlrev_b32 v61, 16, v60")
    a("v_and_b32 v60, 0xffff0000, v60")
    a("v_max_u32 v60, v60, v61")
    a("s_waitcnt lgkmcnt(0)")
    a("s_barrier")
    a.stamp(4)
    for j in range(3):
        a(f"ds_read_b128 {vr(68+4*j,4)}, v3 offset:{RB + 5120*j}")
    dpp_max64(a, 60)
    for j in range(3):
        a(f"s_waitcnt lgkmcnt({2-j})")
        a(f"buffer_store_dwordx4 {vr(68+4*j,4)}, v3, s[40:43], s53 offen {SF['r']}")
        if j < 2:
            a("s_add_u32 s53, s53, 5120")
    a("s_mov_b32 exec_lo, 0")
    a("s_mov_b32 exec_hi, 0x80000000")
    a("s_mul_i32 s54, s2, 20")
    a("s_lshl_b32 s55, s3, 2")
    a("s_add_u32 s54, s54, s55")
    a("buffer_store_dword v60, v6, s[48:51], s54 offen")


def k1_prep(a):
    a(f"s_cmp_ge_u32 s2, {NFRAG}")
    a("s_cbranch_scc1 K1_END")
    a("v_and_b32 v3, 31, v1")
    a("v_lshlrev_b32 v3, 1, v3")
    a("v_lshrrev_b32 v4, 5, v1")
    a("v_lshlrev_b32 v5, 4, v1")
    a(f"s_mov_b32 s38, {hex(f32bits(-LOG2E))}")
    a("s_lshl_b32 s22, s2, 10")
    a("s_waitcnt lgkmcnt(0)")
    a.srd(40, 20, NFRAG * 1024, WS_WB)
    a.srd(24, 12, 260 * 512)
    a("s_cmp_ge_u32 s2, 136")
    a("s_cbranch_scc1 K1P_cst")
    a("s_cmp_ge_u32 s2, 64")
    a("s_cbranch_scc1 K1P_w2")
    a("v_lshl_add_u32 v3, v4, 12, v3")
    a("s_lshr_b32 s23, s2, 3")
    a("s_and_b32 s36, s2, 7")
    a("s_lshl_b32 s23, s23, 6")
    a("s_lshl_b32 s36, s36, 13")
    a("s_add_u32 s23, s23, s36")
    a("s_add_u32 s23, s23, 0x10000")
    for j in range(8):
        a(f"buffer_load_ushort v{8+j}, v3, s[24:27], s23 offen offset:{512*j}")
    a("s_barrier")
    a("s_waitcnt vmcnt(0)")
    for j in range(8):
        a(f"v_lshlrev_b32 v{8+j}, 16, v{8+j}")
    for j in range(8):
        a(f"v_mul_f32 v{8+j}, s38, v{8+j}")
    for q in range(4):
        a(f"v_cvt_pk_bf16_f32 v{16+q}, v{8+2*q}, v{9+2*q}")
    a(f"buffer_store_dwordx4 v[16:19], v5, s[40:43], s22 offen {SF['w']}")
    a("s_endpgm")
    a.label("K1P_w2")
    a("s_sub_u32 s37, s2, 64")
    a("s_mul_i32 s23, s37, 57")
    a("s_lshr_b32 s23, s23, 9")
    a("s_mul_i32 s36, s23, 9")
    a("s_sub_u32 s36, s37, s36")
    a("s_lshl_b32 s23, s23, 5")
    a("v_and_b32 v3, 15, v1")
    a("v_lshlrev_b32 v3, 1, v3")
    a("s_cmp_eq_u32 s36, 8")
    a("s_cbranch_scc1 K1P_b2")
    a.srd(24, 16, 256 * 256)
    a("v_lshl_add_u32 v3, v4, 12, v3")
    a("v_bfe_u32 v6, v1, 4, 1")
    a("v_lshl_add_u32 v3, v6, 10, v3")
    a("s_lshl_b32 s36, s36, 13")
    a("s_add_u32 s23, s23, s36")
    for j in range(8):
        a(f"buffer_load_ushort v{8+j}, v3, s[24:27], s23 offen offset:{256*(8*(j>>2)+(j&3))}")
    a("s_barrier")
    a("s_waitcnt vmcnt(0)")
    for q in range(4):
        a(f"v_lshl_or_b32 v{16+q}, v{9+2*q}, 16, v{8+2*q}")
    a(f"buffer_store_dwordx4 v[16:19], v5, s[40:43], s22 offen {SF['w']}")
    a("s_endpgm")
    a.label("K1P_b2")
    a.srd(24, 18, 256)
    a("v_lshrrev_b32 v3, 4, v1")
    a("v_lshlrev_b32 v3, 3, v3")
    a("buffer_load_dwordx2 v[8:9], v3, s[24:27], s23 offen")
    a("s_barrier")
    a("s_waitcnt vmcnt(0)")
    for p in range(2):
        a(f"v_lshlrev_b32 v{16+2*p}, 16, v{8+p}")
        a(f"v_and_b32 v{17+2*p}, 0xffff0000, v{8+p}")
    a(f"buffer_store_dwordx4 v[16:19], v5, s[40:43], s22 offen {SF['w']}")
    a("s_endpgm")
    a.label("K1P_cst")
    a("s_sub_u32 s37, s2, 136")
    a("s_lshl_b32 s23, s37, 6")
    a("s_add_u32 s36, s23, 0x20000")
    for k in range(4):
        a(f"buffer_load_ushort v{8+k}, v3, s[24:27], s36 offen offset:{512*k}")
    a("v_mov_b32 v18, 0")
    a("s_barrier")
    a("s_waitcnt vmcnt(0)")
    for k in range(4):
        a(f"v_lshlrev_b32 v{8+k}, 16, v{8+k}")
    for k in range(4):
        a(f"v_mul_f32 v{8+k}, s38, v{8+k}")
    a("v_add_f32 v19, |v8|, |v9|")
    a("v_add_f32 v19, |v10|, v19")
    a("v_add_f32 v19, |v11|, v19")
    for p in range(2):
        a(f"v_cvt_pk_bf16_f32 v{16+p}, v{8+2*p}, v{9+2*p}")
    a(f"buffer_store_dwordx4 v[16:19], v5, s[40:43], s22 offen {SF['w']}")


def k1_gemm(a):
    WL, XL = 0, 32768
    XB, WA, ACC = 32, 64, 96
    a("s_cmp_eq_u32 s3, 4")
    a("s_cbranch_scc1 K1_prep")
    if SF["gprio"]:
        a("s_setprio 2")
    a("s_lshr_b32 s22, s2, 4")
    a("s_and_b32 s23, s2, 7")
    if SF["xc"]:
        a("s_mul_i32 s23, s23, 20")
    else:
        a("s_lshl_b32 s22, s22, 3")
    a("s_add_u32 s22, s22, s23")
    a(f"s_cmp_ge_u32 s22, {NGEMM // 2}")
    a("s_cbranch_scc1 K1_END")
    a("s_bfe_u32 s23, s2, 0x10003")
    a("s_and_b32 s36, s3, 1")
    a("s_lshr_b32 s37, s3, 1")
    a("v_lshrrev_b32 v3, 3, v1")
    a("v_and_b32 v4, 7, v1")
    a("v_lshlrev_b32 v4, 4, v4")
    a("v_lshl_add_u32 v3, v3, 9, v4")
    a("v_and_b32 v4, 16, v1")
    a("v_lshlrev_b32 v4, 2, v4")
    a("v_xor_b32 v3, v3, v4")
    a("v_lshrrev_b32 v5, 4, v1")
    a("v_and_b32 v6, 15, v1")
    a("v_xor_b32 v6, v6, v5")
    a("v_lshlrev_b32 v6, 4, v6")
    a("v_lshl_add_u32 v8, v5, 8, v6")
    for z in range(1, 4):
        a(f"v_xor_b32 v{8+z}, {64*z}, v8")
    a("s_lshl_b32 s38, s37, 15")
    a("s_lshl_b32 s39, s23, 8")
    a("s_add_u32 s38, s38, s39")
    a("s_lshl_b32 s39, s36, 7")
    a("s_add_u32 s38, s38, s39")
    a("s_lshl_b32 s52, s36, 14")
    a("s_lshl_b32 s39, s37, 13")
    a("s_add_u32 s52, s52, s39")
    a("s_lshl_b32 s53, s22, 1")
    a("s_add_u32 s53, s53, s37")
    a("s_lshl_b32 s54, s53, 13")
    a("s_lshl_b32 s39, s36, 12")
    a("s_add_u32 s54, s54, s39")
    a("s_lshl_b32 s55, s37, 13")
    a("s_add_u32 s55, s55, s39")
    def xdma():
        a(f"s_add_u32 m0, s55, {XL}")
        a.srd(24, 4, N * 256)
        for z in range(4):
            a(f"buffer_load_dwordx4 v{8+z}, s[24:27], s54 offen offset:{1024*z} lds")
    a("v_lshrrev_b32 v12, 5, v1")
    a("s_lshl_b32 s58, s23, 8")
    a("s_lshl_b32 s39, s36, 7")
    a("s_add_u32 s58, s58, s39")
    a("s_waitcnt lgkmcnt(0)")
    if not SF["wfirst"]:
        xdma()
    a.srd(28, 12, 260 * 512)
    for z in range(8):
        a("s_mov_b32 m0, s52")
        a("s_add_u32 s52, s52, 1024")
        a("buffer_load_dwordx4 v3, s[28:31], s38 offen lds")
        a("s_add_u32 s38, s38, 4096")
    if SF["wfirst"]:
        xdma()
    a.srd(40, 20, N * 512, WS_P)
    a.srd(44, 20, NGEMM * 16, WS_PMAX)
    a("v_and_b32 v13, 31, v1")
    a("v_bfe_u32 v14, v1, 2, 2")
    a("v_lshl_add_u32 v14, v12, 3, v14")
    a("v_lshlrev_b32 v14, 7, v14")
    a("v_and_b32 v15, 3, v1")
    a("v_lshl_add_u32 v14, v15, 3, v14")
    a("v_bfe_u32 v15, v1, 4, 1")
    a("v_lshl_add_u32 v14, v15, 5, v14")
    a("v_bfe_u32 v15, v1, 3, 1")
    a("v_lshl_add_u32 v14, v15, 6, v14")
    a("s_lshl_b32 s39, s36, 14")
    a("v_add_u32 v14, s39, v14")
    a("v_xor_b32 v26, 64, v14")
    a("v_and_b32 v15, 15, v1")
    a("v_xor_b32 v15, v15, v12")
    a("v_lshlrev_b32 v15, 4, v15")
    a("v_lshl_add_u32 v15, v13, 8, v15")
    a("s_lshl_b32 s39, s37, 13")
    a(f"s_add_u32 s39, s39, {XL}")
    a("v_add_u32 v16, s39, v15")
    for s in range(1, 8):
        a(f"v_xor_b32 v{16+s}, {32*s}, v16")
    a("v_and_b32 v27, 7, v1")
    a("v_lshlrev_b32 v27, 4, v27")
    a("v_lshl_add_u32 v27, v13, 7, v27")
    a("v_lshl_add_u32 v27, v12, 3, v27")
    a("s_lshl_b32 s39, s3, 12")
    a("s_add_u32 s39, s39, 49152")
    a("v_add_u32 v27, s39, v27")
    a("v_lshl_add_u32 v28, v1, 4, s39")
    a("v_lshrrev_b32 v24, 3, v1")
    a("v_and_b32 v25, 7, v1")
    a("v_xor_b32 v25, v25, v24")
    a("v_lshlrev_b32 v25, 4, v25")
    a("v_lshl_add_u32 v24, v24, 9, v25")
    a("s_lshl_b32 s56, s53, 14")
    a("s_lshl_b32 s39, s23, 8")
    a("s_add_u32 s56, s56, s39")
    a("s_lshl_b32 s39, s36, 7")
    a("s_add_u32 s56, s56, s39")
    a(f"s_mov_b32 s57, {hex(f32bits(-LOG2E))}")
    a("s_add_u32 s62, s14, s58")
    a("s_addc_u32 s63, s15, 0")
    a("s_load_dwordx16 s[64:79], s[62:63], 0")
    a("s_load_dwordx16 s[4:19], s[62:63], 64")
    a("v_mov_b32 v31, 0xffff0000")
    a("s_waitcnt lgkmcnt(0)")
    for h in range(2):
        a("s_mov_b32 exec_lo, " + ("-1" if h == 0 else "0"))
        a("s_mov_b32 exec_hi, " + ("0" if h == 0 else "-1"))
        for T in range(2):
            for g in range(4):
                for p in range(2):
                    sr_ = (64, 4)[T] + 4*g + 2*h + p
                    a(f"v_lshlrev_b32_e64 v{ACC+16*T+4*g+2*p}, 16, s{sr_}")
                    a(f"v_and_b32 v{ACC+16*T+4*g+2*p+1}, s{sr_}, v31")
    a("s_mov_b64 exec, -1")
    a.stamp(1)
    a("s_waitcnt vmcnt(0)")
    a.stamp(2)
    a("s_barrier")
    a.stamp(3)
    d = DsTrack(a)
    def wread(k):
        T, s = k >> 3, k & 7
        for i in range(2):
            d(f"ds_read_b64_tr_b16 {vr(WA+(k&7)*4+2*i,2)}, v{(14, 26)[T]} offset:{16*s*128+4*i*128}", f"w{k}")
    def post(T):
        P = [f"v_mul_f32 v{ACC+16*T+r}, s57, v{ACC+16*T+r}" for r in range(16)]
        for g in range(4):
            P.append(f"v_xor_b32 v{29+(g&1)}, {16*(4*T+g)}, v27")
            for p in range(2):
                P.append(f"v_cvt_pk_bf16_f32 v{PK+2*g+p}, v{ACC+16*T+4*g+2*p}, v{ACC+16*T+4*g+2*p+1}")
            P.append(f"ds_write_b64 v{29+(g&1)}, {vr(PK+2*g,2)}")
        return P
    PK = 8
    for s in range(4):
        d(f"ds_read_b128 {vr(XB+4*s,4)}, v{16+s}", f"x{s}")
        wread(s)
    p0 = post(0)
    for k in range(16):
        T, s = k >> 3, k & 7
        d.wait(f"w{k}", f"x{s}")
        a(mfma(ACC + 16*T, WA + (k & 7)*4, XB + 4*s, ACC + 16*T))
        if k + 4 < 8:
            d(f"ds_read_b128 {vr(XB+4*(k+4),4)}, v{16+k+4}", f"x{k+4}")
        if k + 4 < 16:
            wread(k + 4)
        if k >= 11:
            take = p0[:7]; p0 = p0[7:]
            for l in take: d(l)
    a.stamp(4)
    a(f"v_max_f32 v25, |v{ACC}|, |v{ACC+1}|")
    for r in range(2, 16, 2):
        a(f"v_max3_f32 v25, |v{ACC+r}|, |v{ACC+r+1}|, v25")
    a("s_nop 1")
    for l in post(1): a(l)
    for q in range(4):
        a(f"ds_read_b128 {vr(XB+4*q,4)}, v28 offset:{1024*q}")
    for r in range(16, 32, 2):
        a(f"v_max3_f32 v25, |v{ACC+r}|, |v{ACC+r+1}|, v25")
    dpp_max64(a, 25)
    a("s_lshl_b32 s39, s22, 1")
    a("s_add_u32 s39, s39, s23")
    a("s_lshl_b32 s39, s39, 4")
    a("s_lshl_b32 s36, s3, 2")
    a("s_add_u32 s39, s39, s36")
    a("v_mov_b32 v26, 0")
    def pstores(flag):
        for q in range(4):
            a(f"s_waitcnt lgkmcnt({3-q})")
            a(f"buffer_store_dwordx4 {vr(XB+4*q,4)}, v24, s[40:43], s56 offen {flag}")
            if q < 3:
                a("s_add_u32 s56, s56, 4096")
    if SF["mix"]:
        a(f"s_cmp_ge_u32 s2, {SF['mix']}")
        a("s_cbranch_scc1 K1G_nt")
        pstores("sc1")
        a("s_branch K1G_st")
        a.label("K1G_nt")
    pstores(SF["p"])
    a.label("K1G_st")
    a("s_mov_b32 exec_lo, 0")
    a("s_mov_b32 exec_hi, 0x80000000")
    a("buffer_store_dword v25, v26, s[44:47], s39 offen")
```

```python
from common import *

K1_LDS = 65536
K1_VGPR = 128
K1_BLOCK = 320


SF = {"p": "", "r": ""}


def gen_k1(order=("sort", "gemm"), diag=False, pf="", rf="", cpf=8, xc=True, wf="", wfirst=False, slast=False, sprio=False, elate=1, mix=0, gprio=0, cpw=1):
    SF["p"], SF["r"] = pf, rf
    a = Asm()
    a.diag = diag
    NSW = 128 if xc else NCHUNK
    SF["xc"] = xc
    SF["w"] = wf
    SF["wfirst"] = wfirst
    SF["elate"] = elate
    SF["mix"] = mix
    SF["gprio"] = gprio
    total = NSW + NGEMMW + (cpf if cpw else 0)
    a(f"s_cmp_ge_u32 s2, {total}")
    a("s_cbranch_scc1 K1_END")
    a.stamp(0)
    a.cyc(88)
    if diag:
        a("s_mov_b32 s89, s2")
        for k in range(1, 10): a(f"s_mov_b32 s{92+k}, 0")
    a("s_load_dwordx16 s[4:19], s[0:1], 0")
    a("s_load_dwordx2 s[20:21], s[0:1], 80")
    a("v_lshrrev_b32 v2, 6, v0")
    a("v_and_b32 v1, 63, v0")
    a("v_readfirstlane_b32 s3, v2")
    if cpf:
        if cpw:
            a(f"s_cmp_lt_u32 s2, {total - cpf}")
        else:
            a(f"s_cmp_ge_u32 s2, {cpf}")
        a("s_cbranch_scc1 K1_NOPF")
        a("s_getpc_b64 s[60:61]")
        a.label("K1_PC")
        a("s_mov_b32 s62, K2_END-K1_PC")
        a("s_mov_b32 s63, 0x00020000")
        a("v_lshlrev_b32 v60, 7, v0")
        a("buffer_load_dword v61, v60, s[60:63], 0 offen")
        if cpw:
            a("s_endpgm")
        a.label("K1_NOPF")
    if slast:
        a(f"s_cmp_lt_u32 s2, {NGEMMW}")
        a("s_cbranch_scc1 K1_gemm")
        a(f"s_sub_u32 s2, s2, {NGEMMW}")
    else:
        a(f"s_cmp_ge_u32 s2, {NSW}")
        a("s_cbranch_scc1 K1_gemm")
    if sprio:
        a("s_setprio 2")
    if xc:
        a("s_and_b32 s22, s2, 7")
        a("s_lshl_b32 s22, s22, 4")
        a("s_lshr_b32 s2, s2, 3")
        a("s_add_u32 s2, s2, s22")
        a(f"s_cmp_ge_u32 s2, {NCHUNK}")
        a("s_cbranch_scc1 K1_END")

    def fin():
        if diag:
            a.stamp(8)
            a("s_waitcnt vmcnt(0)")
            a.stamp(9)
            a("s_cmp_eq_u32 s3, 4")
            a("s_cbranch_scc1 K1_END")
            a.stamp_flush(20, 0, 89, 3)
        a("s_endpgm")
    k1_sort(a, 0)
    a("s_branch K1_sort2")
    a.label("K1_gemm")
    if not slast:
        a(f"s_sub_u32 s2, s2, {NSW}")
    k1_gemm(a)
    fin()
    a.label("K1_sort2")
    k1_sort(a, 1)
    fin()
    a.label("K1_prep")
    k1_prep(a)
    a.label("K1_END")
    a("s_endpgm")
    return a.text(), total


def k1_sort_head(a):
    HIST, STRT, RB = 16384, 18432, 0
    DST, SRC, EV, BK, RK = 8, 12, 16, 24, 28
    a("v_lshlrev_b32 v3, 4, v0")
    a("v_lshlrev_b32 v4, 5, v0")
    a("v_lshlrev_b32 v5, 2, v0")
    a("v_mov_b32 v6, 0")
    a(f"s_mul_i32 s22, s2, {CH*4}")
    a(f"s_mul_i32 s23, s2, {CH*8}")
    a(f"ds_write_b32 v5, v6 offset:{HIST}")
    a("s_waitcnt lgkmcnt(0)")
    a.srd(24, 10, E * 4)
    a(f"buffer_load_dwordx4 {vr(DST,4)}, v3, s[24:27], s22 offen")
    a.srd(32, 6, E * 8)
    a.srd(28, 8, E * 4)
    if not SF["elate"]:
        k1_sort_rest(a)


def k1_sort_rest(a):
    DST, SRC, EV, BK, RK = 8, 12, 16, 24, 28
    a(f"buffer_load_dwordx4 {vr(EV,4)}, v4, s[32:35], s23 offen")
    a(f"buffer_load_dwordx4 {vr(EV+4,4)}, v4, s[32:35], s23 offen offset:16")
    a(f"buffer_load_dwordx4 {vr(SRC,4)}, v3, s[28:31], s22 offen")


def k1_sort(a, part):
    HIST, STRT, RB = 16384, 18432, 0
    DST, SRC, EV, BK, RK = 8, 12, 16, 24, 28
    if part == 0:
        return k1_sort_head(a)
    a.srd(40, 20, E * RECB, WS_REC)
    a.srd(44, 20, NBKT * 512, WS_TAB)
    a.srd(48, 20, NCHUNK * 20, WS_EMAX)
    a("v_mov_b32 v32, 1")
    a(f"s_movk_i32 s37, {BM}")
    a("s_mov_b32 s52, 0x7fff7fff")
    a("v_lshlrev_b32 v33, 4, v1")
    a("s_barrier")
    a.stamp(1)
    a(f"s_waitcnt vmcnt({0 if SF['elate'] else 3})")
    if SF["elate"] == 1:
        k1_sort_rest(a)
    a.stamp(2)
    for j in range(4):
        a(f"v_mul_u32_u24 v{BK+j}, s37, v{DST+j}")
    for j in range(4):
        a(f"v_lshrrev_b32 v{BK+j}, 17, v{BK+j}")
    for j in range(4):
        a(f"v_lshlrev_b32 v{BK+j}, 2, v{BK+j}")
        a(f"ds_add_rtn_u32 v{RK+j}, v{BK+j}, v32 offset:{HIST}")
    if SF["elate"] == 2:
        k1_sort_rest(a)
    a("s_waitcnt lgkmcnt(0)")
    a("s_barrier")
    a.stamp(3)
    a(f"ds_read_b128 v[40:43], v33 offset:{HIST}")
    a("s_waitcnt lgkmcnt(0)")
    a("v_add_u32 v50, v40, v41")
    a("v_add_u32 v51, v50, v42")
    a("v_add_u32 v57, v51, v43")
    a("s_nop 1")
    a("v_add_u32_dpp v56, v57, v57 row_shr:1 row_mask:0xf bank_mask:0xf bound_ctrl:0")
    for sh in (2, 4, 8):
        a("s_nop 1")
        a(f"v_add_u32_dpp v56, v56, v56 row_shr:{sh} row_mask:0xf bank_mask:0xf bound_ctrl:0")
    a("s_nop 1")
    a("v_add_u32_dpp v56, v56, v56 row_bcast:15 row_mask:0xa bank_mask:0xf")
    a("s_nop 1")
    a("v_add_u32_dpp v56, v56, v56 row_bcast:31 row_mask:0xc bank_mask:0xf")
    a("v_sub_u32 v48, v56, v57")
    a("v_add_u32 v49, v48, v40")
    a("v_add_u32 v50, v48, v50")
    a("v_add_u32 v51, v48, v51")
    a(f"ds_write_b128 v33, v[48:51] offset:{STRT}")
    for j in range(4):
        a(f"ds_read_b32 v{BK+j}, v{BK+j} offset:{STRT}")
    a("v_lshlrev_b32 v33, 11, v1")
    a("s_lshl_b32 s53, s2, 2")
    for k in range(4):
        a(f"s_cmp_lg_u32 s3, {k}")
        a(f"s_cbranch_scc1 K1S_t{k}")
        a(f"v_lshl_or_b32 v{40+k}, v{40+k}, 16, v{48+k}")
        a(f"buffer_store_dword v{40+k}, v33, s[44:47], s53 offen offset:{512*k}")
        a("s_waitcnt vmcnt(1)")
        a("s_branch K1S_j")
        a.label(f"K1S_t{k}")
    a("s_waitcnt vmcnt(0)")
    a.label("K1S_j")
    a(f"s_mul_i32 s53, s2, {CH*RECB}")
    for j in range(4):
        a(f"v_lshl_or_b32 v{SRC+j}, v{DST+j}, 14, v{SRC+j}")
    for j in range(4):
        a(f"s_waitcnt lgkmcnt({3 - j + 2*j})")
        a(f"v_add_u32 v{BK+j}, v{BK+j}, v{RK+j}")
        a(f"v_mul_u32_u24 v{BK+j}, {RECB}, v{BK+j}")
        a(f"ds_write2_b32 v{BK+j}, v{EV+2*j}, v{EV+2*j+1} offset0:0 offset1:1")
        a(f"ds_write_b32 v{BK+j}, v{SRC+j} offset:8")
    for j in range(8):
        a(f"v_and_b32 v{60+j}, s52, v{EV+j}")
    for st in (1, 2, 4):
        for j in range(0, 8, 2*st):
            a(f"v_pk_max_u16 v{60+j}, v{60+j}, v{60+j+st}")
    a("v_lshlrev_b32 v61, 16, v60")
    a("v_and_b32 v60, 0xffff0000, v60")
    a("v_max_u32 v60, v60, v61")
    a("s_waitcnt lgkmcnt(0)")
    a("s_barrier")
    a.stamp(4)
    for j in range(3):
        a(f"ds_read_b128 {vr(68+4*j,4)}, v3 offset:{RB + 5120*j}")
    dpp_max64(a, 60)
    for j in range(3):
        a(f"s_waitcnt lgkmcnt({2-j})")
        a(f"buffer_store_dwordx4 {vr(68+4*j,4)}, v3, s[40:43], s53 offen {SF['r']}")
        if j < 2:
            a("s_add_u32 s53, s53, 5120")
    a("s_mov_b32 exec_lo, 0")
    a("s_mov_b32 exec_hi, 0x80000000")
    a("s_mul_i32 s54, s2, 20")
    a("s_lshl_b32 s55, s3, 2")
    a("s_add_u32 s54, s54, s55")
    a("buffer_store_dword v60, v6, s[48:51], s54 offen")


def k1_prep(a):
    a(f"s_cmp_ge_u32 s2, {NFRAG}")
    a("s_cbranch_scc1 K1_END")
    a("v_and_b32 v3, 31, v1")
    a("v_lshlrev_b32 v3, 1, v3")
    a("v_lshrrev_b32 v4, 5, v1")
    a("v_lshlrev_b32 v5, 4, v1")
    a(f"s_mov_b32 s38, {hex(f32bits(-LOG2E))}")
    a("s_lshl_b32 s22, s2, 10")
    a("s_waitcnt lgkmcnt(0)")
    a.srd(40, 20, NFRAG * 1024, WS_WB)
    a.srd(24, 12, 260 * 512)
    a("s_cmp_ge_u32 s2, 136")
    a("s_cbranch_scc1 K1P_cst")
    a("s_cmp_ge_u32 s2, 64")
    a("s_cbranch_scc1 K1P_w2")
    a("v_lshl_add_u32 v3, v4, 12, v3")
    a("s_lshr_b32 s23, s2, 3")
    a("s_and_b32 s36, s2, 7")
    a("s_lshl_b32 s23, s23, 6")
    a("s_lshl_b32 s36, s36, 13")
    a("s_add_u32 s23, s23, s36")
    a("s_add_u32 s23, s23, 0x10000")
    for j in range(8):
        a(f"buffer_load_ushort v{8+j}, v3, s[24:27], s23 offen offset:{512*j}")
    a("s_barrier")
    a("s_waitcnt vmcnt(0)")
    for j in range(8):
        a(f"v_lshlrev_b32 v{8+j}, 16, v{8+j}")
    for j in range(8):
        a(f"v_mul_f32 v{8+j}, s38, v{8+j}")
    for q in range(4):
        a(f"v_cvt_pk_bf16_f32 v{16+q}, v{8+2*q}, v{9+2*q}")
    a(f"buffer_store_dwordx4 v[16:19], v5, s[40:43], s22 offen {SF['w']}")
    a("s_endpgm")
    a.label("K1P_w2")
    a("s_sub_u32 s37, s2, 64")
    a("s_mul_i32 s23, s37, 57")
    a("s_lshr_b32 s23, s23, 9")
    a("s_mul_i32 s36, s23, 9")
    a("s_sub_u32 s36, s37, s36")
    a("s_lshl_b32 s23, s23, 5")
    a("v_and_b32 v3, 15, v1")
    a("v_lshlrev_b32 v3, 1, v3")
    a("s_cmp_eq_u32 s36, 8")
    a("s_cbranch_scc1 K1P_b2")
    a.srd(24, 16, 256 * 256)
    a("v_lshl_add_u32 v3, v4, 12, v3")
    a("v_bfe_u32 v6, v1, 4, 1")
    a("v_lshl_add_u32 v3, v6, 10, v3")
    a("s_lshl_b32 s36, s36, 13")
    a("s_add_u32 s23, s23, s36")
    for j in range(8):
        a(f"buffer_load_ushort v{8+j}, v3, s[24:27], s23 offen offset:{256*(8*(j>>2)+(j&3))}")
    a("s_barrier")
    a("s_waitcnt vmcnt(0)")
    for q in range(4):
        a(f"v_lshl_or_b32 v{16+q}, v{9+2*q}, 16, v{8+2*q}")
    a(f"buffer_store_dwordx4 v[16:19], v5, s[40:43], s22 offen {SF['w']}")
    a("s_endpgm")
    a.label("K1P_b2")
    a.srd(24, 18, 256)
    a("v_lshrrev_b32 v3, 4, v1")
    a("v_lshlrev_b32 v3, 3, v3")
    a("buffer_load_dwordx2 v[8:9], v3, s[24:27], s23 offen")
    a("s_barrier")
    a("s_waitcnt vmcnt(0)")
    for p in range(2):
        a(f"v_lshlrev_b32 v{16+2*p}, 16, v{8+p}")
        a(f"v_and_b32 v{17+2*p}, 0xffff0000, v{8+p}")
    a(f"buffer_store_dwordx4 v[16:19], v5, s[40:43], s22 offen {SF['w']}")
    a("s_endpgm")
    a.label("K1P_cst")
    a("s_sub_u32 s37, s2, 136")
    a("s_lshl_b32 s23, s37, 6")
    a("s_add_u32 s36, s23, 0x20000")
    for k in range(4):
        a(f"buffer_load_ushort v{8+k}, v3, s[24:27], s36 offen offset:{512*k}")
    a("v_mov_b32 v18, 0")
    a("s_barrier")
    a("s_waitcnt vmcnt(0)")
    for k in range(4):
        a(f"v_lshlrev_b32 v{8+k}, 16, v{8+k}")
    for k in range(4):
        a(f"v_mul_f32 v{8+k}, s38, v{8+k}")
    a("v_add_f32 v19, |v8|, |v9|")
    a("v_add_f32 v19, |v10|, v19")
    a("v_add_f32 v19, |v11|, v19")
    for p in range(2):
        a(f"v_cvt_pk_bf16_f32 v{16+p}, v{8+2*p}, v{9+2*p}")
    a(f"buffer_store_dwordx4 v[16:19], v5, s[40:43], s22 offen {SF['w']}")


def k1_gemm(a):
    WL, XL = 0, 32768
    XB, WA, ACC = 32, 64, 96
    a("s_cmp_eq_u32 s3, 4")
    a("s_cbranch_scc1 K1_prep")
    if SF["gprio"]:
        a("s_setprio 2")
    a("s_lshr_b32 s22, s2, 4")
    a("s_and_b32 s23, s2, 7")
    if SF["xc"]:
        a("s_mul_i32 s23, s23, 20")
    else:
        a("s_lshl_b32 s22, s22, 3")
    a("s_add_u32 s22, s22, s23")
    a(f"s_cmp_ge_u32 s22, {NGEMM // 2}")
    a("s_cbranch_scc1 K1_END")
    a("s_bfe_u32 s23, s2, 0x10003")
    a("s_and_b32 s36, s3, 1")
    a("s_lshr_b32 s37, s3, 1")
    a("v_lshrrev_b32 v3, 3, v1")
    a("v_and_b32 v4, 7, v1")
    a("v_lshlrev_b32 v4, 4, v4")
    a("v_lshl_add_u32 v3, v3, 9, v4")
    a("v_and_b32 v4, 16, v1")
    a("v_lshlrev_b32 v4, 2, v4")
    a("v_xor_b32 v3, v3, v4")
    a("v_lshrrev_b32 v5, 4, v1")
    a("v_and_b32 v6, 15, v1")
    a("v_xor_b32 v6, v6, v5")
    a("v_lshlrev_b32 v6, 4, v6")
    a("v_lshl_add_u32 v8, v5, 8, v6")
    for z in range(1, 4):
        a(f"v_xor_b32 v{8+z}, {64*z}, v8")
    a("s_lshl_b32 s38, s37, 15")
    a("s_lshl_b32 s39, s23, 8")
    a("s_add_u32 s38, s38, s39")
    a("s_lshl_b32 s39, s36, 7")
    a("s_add_u32 s38, s38, s39")
    a("s_lshl_b32 s52, s36, 14")
    a("s_lshl_b32 s39, s37, 13")
    a("s_add_u32 s52, s52, s39")
    a("s_lshl_b32 s53, s22, 1")
    a("s_add_u32 s53, s53, s37")
    a("s_lshl_b32 s54, s53, 13")
    a("s_lshl_b32 s39, s36, 12")
    a("s_add_u32 s54, s54, s39")
    a("s_lshl_b32 s55, s37, 13")
    a("s_add_u32 s55, s55, s39")
    def xdma():
        a(f"s_add_u32 m0, s55, {XL}")
        a.srd(24, 4, N * 256)
        for z in range(4):
            a(f"buffer_load_dwordx4 v{8+z}, s[24:27], s54 offen offset:{1024*z} lds")
    a("v_lshrrev_b32 v12, 5, v1")
    a("s_lshl_b32 s58, s23, 8")
    a("s_lshl_b32 s39, s36, 7")
    a("s_add_u32 s58, s58, s39")
    a("s_waitcnt lgkmcnt(0)")
    if not SF["wfirst"]:
        xdma()
    a.srd(28, 12, 260 * 512)
    for z in range(8):
        a("s_mov_b32 m0, s52")
        a("s_add_u32 s52, s52, 1024")
        a("buffer_load_dwordx4 v3, s[28:31], s38 offen lds")
        a("s_add_u32 s38, s38, 4096")
    if SF["wfirst"]:
        xdma()
    a.srd(40, 20, N * 512, WS_P)
    a.srd(44, 20, NGEMM * 16, WS_PMAX)
    a("v_and_b32 v13, 31, v1")
    a("v_bfe_u32 v14, v1, 2, 2")
    a("v_lshl_add_u32 v14, v12, 3, v14")
    a("v_lshlrev_b32 v14, 7, v14")
    a("v_and_b32 v15, 3, v1")
    a("v_lshl_add_u32 v14, v15, 3, v14")
    a("v_bfe_u32 v15, v1, 4, 1")
    a("v_lshl_add_u32 v14, v15, 5, v14")
    a("v_bfe_u32 v15, v1, 3, 1")
    a("v_lshl_add_u32 v14, v15, 6, v14")
    a("s_lshl_b32 s39, s36, 14")
    a("v_add_u32 v14, s39, v14")
    a("v_xor_b32 v26, 64, v14")
    a("v_and_b32 v15, 15, v1")
    a("v_xor_b32 v15, v15, v12")
    a("v_lshlrev_b32 v15, 4, v15")
    a("v_lshl_add_u32 v15, v13, 8, v15")
    a("s_lshl_b32 s39, s37, 13")
    a(f"s_add_u32 s39, s39, {XL}")
    a("v_add_u32 v16, s39, v15")
    for s in range(1, 8):
        a(f"v_xor_b32 v{16+s}, {32*s}, v16")
    a("v_and_b32 v27, 7, v1")
    a("v_lshlrev_b32 v27, 4, v27")
    a("v_lshl_add_u32 v27, v13, 7, v27")
    a("v_lshl_add_u32 v27, v12, 3, v27")
    a("s_lshl_b32 s39, s3, 12")
    a("s_add_u32 s39, s39, 49152")
    a("v_add_u32 v27, s39, v27")
    a("v_lshl_add_u32 v28, v1, 4, s39")
    a("v_lshrrev_b32 v24, 3, v1")
    a("v_and_b32 v25, 7, v1")
    a("v_xor_b32 v25, v25, v24")
    a("v_lshlrev_b32 v25, 4, v25")
    a("v_lshl_add_u32 v24, v24, 9, v25")
    a("s_lshl_b32 s56, s53, 14")
    a("s_lshl_b32 s39, s23, 8")
    a("s_add_u32 s56, s56, s39")
    a("s_lshl_b32 s39, s36, 7")
    a("s_add_u32 s56, s56, s39")
    a(f"s_mov_b32 s57, {hex(f32bits(-LOG2E))}")
    a("s_add_u32 s62, s14, s58")
    a("s_addc_u32 s63, s15, 0")
    a("s_load_dwordx16 s[64:79], s[62:63], 0")
    a("s_load_dwordx16 s[4:19], s[62:63], 64")
    a("v_mov_b32 v31, 0xffff0000")
    a("s_waitcnt lgkmcnt(0)")
    for h in range(2):
        a("s_mov_b32 exec_lo, " + ("-1" if h == 0 else "0"))
        a("s_mov_b32 exec_hi, " + ("0" if h == 0 else "-1"))
        for T in range(2):
            for g in range(4):
                for p in range(2):
                    sr_ = (64, 4)[T] + 4*g + 2*h + p
                    a(f"v_lshlrev_b32_e64 v{ACC+16*T+4*g+2*p}, 16, s{sr_}")
                    a(f"v_and_b32 v{ACC+16*T+4*g+2*p+1}, s{sr_}, v31")
    a("s_mov_b64 exec, -1")
    a.stamp(1)
    a("s_waitcnt vmcnt(0)")
    a.stamp(2)
    a("s_barrier")
    a.stamp(3)
    d = DsTrack(a)
    def wread(k):
        T, s = k >> 3, k & 7
        for i in range(2):
            d(f"ds_read_b64_tr_b16 {vr(WA+(k&7)*4+2*i,2)}, v{(14, 26)[T]} offset:{16*s*128+4*i*128}", f"w{k}")
    def post(T):
        P = [f"v_mul_f32 v{ACC+16*T+r}, s57, v{ACC+16*T+r}" for r in range(16)]
        for g in range(4):
            P.append(f"v_xor_b32 v{29+(g&1)}, {16*(4*T+g)}, v27")
            for p in range(2):
                P.append(f"v_cvt_pk_bf16_f32 v{PK+2*g+p}, v{ACC+16*T+4*g+2*p}, v{ACC+16*T+4*g+2*p+1}")
            P.append(f"ds_write_b64 v{29+(g&1)}, {vr(PK+2*g,2)}")
        return P
    PK = 8
    for s in range(4):
        d(f"ds_read_b128 {vr(XB+4*s,4)}, v{16+s}", f"x{s}")
        wread(s)
    p0 = post(0)
    for k in range(16):
        T, s = k >> 3, k & 7
        d.wait(f"w{k}", f"x{s}")
        a(mfma(ACC + 16*T, WA + (k & 7)*4, XB + 4*s, ACC + 16*T))
        if k + 4 < 8:
            d(f"ds_read_b128 {vr(XB+4*(k+4),4)}, v{16+k+4}", f"x{k+4}")
        if k + 4 < 16:
            wread(k + 4)
        if k >= 11:
            take = p0[:7]; p0 = p0[7:]
            for l in take: d(l)
    a.stamp(4)
    a(f"v_max_f32 v25, |v{ACC}|, |v{ACC+1}|")
    for r in range(2, 16, 2):
        a(f"v_max3_f32 v25, |v{ACC+r}|, |v{ACC+r+1}|, v25")
    a("s_nop 1")
    for l in post(1): a(l)
    for q in range(4):
        a(f"ds_read_b128 {vr(XB+4*q,4)}, v28 offset:{1024*q}")
    for r in range(16, 32, 2):
        a(f"v_max3_f32 v25, |v{ACC+r}|, |v{ACC+r+1}|, v25")
    dpp_max64(a, 25)
    a("s_lshl_b32 s39, s22, 1")
    a("s_add_u32 s39, s39, s23")
    a("s_lshl_b32 s39, s39, 4")
    a("s_lshl_b32 s36, s3, 2")
    a("s_add_u32 s39, s39, s36")
    a("v_mov_b32 v26, 0")
    def pstores(flag):
        for q in range(4):
            a(f"s_waitcnt lgkmcnt({3-q})")
            a(f"buffer_store_dwordx4 {vr(XB+4*q,4)}, v24, s[40:43], s56 offen {flag}")
            if q < 3:
                a("s_add_u32 s56, s56, 4096")
    if SF["mix"]:
        a(f"s_cmp_ge_u32 s2, {SF['mix']}")
        a("s_cbranch_scc1 K1G_nt")
        pstores("sc1")
        a("s_branch K1G_st")
        a.label("K1G_nt")
    pstores(SF["p"])
    a.label("K1G_st")
    a("s_mov_b32 exec_lo, 0")
    a("s_mov_b32 exec_hi, 0x80000000")
    a("buffer_store_dword v25, v26, s[44:47], s39 offen")
```

```python
from common import *

MAXT = 13
BLKSZ = 2176
O_IX, O_SO = 1024, 1152
BLK = 0
BLKW = MAXT * BLKSZ
CNT = BLK + 2 * BLKW
MISC = CNT + 256
IDX = MISC + 256
IDXW = MAXT * 128
LIST = IDX + 2 * IDXW
XW = LIST + 4096
WBS = XW + 10240
RING0 = 98304
K2_LDS = RING0 + 65536
assert CNT % 256 == 0 and XW % 256 == 0 and WBS + 16384 <= RING0
CAP1, CAP2 = 128, 48
PADIDX = N
K2_BLOCK = 512

IDN, QB, S, T0, T1, DD, MM, NN, HF, HB = 8, 16, 32, 64, 80, 96, 112, 120, 128, 136
PF, AO, SO0, IX, PA, BA, IA, DEG = 140, 156, 164, 168, 176, 180, 181, 182
VBASE, VCNT, VREC = 183, 184, 185
BI = 5
W2R = 188
WBQ = 224
SO1 = 224
K2_VGPR = 256
TT = (T0, T1)
SO = (SO0, SO1)

sTAB, sREC, sP, sX, sWF, sOUT, sMX = 24, 28, 32, 36, 40, 44, 48
sWIN, sWV, sN0, sNA, sNW, sNB_ = 52, 53, 54, 55, 56, 57
sTW, sLO, sCAP, sNB, sNT, sI, sRING = 58, 59, 60, 61, 62, 63, 64
sF1, sF2, sSLOW, sSINIT, sBLK, sIDX = 65, 66, 67, 68, 69, 70
sM0, sM1 = 72, 74
sLIST, sCA, sSA, sW2, sNB2, sWBO = 6, 7, 8, 9, 10, 11
t0, t1, t2, t3 = 76, 77, 78, 79

OPT = dict()


def dma(stage_off):
    out = []
    for q in range(4):
        out.append(f"s_add_u32 m0, s{sRING}, {stage_off + 1024*q}")
        out.append("s_nop 0")
        out.append(f"buffer_load_dwordx4 {vr(IX+2*q,2)}, s[{sP}:{sP+3}], 0 idxen offen lds")
    return out


def idx_reads(tile_off):
    return [f"ds_read_b32 v{IX+2*q}, v{IA} offset:{tile_off*128 + 32*q}" for q in range(4)]


def pf_reads(stage):
    return [f"ds_read_b128 {vr(PF+4*k,4)}, v{PA+k} offset:{stage*4096}" for k in range(4)]


def ao_reads(tile_off):
    return [f"ds_read_b128 {vr(AO,4)}, v{BA} offset:{tile_off*BLKSZ}",
            f"ds_read_u16 v{AO+4}, v{BI} offset:{tile_off*BLKSZ + O_IX}"]


def so_read(tile_off, buf):
    return f"ds_read_b128 {vr(SO[buf],4)}, v{BA} offset:{tile_off*BLKSZ + O_SO}"


def zmf(c):
    t = TT[c]
    return [mfma(t, PF + 8*c, IDN, None), mfma(t, PF + 8*c + 4, IDN + 4, t),
            f"v_smfmac_f32_32x32x32_bf16 {vr(t,16)}, {vr(AO,4)}, {vr(QB+8*c,8)}, v{AO+4}"]


def ssmf(c, buf, first=False):
    return mfma(S + 16*c, HB, SO[buf], None if first else S + 16*c)


def cvts():
    return [f"v_cvt_pk_bf16_f32 v{HB+p}, v{HF+2*p}, v{HF+2*p+1}" for p in range(4)]


def exps(c):
    return [f"v_exp_f32 v{DD+r}, v{TT[c]+r}" for r in range(16)]


RQ = 244


def rcps():
    if OPT.get("quad", 0):
        return [f"v_rcp_f32 v{RQ+r}, v{RQ+r}" for r in range(4)]
    return [f"v_rcp_f32 v{MM+r}, v{MM+r}" for r in range(8)]


def fms():
    if OPT.get("quad", 0):
        return ([f"v_mul_f32 v{HF+r}, v{MM+(r^1)}, v{RQ+(r>>1)}" for r in range(8)]
                + [f"v_mul_f32 v{HF+r}, v{NN+r}, v{HF+r}" for r in range(8)])
    return [f"v_mul_f32 v{HF+r}, v{NN+r}, v{MM+r}" for r in range(8)]


def prun(c, fm=True):
    t = TT[c]
    P = fms() if fm else []
    if OPT.get("p5"):
        P += [f"v_add_f32 v{DD+r}, 1.0, v{DD+r}" for r in range(16)]
        P += [f"v_mul_f32 v{MM+j}, v{DD+2*j}, v{DD+2*j+1}" for j in range(8)]
        P += [f"v_mul_f32 v{NN+j}, v{t+2*j}, v{DD+2*j+1}" for j in range(8)]
        P += [f"v_fma_f32 v{NN+j}, v{t+2*j+1}, v{DD+2*j}, v{NN+j}" for j in range(8)]
        return P
    P += [f"v_add_f32 v{DD+2*j+1}, 1.0, v{DD+2*j+1}" for j in range(8)]
    P += [f"v_fma_f32 v{NN+j}, v{t+2*j+1}, v{DD+2*j}, v{t+2*j+1}" for j in range(8)]
    P += [f"v_fma_f32 v{MM+j}, v{DD+2*j}, v{DD+2*j+1}, v{DD+2*j+1}" for j in range(8)]
    P += [f"v_fmac_f32 v{NN+j}, v{t+2*j}, v{DD+2*j+1}" for j in range(8)]
    if OPT.get("quad", 0):
        P += [f"v_mul_f32 v{RQ+j}, v{MM+2*j}, v{MM+2*j+1}" for j in range(4)]
    return P


def weave(base, inserts):
    out = []
    ins = sorted(inserts, key=lambda x: x[0])
    k = 0
    for i, l in enumerate(base):
        while k < len(ins) and ins[k][0] <= i:
            out += ins[k][1]; k += 1
        out.append(l)
    while k < len(ins):
        out += ins[k][1]; k += 1
    return out


def trun(c, par, stage, role):
    z = zmf(1 - c)
    late = role == "B" and c == 1
    w = ["s_waitcnt lgkmcnt(0)"] if late else []
    if stage == 0:
        base = exps(c)
        pos = [0, 5, 10]
    elif stage == 1:
        base = exps(c) + rcps()
        pos = [10, 15, 20] if late else [0, 6, 12]
    else:
        base = cvts() + exps(c) + rcps()
        pos = [12, 17, 22, 6] if late else [0, 7, 13, 20]
    ins = [(pos[0], w + [z[0]])] + [(pos[k], [z[k]]) for k in (1, 2)]
    if stage >= 2:
        ins.append((pos[3], [ssmf(c, par ^ 1, stage < 4)]))
    return [f"s_setprio {2 if role == 'A' else 1}"] + weave(base, ins) + ["s_setprio 0"]


def w2_loads(fs):
    out = []
    for f in fs:
        if f in (4, 8) or (f > 4 and f == fs[0]):
            out.append(f"s_add_u32 s{t3}, s{sW2}, {1024*(f & ~3)}")
        so = sW2 if f < 4 else t3
        out.append(f"buffer_load_dwordx4 {vr(W2R+4*f,4)}, v4, s[{sWF}:{sWF+3}], s{so} offen offset:{(f & 3) * 1024}")
    return out


def blk1(par, role, vm=4, w2=()):
    nst = (par + 1) & 1
    pf, ao = pf_reads(nst), ao_reads(par + 1)
    out = [f"s_waitcnt vmcnt({vm})"] + pf[:2] + ao + pf[2:] + idx_reads(par + 3) + [so_read(par, par)] + w2_loads(w2)
    return out + (["s_waitcnt lgkmcnt(0)"] if role == "A" else [])


def blk2(par, role="B"):
    nst = (par + 1) & 1
    tr = OPT.get("trace")
    lim = f"s{sSW}" if role == "A" and OPT.get("sw", 1) else "0"
    return (dma(nst * 4096) + (["s_memtime s[90:91]"] if tr else [])
            + [f"s_sub_u32 s{sI}, s{sI}, 1", f"s_cmp_le_u32 s{sI}, {lim}"]
            + (["s_waitcnt lgkmcnt(0)", f"s_mov_b32 m0, s{sI}", "v_writelane_b32 v186, s90, m0"] if tr else []))


INC = [f"v_add_u32 v{BA}, {2*BLKSZ}, v{BA}", f"v_add_u32 v{BI}, {2*BLKSZ}, v{BI}", f"v_add_u32 v{IA}, 256, v{IA}"]


def drain(par):
    return (cvts() + rcps()[:2] + [ssmf(0, par)] + rcps()[2:] + ["s_nop 0"] + fms() + cvts() + ["s_nop 1", ssmf(1, par)])


DG, RA, RR, SA, SR, XWA = 228, 236, 237, 238, 239, 240
sRM, sOA, sOB, sSW, sS = 12, 14, 15, 16, 17


def epi_prelude():
    t = [PF + k for k in range(12)]
    hi, p0, p1, n, kg, i0, i1, i2 = t[:8]
    head = [f"v_lshrrev_b32 v{kg}, 4, v1", f"v_and_b32 v{n}, 15, v1", f"s_sub_u32 s{t0}, s{sS}, 16",
            f"v_lshl_add_u32 v{RA}, v{kg}, 8, v4", f"v_cmp_le_u32 vcc, s{t0}, v{n}", f"v_add_u32 v{RA}, {RING0}, v{RA}",
            f"v_add_u32 v{RR}, 256, v{RA}", "s_mov_b64 exec, vcc", f"v_add_u32 v{RR}, 0x8000, v{RA}", "s_mov_b64 exec, -1"]
    L = [f"v_lshlrev_b32 v{i0}, 2, v{n}", f"v_add_u32 v{i1}, 64, v{i0}", f"v_add_u32 v{i2}, 128, v{i0}", f"v_lshlrev_b32 v{SA}, 3, v{kg}"]
    L += [f"ds_bpermute_b32 v{DG+tl}, v{ix}, v{DEG}" for tl, ix in enumerate((i0, i1, i2))]
    if OPT.get("ofull", 1):
        L += [f"s_movk_i32 s{t0}, 272", f"v_mad_u32_u24 v{SA}, v{n}, s{t0}, v{SA}", f"s_lshl_b32 s{t1}, s3, 5",
              f"v_add_u32 v{SA}, s{t1}, v{SA}", f"v_lshlrev_b32 v{SR}, 4, v{n}", f"v_mad_u32_u24 v{SR}, v{kg}, s{t0}, v{SR}",
              f"s_mul_i32 s{t0}, s3, {4*272}", f"v_add_u32 v{SR}, s{t0}, v{SR}", f"s_lshl_b32 s{t0}, s3, 2",
              f"s_sub_u32 s{t0}, s{sNB_}, s{t0}", f"s_sub_u32 s{t0}, s{t0}, 32", f"v_cmp_gt_i32 s[{sRM}:{sRM+1}], s{t0}, v{kg}",
              f"s_lshl_b32 s{sOA}, s{sN0}, 8", f"s_lshl_b32 s{t0}, s3, 10", f"s_add_u32 s{sOA}, s{sOA}, s{t0}",
              f"s_add_u32 s{sOB}, s{sOA}, 8192"]
        return head, L
    L += [f"v_lshl_add_u32 v{SA}, v{n}, 8, v{SA}", f"s_sub_u32 s{t0}, s{sNB_}, 32",
          f"v_cmp_gt_u32 s[{sRM}:{sRM+1}], s{t0}, v{n}", f"s_lshl_b32 s{sOA}, s{sN0}, 8", f"s_lshl_b32 s{t0}, s3, 5",
          f"s_add_u32 s{sOA}, s{sOA}, s{t0}", f"s_add_u32 s{sOB}, s{sOA}, 4096", f"s_add_u32 s{t1}, s{sOA}, 8192"]
    return head, L


def fast_loop(a, role):
    L = "K2" + role
    em = lambda ls: [a(l) for l in ls]
    A = role == "A"
    T = lambda c, par, stage: trun(c, par, stage, role)
    def unit(T_, blk, P):
        em(T_)
        em(blk + P if A else P + blk)
    unit(T(0, 0, 0), blk1(0, role), prun(0, False))
    unit(T(1, 0, 1), blk2(0), prun(1))
    unit(T(0, 1, 2), blk1(1, role), prun(0))
    if A:
        em(T(1, 1, 3)); em(blk2(1, role))
        a(f"s_cbranch_scc1 {L}_EXIT1")
        a.raw(f".p2align {OPT.get('al', 6)}")
        a.label(f"{L}_LOOP")
        em(INC + prun(1))
        unit(T(0, 0, 4), blk1(0, role), prun(0))
        em(T(1, 0, 4)); em(blk2(0, role))
        a(f"s_cbranch_scc1 {L}_EXIT0")
        em(prun(1))
        unit(T(0, 1, 4), blk1(1, role), prun(0))
        em(T(1, 1, 4)); em(blk2(1, role))
        a(f"s_cbranch_scc0 {L}_LOOP")
    else:
        unit(T(1, 1, 3), blk2(1), prun(1))
        a(f"s_cbranch_scc1 {L}_EXIT1")
        a.raw(f".p2align {OPT.get('al', 6)}")
        a.label(f"{L}_LOOP")
        unit(T(0, 0, 4), blk1(0, role), INC + prun(0))
        unit(T(1, 0, 4), blk2(0), prun(1))
        a(f"s_cbranch_scc1 {L}_EXIT0")
        a.label(f"{L}_MID")
        unit(T(0, 1, 4), blk1(1, role), prun(0))
        unit(T(1, 1, 4), blk2(1), prun(1))
        a(f"s_cbranch_scc0 {L}_LOOP")
    for par in (1, 0):
        a.label(f"{L}_EXIT{par}")
        if A:
            em(prun(1))
            if OPT.get("sw", 1):
                a(f"s_cmp_lg_u32 s{sI}, 0")
                a(f"s_cbranch_scc1 K2B_{'LOOP' if par else 'MID'}")
        em(drain(par))
        a("s_branch K2_EPI")


def gen_k2(force_slow=False, diag=False, nogather=False, **opt):
    OPT.clear(); OPT.update(opt)
    a = Asm()
    a.diag = diag
    smap = OPT.get("smap", dict(start=0, tab=1, rec=2, recl=3, b4=4, loop=5, epi=6, epb=7, end=8, drained=9))
    st = lambda name: a.stamp(smap[name]) if name in smap else None
    hi = lambda: a("s_setprio 3") if OPT.get("prio", True) else None
    lo = lambda: a("s_setprio 0") if OPT.get("prio", True) else None
    a(f"s_cmp_ge_u32 s2, {NBKT}")
    a("s_cbranch_scc1 K2_END")
    st("start")
    a.cyc(88)
    if diag:
        a("s_mov_b32 s89, s2")
    a("s_load_dwordx2 s[22:23], s[0:1], 80")
    a("s_load_dwordx2 s[4:5], s[0:1], 0")
    a("s_load_dwordx2 s[20:21], s[0:1], 64")
    Z = HF
    NZ0, NZ1, NZ2 = OPT.get("nz", (14, 14, 0))
    NLINE = (MISC + 256) // 256
    NZ = (NLINE + 7) // 8
    def clear(k0, k1):
        if k0 < k1:
            a("s_lshl_b32 m0, s3, 8")
            a("s_nop 0")
        for k in range(k0, k1):
            if k == NZ - 1:
                a(f"s_min_u32 s{t0}, s3, {NLINE - 1 - 8*k}")
                a(f"s_lshl_b32 m0, s{t0}, 8")
                a("s_nop 0")
            a(f"ds_write_addtid_b32 v{Z} offset:{2048*k}")
    LA = AO
    LR, L64, Q1 = AO + 4, AO + 5, AO + 6
    CST = MM
    MX = [QB, QB + 4, QB + 8, QB + 12, NN, NN + 4, W2R + 28, W2R + 32]
    OH, OX, BIL = 186, 187, AO + 7
    XA = W2R + 20
    a("v_lshrrev_b32 v2, 6, v0")
    a("v_and_b32 v1, 63, v0")
    a("v_readfirstlane_b32 s3, v2")
    a(f"v_mov_b32 v{Z}, 0")
    clear(0, NZ0)
    a(f"s_and_b32 s{t0}, s2, 7")
    a("s_lshr_b32 s2, s2, 3")
    a(f"s_lshl_b32 s{t0}, s{t0}, 5")
    a(f"s_add_u32 s2, s2, s{t0}")
    a(f"s_lshr_b32 s{sWIN}, s3, 2")
    a("v_lshrrev_b32 v3, 2, v0")
    a("v_lshlrev_b32 v7, 2, v3")
    a(f"v_mov_b32 v{VCNT}, 0")
    a(f"v_cmp_gt_u32 vcc, {NCHUNK}, v3")
    a(f"s_lshl_b32 s{t3}, s2, 9")
    a(f"s_mov_b32 s{sTAB+2}, {hex(NBKT * 512)}")
    a(f"s_mov_b32 s{sTAB+3}, 0x00020000")
    a(f"s_and_b32 s{sWV}, s3, 3")
    a(f"s_lshl_b32 s{t0}, s2, 17")
    a(f"s_add_u32 s{t0}, s{t0}, {BM-1}")
    a(f"s_add_u32 s{t2}, s{t0}, 0x20000")
    a(f"s_mul_hi_u32 s{sN0}, s{t0}, {hex(START_MAGIC)}")
    a(f"s_mul_hi_u32 s{t2}, s{t2}, {hex(START_MAGIC)}")
    a(f"s_lshr_b32 s{sN0}, s{sN0}, {START_SH}")
    a(f"s_lshr_b32 s{t2}, s{t2}, {START_SH}")
    a(f"s_min_u32 s{t2}, s{t2}, {N}")
    a(f"s_sub_u32 s{sNB_}, s{t2}, s{sN0}")
    a(f"s_lshl_b32 s{sWBO}, s3, 13")
    a(f"s_add_u32 s{sRING}, s{sWBO}, {RING0}")
    a("s_mov_b64 exec, vcc")
    a("s_waitcnt lgkmcnt(0)")
    a(f"s_add_u32 s{sTAB}, s22, {hex(WS_TAB)}")
    a(f"s_addc_u32 s{sTAB+1}, s23, 0")
    a(f"buffer_load_dword v{VCNT}, v7, s[{sTAB}:{sTAB+3}], s{t3} offen")
    a("s_mov_b64 exec, -1")
    clear(NZ0, NZ0 + NZ1)
    a("v_lshrrev_b32 v5, 4, v1")
    a("v_and_b32 v6, 15, v1")
    a("v_xor_b32 v6, v6, v5")
    a(f"s_lshl_b32 s{t1}, s{sWV}, 2")
    a(f"v_xor_b32 v6, s{t1}, v6")
    a("v_lshlrev_b32 v6, 4, v6")
    a("v_lshl_add_u32 v6, v5, 8, v6")
    a("v_lshlrev_b32 v4, 4, v1")
    a(f"s_lshl_b32 s{t1}, s{sN0}, 8")
    a(f"s_lshl_b32 s{t2}, s3, 10")
    a(f"s_add_u32 s{t1}, s{t1}, s{t2}")
    a(f"s_add_u32 m0, s{t2}, {XW}")
    a.srd(sX, 4, N * 256)
    a(f"buffer_load_dwordx4 v6, s[{sX}:{sX+3}], s{t1} offen lds")
    a("s_cmp_ge_u32 s3, 2")
    a("s_cbranch_scc1 K2_X2")
    a(f"s_add_u32 m0, s{t2}, {XW + 8192}")
    a(f"s_add_u32 s{t1}, s{t1}, 8192")
    a(f"buffer_load_dwordx4 v6, s[{sX}:{sX+3}], s{t1} offen lds")
    a.label("K2_X2")
    a(f"s_mov_b32 m0, s{sRING}")
    a.srd(sWF, 22, NFRAG * 1024, WS_WB)
    for z in range(4):
        a(f"buffer_load_dwordx4 v4, s[{sWF}:{sWF+3}], s{sWBO} offen offset:{1024*z} lds")
    a.srd(sREC, 22, E * RECB, WS_REC)
    a(f"s_mov_b32 s{sLO}, 0")
    a(f"s_mov_b32 s{sCAP}, {CAP1}")
    a(f"s_mov_b32 s{sF1}, 1")
    a(f"s_mov_b32 s{sF2}, 1")
    a(f"s_lshl_b32 s{sLIST}, s3, 9")
    a(f"s_add_u32 s{sLIST}, s{sLIST}, {LIST}")
    a("v_and_b32 v7, 3, v0")
    a(f"s_movk_i32 s{t0}, {CH}")
    a(f"v_mad_u32_u24 v{VREC}, v3, s{t0}, v7")
    a(f"v_mul_u32_u24 v{VREC}, {RECB}, v{VREC}")
    a(f"v_xor_b32 v{Q1}, 3, v7")
    a(f"v_lshlrev_b32 v{Q1}, 16, v{Q1}")
    a(f"v_lshl_add_u32 v{LR}, v1, 2, s{sLIST}")
    a(f"v_add_u32 v{L64}, 64, v1")
    a("v_and_b32 v2, 31, v1")
    a("v_lshrrev_b32 v5, 5, v1")
    a(f"s_lshl_b32 s{t0}, s{sWIN}, 4")
    a(f"v_add_u32 v{XA}, 12, v2")
    a(f"v_lshrrev_b32 v{XA}, 5, v{XA}")
    a(f"v_mad_i32_i24 v{XA}, v{XA}, -4, v2")
    a(f"v_add_u32 v{XA}, -4, v{XA}")
    a(f"v_min_u32 v{XA}, 23, v{XA}")
    a(f"v_add_u32 v{XA}, s{t0}, v{XA}")
    a(f"v_and_b32 v7, 15, v{XA}")
    a("v_xor_b32 v7, v7, v5")
    a("v_lshlrev_b32 v7, 4, v7")
    a(f"v_lshl_add_u32 v{XA}, v{XA}, 8, v7")
    a(f"v_add_u32 v{XA}, {XW}, v{XA}")
    for s in range(1, 8):
        a(f"v_xor_b32 v{XA+s}, {32*s}, v{XA}")
    a(f"s_lshl_b32 s{t0}, s{sWV}, 14")
    a(f"s_add_u32 s{t0}, s{t0}, {RING0}")
    a(f"v_add_u32 v3, s{t0}, v4")
    a.srd(sP, 22, N, WS_P, stride=512)
    a.srd(sOUT, 20, N * 256)
    a(f"s_mov_b32 s{sSINIT}, 0")
    a(f"s_mul_i32 s{sBLK}, s{sWIN}, {BLKW}")
    a(f"s_mul_i32 s{sIDX}, s{sWIN}, {IDXW}")
    a(f"s_add_u32 s{sIDX}, s{sIDX}, {IDX}")
    a(f"s_lshl_b32 s{t0}, s{sN0}, 2")
    a(f"s_sub_u32 s{sCA}, {CNT}, s{t0}")
    a(f"s_mov_b32 s{sSA}, {hex((-4*CNT) & 0xffffffff)}")
    a(f"s_mov_b32 s{sNW}, {IDX}")
    a(f"s_mul_i32 s{sW2}, s3, {9*1024}")
    a(f"s_add_u32 s{sW2}, s{sW2}, {WS_W2F - WS_WB}")
    clear(NZ0 + NZ1, NZ0 + NZ1 + NZ2)
    hi()
    a("s_waitcnt vmcnt(5)")
    st("tab")
    a(f"v_add_u32 v7, v{VCNT}, v{Q1}")
    a(f"v_and_b32 v6, 0xffff, v{VCNT}")
    a(f"v_lshrrev_b32 v{VCNT}, 18, v7")
    a(f"v_mad_u32_u24 v{VREC}, v6, {RECB}, v{VREC}")
    a(f"v_add_u32 v{LA+1}, {4*RECB}, v{VREC}")
    D = lambda src, ctl: a(f"v_add_u32_dpp v{VBASE}, v{src}, v{src} {ctl}")
    D(VCNT, "row_shr:1 row_mask:0xf bank_mask:0xf bound_ctrl:0")
    a(f"v_add_u32 v{LA+2}, {8*RECB}, v{VREC}")
    a(f"v_add_u32 v{LA+3}, {12*RECB}, v{VREC}")
    D(VBASE, "row_shr:2 row_mask:0xf bank_mask:0xf bound_ctrl:0")
    a(f"v_cmp_lt_u32 vcc, 4, v{VCNT}")
    a("s_nop 0")
    D(VBASE, "row_shr:4 row_mask:0xf bank_mask:0xf bound_ctrl:0")
    a("s_nop 1")
    D(VBASE, "row_shr:8 row_mask:0xf bank_mask:0xf bound_ctrl:0")
    a("s_nop 1")
    D(VBASE, "row_bcast:15 row_mask:0xa bank_mask:0xf")
    a("s_nop 1")
    D(VBASE, "row_bcast:31 row_mask:0xc bank_mask:0xf")
    a("s_cbranch_vccnz K2_GEN0")
    a(f"v_readlane_b32 s{sTW}, v{VBASE}, 63")
    a(f"v_sub_u32 v{VBASE}, v{VBASE}, v{VCNT}")
    a(f"v_lshl_add_u32 v6, v{VBASE}, 2, s{sLIST}")
    a(f"s_cmp_gt_u32 s{sTW}, {CAP1}")
    a("s_cbranch_scc1 K2_GEN")
    a(f"s_mov_b32 s{t0}, s{sTW}")
    for j in range(4):
        a(f"v_cmpx_lt_u32 vcc, {j}, v{VCNT}")
        a(f"ds_write_b32 v6, v{VREC if j == 0 else LA+j} offset:{4*j}")
    a.label("K2_LISTED")
    a("s_mov_b64 exec, -1")
    a(f"ds_read_b32 v{LA}, v{LR}")
    a(f"ds_read_b32 v{LA+1}, v{LR} offset:256")
    a(f"v_cmp_gt_u32 s[{sM0}:{sM0+1}], s{t0}, v1")
    a(f"v_cmp_gt_u32 s[{sM1}:{sM1+1}], s{t0}, v{L64}")
    R = (PF, PF + 4)
    for r in range(2):
        a(f"s_waitcnt lgkmcnt({1-r})")
        a(f"buffer_load_dwordx3 {vr(R[r],3)}, v{LA+r}, s[{sREC}:{sREC+3}], 0 offen")
    lo()
    st("rec")
    a(f"s_cmp_eq_u32 s{sF1}, 0")
    a("s_cbranch_scc1 K2_NF2")
    a(f"s_lshl_b32 s{t1}, s3, 11")
    a(f"s_add_u32 m0, s{t1}, {WBS}")
    a(f"s_add_u32 s{t0}, s{sWBO}, 4096")
    for z in range(2):
        a(f"buffer_load_dwordx4 v4, s[{sWF}:{sWF+3}], s{t0} offen offset:{1024*z} lds")
    L67 = OPT.get("l67", 1)
    if L67:
        a(f"s_add_u32 m0, s{sRING}, 2048")
        a("s_nop 0")
        for z in range(2, 4):
            a(f"buffer_load_dwordx4 v4, s[{sWF}:{sWF+3}], s{t0} offen offset:{1024*z} lds")
    a.label("K2_NF2")
    clear(NZ0 + NZ1 + NZ2, NZ)
    a(f"v_mov_b32 v{Z+4}, {PADIDX}")
    a("s_lshl_b32 m0, s3, 8")
    a(f"s_min_u32 s{t0}, s3, 4")
    a(f"ds_write_addtid_b32 v{Z+4} offset:{IDX}")
    a(f"s_lshl_b32 m0, s{t0}, 8")
    a("s_nop 0")
    a(f"ds_write_addtid_b32 v{Z+4} offset:{IDX + 2048}")
    a(f"s_cmp_eq_u32 s{sF1}, 0")
    a("s_cbranch_scc1 K2_NF3")
    a(f"v_and_b32 v{IX}, 7, v1")
    a("v_lshrrev_b32 v7, 4, v1")
    a(f"v_xor_b32 v7, v{IX}, v7")
    a("v_lshlrev_b32 v7, 4, v7")
    a(f"s_lshl_b32 s{t0}, s{sWV}, 7")
    a(f"v_add_u32 v{IX+1}, s{t0}, v7")
    a(f"v_xor_b32 v{IX+3}, 64, v{IX+1}")
    a(f"v_mov_b32 v{IX+5}, v{IX+1}")
    a(f"v_mov_b32 v{IX+7}, v{IX+3}")
    a(f"v_mov_b32 v{DEG}, 0")
    a(f"s_lshl_b32 s{t0}, s{sWV}, 11")
    a(f"s_add_u32 s{t0}, s{t0}, {WS_CST - WS_WB}")
    st("pb2")
    a(f"s_waitcnt vmcnt({6 if L67 else 4}) lgkmcnt(0)")
    a("s_barrier")
    st("b2")
    for s in range(4):
        for c in range(2):
            a(f"ds_read_b128 {vr(WBQ+4*(4*c+s),4)}, v3 offset:{(8*c+s)*1024}")
    for c in range(2):
        a(f"buffer_load_dwordx4 {vr(CST+4*c,4)}, v4, s[{sWF}:{sWF+3}], s{t0} offen offset:{1024*c}")
    if not L67:
        a(f"s_lshl_b32 s{t0}, s{sWV}, 14")
    for c in range(0 if L67 else 2):
        a(f"s_add_u32 s{t0}, s{t0}, {4096 if c == 0 else 8192}")
        for s in (6, 7):
            a(f"buffer_load_dwordx4 {vr(DD+8*c+4*(s-6),4)}, v4, s[{sWF}:{sWF+3}], s{t0} offen offset:{1024*(s-4)}")
    a("s_cmp_lg_u32 s3, 3")
    a("s_cbranch_scc1 K2_NMX")
    a.srd(sMX, 22, NGEMM * 16, WS_PMAX)
    a(f"s_movk_i32 s{t0}, 0x1000")
    for k in range(5):
        so = "0" if k < 4 else f"s{t0}"
        a(f"buffer_load_dwordx4 {vr(MX[k],4)}, v4, s[{sMX}:{sMX+3}], {so} offen offset:{(k & 3) * 1024}")
    a.srd(sMX, 22, NCHUNK * 20, WS_EMAX)
    for k in range(3):
        a(f"buffer_load_dwordx4 {vr(MX[5+k],4)}, v4, s[{sMX}:{sMX+3}], 0 offen offset:{1024*k}")
    a(f"s_waitcnt vmcnt({14 if L67 else 16})")
    a("s_branch K2_J3")
    a.label("K2_NMX")
    a(f"s_waitcnt vmcnt({6 if L67 else 8})")
    a.label("K2_J3")
    NW2 = OPT.get("nw2", 5)
    hi()
    st("recl")
    AC = (PF + 8, PF + 9); RK = (PF + 10, PF + 11); SU = (PF + 12, PF + 13); BP = (PF + 14, PF + 15)
    a("v_mov_b32 v6, 1")
    for r in range(2):
        a(f"v_lshrrev_b32 v{AC[r]}, 14, v{R[r]+2}")
    for r in range(2):
        a(f"v_lshl_add_u32 v{AC[r]}, v{AC[r]}, 2, s{sCA}")
    for r in range(2):
        a(f"s_mov_b64 exec, s[{(sM0, sM1)[r]}:{(sM0, sM1)[r]+1}]")
        a(f"ds_add_rtn_u32 v{RK[r]}, v{AC[r]}, v6")
    a("s_mov_b64 exec, -1")
    a(f"v_mov_b32 v7, {MISC}")
    a(f"v_mov_b32 v{Z+4}, s{sTW}")
    a(f"v_lshlrev_b32 v{Z+5}, 2, v1")
    a("s_mov_b64 exec, 1")
    a(f"ds_max_u32 v7, v{Z+4}")
    a("s_mov_b64 exec, -1")
    a(f"v_add_u32 v6, {CNT}, v{Z+5}")
    BX = (SO0, SO0 + 1); EW = (HB, AO)
    a("s_waitcnt lgkmcnt(0)")
    st("pb3")
    a("s_barrier")
    st("b3")
    a(f"ds_read_b32 v{Z+5}, v6")
    a(f"ds_read_b32 v{Z+4}, v7")
    for l in w2_loads(range(0, 2)): a(l)
    for r in range(2):
        a(f"v_and_b32 v{R[r]+2}, 0x3fff, v{R[r]+2}")
    a("s_waitcnt lgkmcnt(1)")
    a(f"v_add_u32 v7, 1, v{Z+5}")
    a("v_and_b32 v7, -2, v7")
    a("v_mov_b32 v6, v7")
    a(f"v_cvt_f32_u32 v{Z+5}, v{Z+5}")
    D7 = lambda ctl: a(f"v_add_u32_dpp v7, v7, v7 {ctl}")
    D7("row_shr:1 row_mask:0xf bank_mask:0xf bound_ctrl:0")
    a(f"v_mov_b32 v{Z+6}, {BLKSZ - 512}")
    a(f"v_mov_b32 v{Z+7}, {BLKSZ}")
    D7("row_shr:2 row_mask:0xf bank_mask:0xf bound_ctrl:0")
    a(f"v_add_u32 v{BA}, s{sBLK}, v4")
    a(f"v_lshrrev_b32 v{IA}, 3, v1")
    D7("row_shr:4 row_mask:0xf bank_mask:0xf bound_ctrl:0")
    a(f"v_lshl_add_u32 v{IA}, v{IA}, 2, s{sIDX}")
    a("s_waitcnt lgkmcnt(0)")
    D7("row_shr:8 row_mask:0xf bank_mask:0xf bound_ctrl:0")
    a(f"v_readfirstlane_b32 s{t2}, v{Z+4}")
    a(f"v_mov_b32 v{Z+4}, 0x3f80")
    D7("row_bcast:15 row_mask:0xa bank_mask:0xf")
    a(f"v_mov_b32 v{Z+3}, {BLKSZ - 128}")
    a("s_nop 0")
    D7("row_bcast:31 row_mask:0xc bank_mask:0xf")
    a(f"s_cmp_eq_u32 s{sCAP}, {CAP2}")
    a(f"v_readlane_b32 s{t1}, v7, 63")
    a("v_sub_u32 v6, v7, v6")
    a("s_cbranch_scc1 K2_FIX")
    a(f"s_add_u32 s{t0}, s{t1}, 63")
    a(f"s_lshr_b32 s{t0}, s{t0}, 6")
    a(f"s_lshl_b32 s{t0}, s{t0}, 5")
    a.label("K2_CUT")
    a(f"s_sub_u32 s{sS}, s{t1}, s{t0}")
    a(f"v_cmp_ge_u32 vcc, s{t0}, v7")
    a(f"v_cmp_le_i32 s[{sRM}:{sRM+1}], s{sS}, v7")
    a(f"s_and_b32 s{sS}, vcc_lo, 0xff8000")
    a(f"s_and_b32 s{sS}, s{sS}, s{sRM}")
    a("s_cbranch_scc0 K2_CUT2")
    a(f"s_flbit_i32_b32 s{sS}, s{sS}")
    a(f"s_sub_u32 s{sS}, 31, s{sS}")
    a.label("K2_CUTD")
    a(f"v_readlane_b32 s{t0}, v7, s{sS}")
    a(f"s_add_u32 s{sS}, s{sS}, 1")
    a(f"s_lshl_b64 exec, -1, s{sS}")
    a(f"s_sub_u32 s{sRM}, {MAXT*32}, s{t0}")
    a(f"v_add_u32 v6, s{sRM}, v6")
    a("s_mov_b64 exec, -1")
    for r in range(2):
        a(f"ds_bpermute_b32 v{BP[r]}, v{AC[r]}, v6")
    a(f"s_sub_u32 s{t1}, s{t1}, s{t0}")
    for l in w2_loads(range(2, NW2)): a(l)
    a(f"s_mov_b32 s{sF1}, 0")
    a(f"s_cmp_eq_u32 s{sWIN}, 0")
    a(f"s_cselect_b32 s{sNT}, s{t0}, s{t1}")
    a(f"s_add_u32 s{sNT}, s{sNT}, 31")
    a(f"s_lshr_b32 s{sNT}, s{sNT}, 5")
    a(f"s_add_u32 s{sSW}, s{t0}, 31")
    a(f"s_lshr_b32 s{sSW}, s{sSW}, 5")
    a(f"s_sub_u32 s{sSW}, s{sNT}, s{sSW}")
    a(f"s_max_i32 s{sSW}, s{sSW}, 0")
    a(f"s_max_u32 s{t0}, s{t0}, s{t1}")
    a(f"s_cmp_gt_u32 s{t0}, {MAXT*32}")
    a(f"s_cselect_b32 s{t0}, 0x7fffffff, s{t2}")
    a(f"s_cmp_gt_u32 s{t0}, s{sCAP}")
    a("s_cbranch_scc1 K2_OV")
    a.label("K2_NOOV")
    t = [T1 + k for k in range(8)]
    BO = (SO0 + 2, SO0 + 3)
    a(f"s_lshl_b32 s{t0}, s{sS}, 2")
    a(f"s_add_u32 s{t0}, s{t0}, {CNT}")
    for r in range(2):
        a(f"s_waitcnt lgkmcnt({1-r})")
        a(f"v_add_u32 v{BP[r]}, v{BP[r]}, v{RK[r]}")
        a(f"v_lshl_add_u32 v{t[r]}, v{BP[r]}, 2, s{sNW}")
    for r in range(2):
        a(f"s_mov_b64 exec, s[{(sM0, sM1)[r]}:{(sM0, sM1)[r]+1}]")
        if not nogather:
            a(f"ds_write_b32 v{t[r]}, v{R[r]+2}")
    a("s_mov_b64 exec, -1")
    a(f"v_add_f32 v{DEG}, v{DEG}, v{Z+5}")
    def lookups():
        for r in range(2):
            a(f"v_cmpx_le_u32 vcc, s{t0}, v{AC[r]}")
            a(f"v_add_u32 v{AC[r]}, -64, v{AC[r]}")
            a("s_mov_b64 exec, -1")
        for r in range(2):
            a(f"ds_bpermute_b32 v{BO[r]}, v{AC[r]}, v{OH}")
            a(f"ds_bpermute_b32 v{BX[r]}, v{AC[r]}, v{OX}")

    def scatter(extra=()):
        extra = list(extra)
        cnt = [0]
        def e(l):
            a(l)
            cnt[0] += 1
            if extra and l.startswith('v_') and cnt[0] % 4 == 0:
                a(extra.pop(0))
        for r in range(2):
            e(f"v_lshl_add_u32 v{SU[r]}, v{AC[r]}, 2, s{sSA}")
        a("s_waitcnt lgkmcnt(0)")
        for r in range(2):
            p = BP[r]
            e(f"v_lshrrev_b32 v{t[0]}, 5, v{p}")
            e(f"v_mul_u32_u24 v{t[2]}, v{t[0]}, v{Z+6}")
            e(f"v_mad_u32_u24 v{t[3]}, v{t[0]}, v{Z+7}, v{SU[r]}")
            e(f"v_lshl_add_u32 v{t[2]}, v{p}, 4, v{t[2]}")
            e(f"v_mul_u32_u24 v{t[6]}, v{t[0]}, v{Z+3}")
            e(f"v_and_b32 v{t[4]}, 4, v{p}")
            e(f"v_lshrrev_b32 v{t[5]}, 1, v{p}")
            e(f"v_lshl_add_u32 v{t[3]}, v{t[4]}, 7, v{t[3]}")
            e(f"v_add_u32 v{t[4]}, v{BO[r]}, v{t[2]}")
            e(f"v_and_or_b32 v{t[3]}, v{t[5]}, 12, v{t[3]}")
            e(f"v_lshl_add_u32 v{t[6]}, v{p}, 2, v{t[6]}")
            e(f"v_and_or_b32 v{t[3]}, v{p}, 2, v{t[3]}")
            a(f"s_mov_b64 exec, s[{(sM0, sM1)[r]}:{(sM0, sM1)[r]+1}]")
            a(f"ds_write2_b32 v{t[2]}, v{R[r]}, v{R[r]+1} offset0:0 offset1:128")
            a(f"ds_write_b16 v{t[4]}, v{Z+4}")
            a(f"ds_write_b32 v{t[6]}, v{BX[r]} offset:{O_IX}")
            a(f"ds_write_b16 v{t[3]}, v{Z+4} offset:{O_SO}")
            a("s_mov_b64 exec, -1")
        while extra: a(extra.pop(0))
    scatter.n = 1
    a(f"s_waitcnt vmcnt({NW2}) lgkmcnt(0)")
    st("pb4")
    a("s_barrier")
    st("b4")
    for l in idx_reads(0): a(l)
    a(f"s_cmp_eq_u32 s{sF2}, 0")
    a("s_cbranch_scc1 K2_NF4")
    WB2 = HB
    QE = OPT.get("qe", 2)
    dq = DsTrack(a)
    def qm(s):
        return [mfma(S + 16*c, T0 + 4*s, WBQ + 4*(4*c+s) if s < 4 else WB2 + 4*(2*c+s-4) if s < 6 else DD + 8*c + 4*(s-6), None if s == 0 else S + 16*c) for c in range(2)]
    WV = OPT.get("wv", 0)
    QE = OPT.get("qe", 2)
    D1 = OPT.get("d1", 1)
    for s in range(WV):
        a(f"ds_read_b128 {vr(T0+4*s,4)}, v{XA+s}")
    a(f"s_waitcnt lgkmcnt({WV})")
    for l in dma(0): a(l)
    HH = 5
    a("v_add_u32 v6, 20, v2")
    a("v_lshrrev_b32 v6, 5, v6")
    a("v_lshrrev_b32 v7, 2, v2")
    a("v_add3_u32 v6, v6, v7, 1")
    a(f"v_bfe_u32 v{OH}, v6, 1, 1")
    a(f"v_and_b32 v{OX}, 1, v6")
    a(f"v_lshl_add_u32 v{OH}, v{OX}, 1, v{OH}")
    a(f"v_lshlrev_b32 v{OH}, 2, v{OH}")
    a("v_lshrrev_b32 v6, 2, v6")
    a(f"v_lshl_add_u32 v{OX}, v6, 4, v{OH}")
    a("v_and_b32 v7, 3, v2")
    a(f"v_lshlrev_b32 v{OX}, v{OX}, v7")
    a(f"v_or_b32 v{OX}, 0x40004, v{OX}")
    a(f"v_lshl_add_u32 v{OH}, v6, 9, v{OH}")
    a(f"v_lshlrev_b32 v{BIL}, 2, v2")
    a(f"v_lshl_add_u32 v{BIL}, v{HH}, 1, v{BIL}")
    lookups()
    a("v_bfe_u32 v6, v1, 1, 3")
    a(f"v_xor_b32 v6, v6, v{HH}")
    a("v_lshlrev_b32 v6, 4, v6")
    a("v_lshl_add_u32 v6, v2, 7, v6")
    a(f"v_add_u32 v{PA}, s{sRING}, v6")
    for k in range(1, 4):
        a(f"v_xor_b32 v{PA+k}, {32*k}, v{PA}")
    a("v_and_b32 v7, 1, v1")
    a("v_lshlrev_b32 v7, 4, v7")
    a("v_mov_b32 v6, 0x3f80")
    a("v_lshlrev_b32 v7, v7, v6")
    for i in range(2):
        a(f"v_mov_b32 v{IDN+4*i}, 0")
    for i in range(2):
        a(f"s_mov_b32 exec_lo, {hex(3 << (16*i))}")
        a(f"s_mov_b32 exec_hi, {hex(3 << (16*i + 8))}")
        a(f"v_mov_b32 v{IDN+4*i}, v7")
    a("s_mov_b64 exec, -1")
    fl = [f"s_lshl_b32 s{t0}, s{sWV}, 12", f"s_add_u32 s{t0}, s{t0}, {WBS}", f"v_add_u32 v2, s{t0}, v4"]
    for q in range(1, 4):
        a(fl[q-1])
        for i in range(2):
            a(f"v_mov_b32_dpp v{IDN+4*i+q}, v{IDN+4*i+q-1} row_shr:2 row_mask:0xf bank_mask:0xf bound_ctrl:0")
    a(f"v_add_u32 v{BI}, s{sBLK}, v{BIL}")
    st("dma0")
    if WV:
        a("s_waitcnt lgkmcnt(0)")
    scatter([l for s in range(WV) for l in qm(s)])
    st("scat")
    for s in range(WV, QE):
        dq(f"ds_read_b128 {vr(T0+4*s,4)}, v{XA+s}", f"x{s}")
    for l in idx_reads(1): dq(l, "w")
    for s in range(4, 8 if L67 else 6):
        for c in range(2):
            if s < 6:
                dq(f"ds_read_b128 {vr(WB2+4*(2*c+s-4),4)}, v2 offset:{(2*c+s-4)*1024}", "w")
            else:
                dq(f"ds_read_b128 {vr(DD+8*c+4*(s-6),4)}, v3 offset:{8192*c+4096+(s-6)*1024}", "w")
    lo()
    for s in range(WV, QE):
        dq.wait(f"x{s}")
        for l in qm(s): a(l)
    for s in range(max(WV, QE), 8):
        dq(f"ds_read_b128 {vr(T0+4*s,4)}, v{XA+s}", f"x{s}")
    a("s_cmp_lg_u32 s3, 3")
    a("s_cbranch_scc1 K2_NMX2")
    mx = [MX[k] + q for k in range(5) for q in range(4)]
    for k in range(1, 10):
        a(f"v_max3_u32 v{mx[0]}, v{mx[0]}, v{mx[2*k-1]}, v{mx[2*k]}")
    a(f"v_max_u32 v{Z}, v{mx[0]}, v{mx[19]}")
    me = [MX[k] + q for k in range(5, 8) for q in range(4)]
    for k in range(1, 6):
        a(f"v_max3_u32 v{me[0]}, v{me[0]}, v{me[2*k-1]}, v{me[2*k]}")
    a(f"v_max_u32 v{Z+1}, v{me[0]}, v{me[11]}")
    for sh in (1, 2, 4, 8):
        a("s_nop 0")
        for k in range(2):
            a(f"v_max_u32_dpp v{Z+k}, v{Z+k}, v{Z+k} row_shr:{sh} row_mask:0xf bank_mask:0xf bound_ctrl:0")
    for bc, rm in ((15, "0xa"), (31, "0xc")):
        a("s_nop 0")
        for k in range(2):
            a(f"v_max_u32_dpp v{Z+k}, v{Z+k}, v{Z+k} row_bcast:{bc} row_mask:{rm} bank_mask:0xf")
    a(f"v_mov_b32 v7, {MISC + 4}")
    a("s_mov_b32 exec_lo, 0")
    a("s_mov_b32 exec_hi, 0x80000000")
    a(f"ds_write2_b32 v7, v{Z}, v{Z+1} offset0:0 offset1:1")
    a("s_mov_b64 exec, -1")
    a("s_waitcnt lgkmcnt(0)")
    a.label("K2_NMX2")
    a(f"v_mov_b32 v7, {MISC + 4}")
    dm = dma(4096)
    early = QE < 8
    if early:
        dq.wait("w")
        st("pb5")
        a("s_barrier")
        st("b5")
        if D1 == 1:
            for l in dm: a(l)
        st("dma1")
        dq(f"ds_read2_b32 {vr(Z+4,2)}, v7 offset0:0 offset1:1")
    for s in range(max(WV, QE), 8):
        dq.wait(f"x{s}")
        for c, l in enumerate(qm(s)):
            a(l)
            if D1 == 2 and s >= 4:
                a(dm[3*(s-4) + 2*c])
    st("q8")
    a(f"s_mov_b32 s{sSLOW}, {1 if force_slow else 0}")
    a(f"s_mov_b32 s{sF2}, 0")
    a(f"s_mov_b32 s{sNB}, 1")
    a("s_nop 7")
    for c in range(2):
        q = S + 16*c
        a(f"v_max_f32 v6, |v{q}|, |v{q+1}|")
        for r in range(2, 16, 2):
            a(f"v_max3_f32 v6, |v{q+r}|, |v{q+r+1}|, v6")
        for p in range(8):
            a(f"v_cvt_pk_bf16_f32 v{QB+8*c+p}, v{q+2*p}, v{q+2*p+1}")
        a("s_mov_b32 exec_hi, 0")
        for p in range(2):
            a(f"v_mov_b32 v{QB+8*c+4*p}, v{CST+4*c+p}")
        a("s_mov_b32 exec_hi, -1")
        if c == 0:
            a("s_waitcnt lgkmcnt(0)")
        a(f"v_fma_f32 v7, v{Z+5}, v{CST+4*c+3}, v{Z+4}")
        a("v_add_f32 v6, v7, v6")
        a(f"v_cmp_nge_f32 vcc, {hex(f32bits(30.0 if OPT.get('quad', 0) else 60.0))}, v6")
        a("s_cmp_lg_u64 vcc, 0")
        a(f"s_cselect_b32 s{sSLOW}, 1, s{sSLOW}")
        if c == 0 and OPT.get("pfe", 0):
            for l in ao_reads(0) + idx_reads(2): a(l)
            a("s_waitcnt vmcnt(4)")
            for l in pf_reads(0): a(l)
    a(f"s_cmp_lt_u32 s{sNT}, 2")
    a(f"s_cselect_b32 s{t0}, 1, s{sSLOW}")
    a(f"s_cmp_eq_u32 s{sCAP}, {CAP2}")
    a("s_cbranch_scc1 K2_SLOW0")
    a(f"s_mov_b32 s{sI}, s{sNT}")
    a(f"s_cmp_lg_u32 s{t0}, 0")
    a("s_cbranch_scc1 K2_SLOW")
    st("post")
    if not OPT.get("pfe", 0):
        for l in ao_reads(0) + idx_reads(2): a(l)
        a("s_waitcnt vmcnt(4)")
    st("loop")
    a.cyc(71)
    if not OPT.get("pfe", 0):
        for l in pf_reads(0): a(l)
    a("s_waitcnt lgkmcnt(0)")
    for l in zmf(0): a(l)
    for l in dma(0): a(l)
    if OPT.get("afirst", 1):
        a(f"s_cmp_eq_u32 s{sWIN}, 0")
        a("s_cbranch_scc1 K2_FB")
        a("s_nop 1")
        fast_loop(a, "A")
        a.label("K2_FB")
        a("s_nop 1")
        fast_loop(a, "B")
    else:
        a(f"s_cmp_lg_u32 s{sWIN}, 0")
        a("s_cbranch_scc1 K2_FA")
        a("s_nop 1")
        fast_loop(a, "B")
        a.label("K2_FA")
        a("s_nop 1")
        fast_loop(a, "A")
    marks = [len(a.lines)]
    a.label("K2_CUT2")
    a(f"s_add_u32 s{t0}, s{t0}, 32")
    a(f"s_lshl_b32 s{sS}, s{t0}, 1")
    a(f"s_sub_u32 s{sS}, s{sS}, 128")
    a(f"s_cmp_lt_i32 s{sS}, s{t1}")
    a("s_cbranch_scc1 K2_CUT")
    a.label("K2_FIX")
    a(f"s_mov_b32 s{sS}, 19")
    a("s_branch K2_CUTD")
    a.label("K2_NF3")
    a("s_waitcnt vmcnt(0) lgkmcnt(0)")
    a("s_barrier")
    a("s_branch K2_J3")
    a.label("K2_NF4")
    a("s_waitcnt lgkmcnt(0)")
    for l in dma(0) + idx_reads(1): a(l)
    lookups()
    a(f"v_add_u32 v{BI}, s{sBLK}, v{BIL}")
    scatter()
    a("s_waitcnt lgkmcnt(0)")
    a("s_barrier")
    for l in dma(4096): a(l)
    a("s_branch K2_SLOW")
    a.label("K2_OV")
    a(f"s_cmp_eq_u32 s{sCAP}, {CAP2}")
    a("s_cbranch_scc1 K2_NOOV")
    a(f"s_mov_b32 s{sCAP}, {CAP2}")
    a(f"s_add_u32 s{t2}, s{t2}, {CAP2-1}")
    a(f"s_mul_hi_u32 s{sNB2}, s{t2}, {hex((2**32 + CAP2 - 1)//CAP2)}")
    a("s_waitcnt lgkmcnt(0)")
    a("s_barrier")
    a.label("K2_BATCH")
    a(f"v_mov_b32 v{Z}, 0")
    clear(0, NZ0 + NZ1 + NZ2)
    a(f"v_lshl_add_u32 v{LR}, v1, 2, s{sLIST}")
    a(f"v_add_u32 v{L64}, 64, v1")
    a("s_branch K2_GEN")
    a.label("K2_GEN0")
    a(f"v_readlane_b32 s{sTW}, v{VBASE}, 63")
    a(f"v_sub_u32 v{VBASE}, v{VBASE}, v{VCNT}")
    a.label("K2_GEN")
    a(f"s_add_u32 s{t0}, s{sLO}, s{sCAP}")
    a(f"s_lshl_b32 s{t2}, s{sLO}, 2")
    a(f"s_sub_u32 s{t2}, s{sLIST}, s{t2}")
    a(f"v_max_u32 v6, s{sLO}, v{VBASE}")
    a(f"v_add_u32 v7, v{VBASE}, v{VCNT}")
    a(f"v_min_u32 v7, s{t0}, v7")
    a(f"v_sub_u32 v{LA}, v6, v{VBASE}")
    a(f"v_mad_u32_u24 v{LA}, v{LA}, {4*RECB}, v{VREC}")
    a("v_sub_u32 v7, v7, v6")
    a(f"v_lshl_add_u32 v6, v6, 2, s{t2}")
    a.label("K2_EXP")
    for j in range(4):
        a(f"v_cmpx_lt_i32 vcc, {j}, v7")
        a(f"ds_write_b32 v6, v{LA} offset:{4*j}")
        a(f"v_add_u32 v{LA}, {4*RECB}, v{LA}")
    a("v_cmpx_lt_i32 vcc, 4, v7")
    a("v_add_u32 v6, 16, v6")
    a("v_subrev_u32 v7, 4, v7")
    a(f"s_sub_u32 s{t0}, s{sTW}, s{sLO}")
    a(f"s_max_i32 s{t0}, s{t0}, 0")
    a(f"s_min_u32 s{t0}, s{t0}, s{sCAP}")
    a("s_nop 1")
    a("s_cbranch_execnz K2_EXP")
    a("s_branch K2_LISTED")
    a.label("K2_SLOW0")
    a(f"s_mov_b32 s{sNB}, s{sNB2}")
    a.label("K2_SLOW")
    a(f"s_mov_b32 s{sI}, s{sNT}")
    a(f"s_cmp_lg_u32 s{sSINIT}, 0")
    a("s_cbranch_scc1 K2_SL1")
    for r in range(32):
        a(f"v_mov_b32 v{S+r}, 0")
    a(f"s_mov_b32 s{sSINIT}, 1")
    a.label("K2_SL1")
    a(f"s_cmp_eq_u32 s{sNT}, 0")
    a("s_cbranch_scc1 K2_BDONE")
    a(f"s_mov_b32 s{t1}, s{sRING}")
    a.label("K2_SLOOP")
    a("s_waitcnt vmcnt(0)")
    for l in pf_reads(0) + ao_reads(0) + [so_read(0, 0)] + idx_reads(2): a(l)
    a("s_waitcnt lgkmcnt(0)")
    for l in dma(0): a(l)
    for c in range(2):
        for l in zmf(c): a(l)
        a("s_nop 15")
        for l in exps(c): a(l)
        for r in range(16): a(f"v_add_f32 v{DD+r}, 1.0, v{DD+r}")
        for r in range(16): a(f"v_rcp_f32 v{DD+r}, v{DD+r}")
        for j in range(8):
            a(f"v_mul_f32 v{HF+j}, v{TT[c]+2*j}, v{DD+2*j}")
        for j in range(8):
            a(f"v_fma_f32 v{HF+j}, v{TT[c]+2*j+1}, v{DD+2*j+1}, v{HF+j}")
        for l in cvts(): a(l)
        a("s_nop 1")
        a(ssmf(c, 0))
    for k in range(4):
        a(f"v_xor_b32 v{PA+k}, 0x1000, v{PA+k}")
    a(f"s_xor_b32 s{sRING}, s{sRING}, 0x1000")
    a(f"v_add_u32 v{BA}, {BLKSZ}, v{BA}")
    a(f"v_add_u32 v{BI}, {BLKSZ}, v{BI}")
    a(f"v_add_u32 v{IA}, 128, v{IA}")
    a(f"s_sub_u32 s{sI}, s{sI}, 1")
    a(f"s_cmp_lg_u32 s{sI}, 0")
    a("s_cbranch_scc1 K2_SLOOP")
    a(f"s_xor_b32 s{t0}, s{t1}, s{sRING}")
    a(f"s_mov_b32 s{sRING}, s{t1}")
    for k in range(4):
        a(f"v_xor_b32 v{PA+k}, s{t0}, v{PA+k}")
    a.label("K2_BDONE")
    a(f"s_add_u32 s{sLO}, s{sLO}, s{sCAP}")
    a(f"s_sub_u32 s{sNB}, s{sNB}, 1")
    a(f"s_cmp_eq_u32 s{sNB}, 0")
    a("s_cbranch_scc1 K2_EPI")
    a("s_waitcnt vmcnt(0) lgkmcnt(0)")
    a("s_barrier")
    a("s_branch K2_BATCH")
    if OPT.get("epin", 1):
        a("s_branch K2_EPI")
    marks.append(len(a.lines))
    a.label("K2_EPI")
    st("epi")
    a.cyc(81)
    if diag: a("s_sub_u32 s71, s81, s71")
    a(f"s_mov_b32 s{t2}, {hex(f32bits(-LN2))}")
    for l in w2_loads(range(NW2, 9)): a(l)
    a(f"v_add_u32 v{XWA}, s{sRING}, v4")
    a(f"s_waitcnt vmcnt({9 - NW2})")
    for k in range(4):
        for p in range(4*k, 4*k + 4):
            a(f"v_cvt_pk_bf16_f32 v{DD+p}, v{S+2*p}, v{S+2*p+1}")
        a(f"ds_write_b128 v{XWA}, {vr(DD+4*k,4)} offset:{1024*k}")
    head, pre = epi_prelude()
    if not OPT.get("eweave", 1):
        head, pre = head + pre, []
    for l in head: a(l)
    ACC, BIAS = T0, T1
    a("s_waitcnt lgkmcnt(0)")
    a("s_barrier")
    st("epb")
    de = DsTrack(a)
    XB = S
    jobs = [(ct, tl) for ct in range(8) for tl in range(3)]
    def xr(k):
        ct, tl = jobs[k]
        off = (ct >> 1) * 8192 + (ct & 1) * 2048 + (32768 + 256 if tl == 2 else 0)
        de(f"ds_read_b128 {vr(XB+4*(k&7),4)}, v{RR if tl == 1 else RA} offset:{off}", k)
    for k in range(8): xr(k)
    for l in pre[:7]: de(l, "dg")
    pre = pre[7:]
    if pre:
        pre += ["s_nop 0"] * (len(pre) & 1)
    else:
        a("s_nop 0")
    bias = [f"v_mul_f32 v{BIAS+4*tl+r}, v{DG+tl}, v{W2R+32+r}" for tl in range(3) for r in range(4)]
    for k, (ct, tl) in enumerate(jobs):
        de.wait(k)
        if tl == 0 and ct >= NW2:
            a(f"s_waitcnt vmcnt({8 - ct if ct < 7 else 0})")
        if k == 21:
            pre = bias
        a(mfma16(ACC + 4*tl, W2R + 4*ct, XB + 4*(k & 7), None if ct == 0 else ACC + 4*tl))
        if k + 8 < 24:
            xr(k + 8)
        n_ = 4 if k >= 21 else 2
        for l in pre[:n_]: de(l, "dg")
        pre = pre[n_:]
    if OPT.get("ofull", 1):
        a("s_nop 3")
        for tl in range(3):
            for r in range(4):
                a(f"v_fma_f32 v{ACC+4*tl+r}, v{ACC+4*tl+r}, s{t2}, v{BIAS+4*tl+r}")
            for p in range(2):
                a(f"v_cvt_pk_bf16_f32 v{DD+2*tl+p}, v{ACC+4*tl+2*p}, v{ACC+4*tl+2*p+1}")
            a(f"ds_write_b64 v{SA}, {vr(DD+2*tl,2)} offset:{16*272*tl}")
        a("s_cmp_ge_u32 s3, 2")
        a("s_waitcnt lgkmcnt(0)")
        a("s_barrier")
        a(f"ds_read_b128 {vr(DD,4)}, v{SR}")
        a("s_cbranch_scc1 K2_ST1")
        a(f"ds_read_b128 {vr(DD+4,4)}, v{SR} offset:{32*272}")
        a(f"s_mov_b64 exec, s[{sRM}:{sRM+1}]")
        a("s_waitcnt lgkmcnt(0)")
        a(f"buffer_store_dwordx4 {vr(DD+4,4)}, v4, s[{sOUT}:{sOUT+3}], s{sOB} offen {OPT.get('of', 'sc0 sc1')}")
        a("s_mov_b64 exec, -1")
        a.label("K2_ST1")
        a("s_waitcnt lgkmcnt(0)")
        a(f"buffer_store_dwordx4 {vr(DD,4)}, v4, s[{sOUT}:{sOUT+3}], s{sOA} offen {OPT.get('of', 'sc0 sc1')}")
    else:
        a("s_nop 3")
        for tl in range(3):
            for r in range(4):
                a(f"v_fma_f32 v{ACC+4*tl+r}, v{ACC+4*tl+r}, s{t2}, v{BIAS+4*tl+r}")
            for p in range(2):
                a(f"v_cvt_pk_bf16_f32 v{DD+2*tl+p}, v{ACC+4*tl+2*p}, v{ACC+4*tl+2*p+1}")
            if tl == 2:
                a(f"s_mov_b64 exec, s[{sRM}:{sRM+1}]")
            a(f"buffer_store_dwordx2 {vr(DD+2*tl,2)}, v{SA}, s[{sOUT}:{sOUT+3}], s{(sOA, sOB, t1)[tl]} offen {OPT.get('of', '')}")
    if diag:
        st("end")
        a("s_waitcnt vmcnt(0)")
        st("drained")
        if OPT.get("trace"):
            a("s_mov_b64 exec, -1")
            a("v_writelane_b32 v186, s81, 20")
            a("s_sub_u32 s90, s81, s71")
            a("v_writelane_b32 v186, s90, 21")
            a(f"v_writelane_b32 v186, s{sNT}, 22")
            a.srd(84, 22, 0x80000, WS_STAMP + 0x100000)
            a("s_lshl_b32 s90, s89, 3")
            a("s_add_u32 s90, s90, s3")
            a("s_lshl_b32 s90, s90, 8")
            a("v_lshlrev_b32 v6, 2, v1")
            a("buffer_store_dword v186, v6, s[84:87], s90 offen")
        if "smap" not in OPT: a("s_mov_b32 s100, s71")
        a("s_lshl_b32 s89, s89, 1")
        a(f"s_add_u32 s89, s89, s{sWIN}")
        a.stamp_flush(22, 1, 89, sWV)
    if OPT.get("lite"):
        a("s_waitcnt vmcnt(0)")
        a("s_memrealtime s[90:91]")
        a("s_mov_b64 exec, 1")
        a.srd(84, 22, 0x80000, WS_STAMP + 0x80000)
        a("s_lshl_b32 s88, s2, 3")
        a("s_add_u32 s88, s88, s3")
        a("s_lshl_b32 s88, s88, 2")
        a("v_mov_b32 v0, 0")
        a("s_waitcnt lgkmcnt(0)")
        a("v_mov_b32 v1, s90")
        a("buffer_store_dword v1, v0, s[84:87], s88 offen")
    if OPT.get("epin", 1):
        a.label("K2_FIN")
        a("s_endpgm")
        rare = a.lines[marks[0]:marks[1]]
        a.lines = a.lines[:marks[0]] + a.lines[marks[1]:] + rare
    a.label("K2_END")
    a("s_endpgm")
    return a.text()
```
